```python
import torch

def _softmax(x, axis=-1):
    return torch.softmax(x, dim=axis)
def _gelu(x):
    return torch.nn.functional.gelu(x, approximate="tanh")
def _silu(x):
    return torch.nn.functional.silu(x)
def _sigmoid(x):
    return torch.sigmoid(x)
def _layernorm(x, axis=-1, eps=1e-5):
    m = x.mean(dim=axis, keepdim=True)
    v = x.var(dim=axis, keepdim=True, unbiased=False)
    return (x - m) / torch.sqrt(v + eps)
def _scatter_add(tgt, idx, src, axis=0):
    return tgt.clone().index_add_(axis, idx, src)
def _segment_sum(src, seg, n):
    out = torch.zeros((n,) + src.shape[1:], dtype=src.dtype)
    return out.index_add_(0, seg, src)
def _pad(x, pw):
    flat = tuple(v for pair in reversed(pw) for v in pair)
    return torch.nn.functional.pad(x, flat)

kernel_name = 'recurrent_scan__ssm_conv_h3__glu_gated_geglu__prompt'

def setup_inputs():

    _w = (lambda a: (lambda t: t.to(torch.bfloat16) if t.is_floating_point() else t)(torch.as_tensor(a)))
    def _A_setup():
        B, S, D = 1, 2048, 512
        ks = 4
        return {
            "q": _w((lambda *s: torch.randn(*s, dtype=torch.bfloat16) * 0.05)(B, S, D)),
            "k": _w((lambda *s: torch.randn(*s, dtype=torch.bfloat16) * 0.8)(B, S, D)),
            "v": _w((lambda *s: torch.randn(*s, dtype=torch.bfloat16) * 0.8)(B, S, D)),
            "shift_k": _w((lambda *s: torch.randn(*s, dtype=torch.bfloat16) * 0.8)(D, ks) * 0.5),
            "ssm_k": _w((lambda *s: torch.randn(*s, dtype=torch.bfloat16) * 1.6)(D, S) * (1.0 / S ** 0.5)),
            "ssm_D": _w((lambda *s: torch.randn(*s, dtype=torch.bfloat16) * 0.8)(D)),
        }
    _A_in = _A_setup()

    def _B_setup():
        B, S, Dm, Df = 1, 2048, 512, 1792
        return {
            "x": _w((lambda *s: torch.randn(*s, dtype=torch.bfloat16) * 0.05)(B, S, Dm)),
            "w_gate": _w((lambda *s: torch.randn(*s, dtype=torch.bfloat16) * 0.2)(Dm, Df) * (Dm ** -0.5)),
            "w_up": _w((lambda *s: torch.randn(*s, dtype=torch.bfloat16) * 0.2)(Dm, Df) * (Dm ** -0.5)),
            "w_down": _w((lambda *s: torch.randn(*s, dtype=torch.bfloat16) * 0.2)(Df, Dm) * (Df ** -0.5)),
        }
    _B_in = _B_setup()

    return {
        "A_q": _A_in["q"],
        "A_k": _A_in["k"],
        "A_v": _A_in["v"],
        "A_shift_k": _A_in["shift_k"],
        "A_ssm_k": _A_in["ssm_k"],
        "A_ssm_D": _A_in["ssm_D"],
        "B_x": _B_in["x"],
        "B_w_gate": _B_in["w_gate"],
        "B_w_up": _B_in["w_up"],
        "B_w_down": _B_in["w_down"],
    }

def reference(A_q, A_k, A_v, A_shift_k, A_ssm_k, A_ssm_D, B_x, B_w_gate, B_w_up, B_w_down):
    def _A_ref(q, k, v, shift_k, ssm_k, ssm_D):
        B, S, D = q.shape
        ks = shift_k.shape[-1]
        k_pad = _pad(k, ((0, 0), (ks - 1, 0), (0, 0)))
        k_shift = torch.zeros_like(k)
        for t in range(ks):
            k_shift = k_shift + k_pad[:, t:t + S, :] * shift_k[:, ks - 1 - t][None, None, :]
        kv = k_shift * v
        L = 2 * S
        kv_pad = _pad(kv, ((0, 0), (0, S), (0, 0)))
        kf_pad = _pad(ssm_k, ((0, 0), (0, S)))
        kv_f = (lambda x, axes=(-2,-1): torch.fft.rfft2(x.float(), dim=axes))(kv_pad[:, None, :, :], axes=(1, 2))
        kf_f = (lambda x, axes=(-2,-1): torch.fft.rfft2(x.float(), dim=axes))(kf_pad[:, None, :], axes=(1, 2))
        kf_f = (lambda x, *d: x.permute(*d))(kf_f, 1, 2, 0)
        y_f = kv_f * kf_f[None, :, :, :]
        y = (lambda x, s, axes=(-2,-1): torch.fft.irfft2(x, s=s, dim=axes).to(torch.bfloat16))(y_f, (1, L), axes=(1, 2))[:, 0, :S, :]
        y = y + kv * ssm_D[None, None, :]
        return q * y

    def _B_ref(x, w_gate, w_up, w_down):
        g = torch.einsum("bsd,df->bsf", x, w_gate)
        u = torch.einsum("bsd,df->bsf", x, w_up)
        h = _gelu(g) * u
        return torch.einsum("bsf,fd->bsd", h, w_down)

    x = A_q
    xn = _layernorm(x, axis=-1)
    s = _A_ref(xn, A_k, A_v, A_shift_k, A_ssm_k, A_ssm_D)
    g = _silu(_B_ref(xn, B_w_gate, B_w_up, B_w_down))
    return x + s * g
```

```python
from asmlib import Asm
import struct

NAME = "recurrent_scan__ssm_conv_h3__glu_gated_geglu__prompt"

S, D, F = 2048, 512, 1792
X_BYTES = S * D * 2
W_BYTES = D * F * 2

WS_H = 0
WS_H_BYTES = 64 * 112 * 1024
WS_KV = 8 << 20
WS_KV_BYTES = 512 * 8192
WS_Y = 12 << 20
WS_Y_BYTES = 512 * 4096
WS_ST = 14 << 20
WS_ST_BYTES = 2048 * 8
WS_FL = 15 << 20
WS_TS = 16 << 20

P_Q, P_K, P_V, P_SH, P_SK, P_SD, P_BX, P_WG = 64, 66, 68, 70, 72, 74, 76, 78
P_WU, P_WD, P_OUT, P_DBG, P_WS = 80, 82, 84, 86, 88

sXCD, sIDX, sW = 90, 91, 92
vLANE = 1
vL16 = 2

LDS_BYTES = 163840
SLOT = 49152


def f2u(x):
    return struct.unpack("<I", struct.pack("<f", x))[0]


def hx(x):
    return hex(x & 0xFFFFFFFF)


def vr(a, n=1):
    return f"v{a}" if n == 1 else f"v[{a}:{a+n-1}]"


def ar(a, n=1):
    return f"a{a}" if n == 1 else f"a[{a}:{a+n-1}]"


def sr(a, n=1):
    return f"s{a}" if n == 1 else f"s[{a}:{a+n-1}]"


def prologue(a, exit_label):
    a(f"""
    s_cmp_ge_u32 s2, 256
    s_cbranch_scc1 {exit_label}
    s_load_dwordx16 s[64:79], s[0:1], 0
    s_load_dwordx8 s[80:87], s[0:1], 64
    s_load_dwordx2 s[88:89], s[0:1], 96
    v_lshrrev_b32 v3, 6, v0
    v_and_b32 v{vLANE}, 63, v0
    v_readfirstlane_b32 s{sW}, v3
    s_and_b32 s{sXCD}, s2, 7
    s_lshr_b32 s{sIDX}, s2, 3
    v_lshlrev_b32 v{vL16}, 4, v{vLANE}
    """)


def srd(a, dst, ptr, nbytes, off=0, off_sgpr=None):
    if off_sgpr is not None:
        a(f"s_add_u32 s{dst}, s{ptr}, s{off_sgpr}\ns_addc_u32 s{dst+1}, s{ptr+1}, 0")
        if off:
            a(f"s_add_u32 s{dst}, s{dst}, {hx(off)}\ns_addc_u32 s{dst+1}, s{dst+1}, 0")
    elif off:
        a(f"s_add_u32 s{dst}, s{ptr}, {hx(off)}\ns_addc_u32 s{dst+1}, s{ptr+1}, 0")
    else:
        a(f"s_mov_b32 s{dst}, s{ptr}\ns_mov_b32 s{dst+1}, s{ptr+1}")
    a(f"s_mov_b32 s{dst+2}, {hx(nbytes)}\ns_mov_b32 s{dst+3}, 0x20000")


def weave(a, anchors, fillers):
    for i, m in enumerate(anchors):
        a(m)
        if i < len(fillers):
            for f in fillers[i]:
                a(f)


def spread(items, ngaps, first=0, last=None):
    last = ngaps if last is None else last
    out = [[] for _ in range(ngaps)]
    n = last - first
    for i, it in enumerate(items):
        out[first + i * n // len(items)].append(it)
    return out


def merge(*fl):
    n = max(len(f) for f in fl)
    return [sum((f[i] if i < len(f) else [] for f in fl), []) for i in range(n)]
```

```python
from common import *


def reduce32(a, v, t):
    for ctl in ("quad_perm:[1,0,3,2]", "quad_perm:[2,3,0,1]", "row_half_mirror", "row_mirror"):
        a(f"s_nop 1\nv_add_f32_dpp v{v}, v{v}, v{v} {ctl} row_mask:0xf bank_mask:0xf")
    a(f"v_mov_b32 v{t}, v{v}\ns_nop 1\nv_permlane16_swap_b32 v{t}, v{v}\ns_nop 0\nv_add_f32 v{v}, v{t}, v{v}")


def rnd_bf16(a, v):
    a(f"v_cvt_pk_bf16_f32 v{v}, v{v}, v{v}\nv_and_b32 v{v}, 0xffff0000, v{v}")


def phase_a(a, sc="sc1"):
    KB, VB, PAD = 98304, 98304 + 16384, 1040
    a(f"""
    s_and_b32 s4, s{sXCD}, 1
    s_lshl_b32 s4, s4, 10
    s_lshr_b32 s5, s{sXCD}, 1
    s_lshl_b32 s5, s5, 8
    s_add_u32 s4, s4, s5
    s_lshl_b32 s5, s{sIDX}, 3
    s_add_u32 s4, s4, s5
    s_lshl_b32 s5, s{sW}, 1
    s_add_u32 s4, s4, s5
    v_lshrrev_b32 v4, 5, v{vLANE}
    v_add_u32 v4, s4, v4
    v_and_b32 v5, 31, v{vLANE}
    v_lshlrev_b32 v6, 10, v4
    v_lshl_add_u32 v6, v5, 4, v6
    v_lshrrev_b32 v7, 3, v{vLANE}
    v_and_b32 v8, 7, v{vLANE}
    s_lshl_b32 s6, s{sIDX}, 16
    s_lshl_b32 s7, s{sXCD}, 7
    s_add_u32 s6, s6, s7
    v_lshlrev_b32 v9, 10, v7
    v_lshl_add_u32 v9, v8, 4, v9
    v_add_u32 v9, s6, v9
    v_subrev_u32 v10, 8192, v9
    s_waitcnt lgkmcnt(0)
    """)
    srd(a, 8, P_Q, X_BYTES)
    srd(a, 12, P_K, X_BYTES)
    srd(a, 16, P_V, X_BYTES)
    srd(a, 20, P_SH, 4096)
    srd(a, 24, P_WS, WS_KV_BYTES, WS_KV)
    srd(a, 28, P_WS, WS_ST_BYTES, WS_ST)
    a(f"""
    buffer_load_dwordx4 v[16:19], v6, s[8:11], 0 offen
    buffer_load_dwordx4 v[20:23], v6, s[8:11], 0 offen offset:512
    s_lshl_b32 s32, s{sW}, 14
    s_mul_i32 s33, s{sW}, {2*PAD}
    s_add_u32 s34, s32, 8192
    s_add_u32 m0, s33, {KB + PAD}
    s_nop 0
    buffer_load_dwordx4 v9, s[12:15], s32 offen lds
    s_add_u32 m0, s33, {KB + 2*PAD}
    s_nop 0
    buffer_load_dwordx4 v9, s[12:15], s34 offen lds
    s_add_u32 m0, s33, {VB + PAD}
    s_nop 0
    buffer_load_dwordx4 v9, s[16:19], s32 offen lds
    s_add_u32 m0, s33, {VB + 2*PAD}
    s_nop 0
    buffer_load_dwordx4 v9, s[16:19], s34 offen lds
    """)
    skip = a.label("halo")
    a(f"""
    s_cmp_lg_u32 s{sW}, 0
    s_cbranch_scc1 {skip}
    s_mov_b32 m0, {KB}
    s_nop 0
    buffer_load_dwordx4 v10, s[12:15], 0 offen lds
    s_mov_b32 m0, {VB}
    s_nop 0
    buffer_load_dwordx4 v10, s[16:19], 0 offen lds
    {skip}:
    s_lshl_b32 s35, s{sW}, 3
    v_add_u32 v11, s35, v7
    v_sub_u32 v12, 7, v8
    s_lshl_b32 s36, s{sXCD}, 9
    v_lshlrev_b32 v13, 4, v11
    buffer_load_dwordx4 v[24:27], v13, s[20:23], s36 offen
    v_mul_u32_u24 v14, {PAD}, v12
    v_lshl_add_u32 v14, v11, 2, v14
    v_add_u32 v14, {KB}, v14
    s_lshl_b32 s37, s{sXCD}, 19
    s_lshl_b32 s38, s{sIDX}, 7
    s_sub_u32 s37, s37, s38
    s_add_u32 s37, s37, {4096 - 128}
    v_lshlrev_b32 v15, 14, v11
    v_lshl_add_u32 v15, v8, 4, v15
    v_add_u32 v15, s37, v15
    s_waitcnt vmcnt(0)
    s_barrier
    """)
    for jj in range(12):
        rho = 4 + jj
        a(f"ds_read_b32 v{32+jj}, v14 offset:{(rho >> 3) * PAD + (rho & 7) * 128}")
    for jj in range(9):
        rho = 7 + jj
        a(f"ds_read_b32 v{44+jj}, v14 offset:{VB - KB + (rho >> 3) * PAD + (rho & 7) * 128}")
    for j in range(8):
        a(f"v_lshlrev_b32 v{64+2*j}, 16, v{16+j}\nv_and_b32 v{65+2*j}, 0xffff0000, v{16+j}")
    a("v_pk_add_f32 v[80:81], v[64:65], v[66:67]")
    for j in range(2, 8):
        a(f"v_pk_add_f32 v[80:81], v[80:81], v[{64+2*j}:{65+2*j}]")
    a("v_add_f32 v80, v80, v81")
    reduce32(a, 80, 81)
    a(f"v_mul_f32 v80, {hx(f2u(1.0/512))}, v80")
    for j in range(16):
        a(f"v_sub_f32 v{64+j}, v{64+j}, v80")
    a("v_pk_mul_f32 v[82:83], v[64:65], v[64:65]")
    for j in range(1, 8):
        a(f"v_pk_fma_f32 v[82:83], v[{64+2*j}:{65+2*j}], v[{64+2*j}:{65+2*j}], v[82:83]")
    a("v_add_f32 v81, v82, v83")
    reduce32(a, 81, 82)
    a(f"v_mul_f32 v81, {hx(f2u(1.0/512))}, v81")
    rnd_bf16(a, 80)
    rnd_bf16(a, 81)
    a(f"v_add_f32 v81, {hx(f2u(1e-5))}, v81")
    rnd_bf16(a, 81)
    a("v_sqrt_f32 v81, v81\ns_nop 0")
    rnd_bf16(a, 81)
    a(f"""
    v_lshlrev_b32 v4, 3, v4
    v_cmp_eq_u32 vcc, 0, v5
    s_nop 1
    v_cndmask_b32 v4, -1, v4, vcc
    buffer_store_dwordx2 v[80:81], v4, s[28:31], 0 offen {sc}
    """)
    for t in range(4):
        for ch in range(2):
            src = 24 + 2 * ch + (t >> 1)
            if t & 1:
                a(f"v_and_b32 v{84+2*t+ch}, 0xffff0000, v{src}")
            else:
                a(f"v_lshlrev_b32 v{84+2*t+ch}, 16, v{src}")
    a("s_waitcnt lgkmcnt(0)")
    for j in range(21):
        a(f"v_lshlrev_b32 v{96+2*j}, 16, v{32+j}\nv_and_b32 v{97+2*j}, 0xffff0000, v{32+j}")
    kp = lambda jj: f"v[{96+2*jj}:{97+2*jj}]"
    vp = lambda jj: f"v[{120+2*jj}:{121+2*jj}]"
    up = lambda jj: 140 + 2 * jj
    for jj in range(9):
        u = f"v[{up(jj)}:{up(jj)+1}]"
        a(f"v_pk_mul_f32 {u}, {kp(jj)}, v[90:91]")
        for t in (2, 1, 0):
            a(f"v_pk_fma_f32 {u}, {kp(jj+3-t)}, v[{84+2*t}:{85+2*t}], {u}")
        a(f"v_pk_mul_f32 {u}, {u}, {vp(jj)}")
    for ch in range(2):
        for cp in range(2):
            base = 32 + 4 * (2 * ch + cp)
            for e in range(4):
                hi = 8 - cp - 2 * e
                a(f"v_cvt_pk_bf16_f32 v{base+e}, v{up(hi)+ch}, v{up(hi-1)+ch}")
    a("s_mov_b32 s40, 4096\ns_mov_b32 s41, 8192\ns_mov_b32 s42, 12288")
    for n, so in enumerate(("0", "s40", "s41", "s42")):
        a(f"buffer_store_dwordx4 v[{32+4*n}:{35+4*n}], v15, s[24:27], {so} offen {sc}")


ACC1 = 128
FR = [64, 88]
vXD, vWD, vXA, vWA, vCS = 8, 16, 20, 24, 28
C1 = -2.0 * 0.7978845608028654 * 1.4426950408889634
C2 = C1 * 0.044715


def g1_reads(p, ks):
    r = [f"ds_read_b128 {vr(FR[p], 4)}, v{vXA+ks}"]
    for t in range(4):
        for e in range(2):
            r.append(f"ds_read_b64_tr_b16 {vr(FR[p]+8+4*t+2*e, 2)}, v{vWA+t} offset:{ks*2048+e*512}")
    r.append(f"ds_read_b128 {vr(FR[p]+4, 4)}, v{vXA+ks} offset:4096")
    return r


def g1_mfmas(p, first=False):
    m = []
    for rt in range(2):
        for t in range(4):
            acc = vr(ACC1 + (rt * 4 + t) * 16, 16)
            m.append(f"v_mfma_f32_32x32x16_bf16 {acc}, {vr(FR[p]+8+4*t, 4)}, {vr(FR[p]+4*rt, 4)}, {'0' if first else acc}")
    return m


def g1_dmas():
    d = []
    for j in range(8):
        pre = []
        if j % 4 == 0:
            pre = [f"s_add_u32 m0, s44, {j*1024}", "s_nop 0"]
        d.append(pre + [f"buffer_load_dwordx4 v{vXD+j}, s[8:11], s46 offen offset:{(j%4)*1024} lds"])
    for j in range(4):
        pre = ["s_mov_b32 m0, s45", "s_nop 0"] if j == 0 else []
        d.append(pre + [f"buffer_load_dwordx4 v{vWD+j}, s[12:15], s47 offen offset:{j*1024} lds"])
    return d


def g1_advance():
    return ["s_add_u32 s46, s46, 128", f"s_add_u32 s47, s47, {64*F*2}"]


def phase_g1(a, exit_label, sc="sc1", stamp=None):
    a(f"""
    s_cmp_ge_u32 s{sIDX}, 28
    s_cbranch_scc1 {exit_label}
    s_and_b32 s4, s{sXCD}, 1
    s_lshl_b32 s4, s4, 2
    s_and_b32 s5, s{sIDX}, 3
    s_add_u32 s4, s4, s5
    s_lshr_b32 s5, s{sXCD}, 1
    s_mul_i32 s5, s5, 7
    s_lshr_b32 s6, s{sIDX}, 2
    s_add_u32 s5, s5, s6
    s_lshl_b32 s6, s4, 2
    s_add_u32 s6, s6, s{sW}
    v_lshrrev_b32 v4, 3, v{vLANE}
    v_and_b32 v5, 7, v{vLANE}
    v_lshrrev_b32 v6, 4, v{vLANE}
    v_xor_b32 v7, v5, v6
    v_lshlrev_b32 v7, 4, v7
    v_lshl_add_u32 v7, v4, 10, v7
    s_lshl_b32 s7, s6, 16
    v_add_u32 v7, s7, v7
    """)
    for j in range(8):
        a(f"v_add_u32 v{vXD+j}, {j*8192 - (j%4)*1024}, v7")
        if j & 1:
            a(f"v_xor_b32 v{vXD+j}, 64, v{vXD+j}")
    a(f"""
    s_lshr_b32 s32, s{sW}, 1
    s_and_b32 s33, s{sW}, 1
    v_and_b32 v7, 1, v6
    v_lshlrev_b32 v7, 1, v7
    s_lshl_b32 s34, s32, 2
    v_or_b32 v7, s34, v7
    v_xor_b32 v7, v5, v7
    v_lshlrev_b32 v7, 4, v7
    v_mul_u32_u24 v29, {F*2}, v4
    v_add_u32 v7, v7, v29
    s_mul_i32 s34, s33, {32*F*2}
    s_lshl_b32 s35, s5, 7
    s_add_u32 s34, s34, s35
    v_add_u32 v7, s34, v7
    """)
    for j in range(4):
        a(f"v_add_u32 v{vWD+j}, {j*(8*F*2 - 1024)}, v7")
    a(f"""
    v_and_b32 v7, 31, v{vLANE}
    v_lshrrev_b32 v29, 5, v{vLANE}
    v_bfe_u32 v30, v{vLANE}, 1, 3
    v_xor_b32 v30, v29, v30
    v_lshlrev_b32 v30, 4, v30
    v_lshl_add_u32 v30, v7, 7, v30
    s_lshl_b32 s44, s{sW}, 13
    v_add_u32 v30, s44, v30
    """)
    for ks in range(4):
        a(f"v_xor_b32 v{vXA+ks}, {ks*32}, v30")
    a(f"""
    v_and_b32 v30, 1, v6
    v_bfe_u32 v31, v{vLANE}, 3, 1
    v_lshl_add_u32 v31, v30, 1, v31
    v_lshlrev_b32 v30, 13, v30
    v_lshl_add_u32 v30, v29, 10, v30
    v_bfe_u32 v32, v{vLANE}, 2, 2
    v_lshl_add_u32 v30, v32, 7, v30
    v_and_b32 v32, 3, v{vLANE}
    v_lshl_add_u32 v30, v32, 3, v30
    v_add_u32 v30, 32768, v30
    """)
    for t in range(4):
        a(f"""
        s_add_u32 s{48+t}, s{sW}, {t}
        s_and_b32 s{48+t}, s{48+t}, 3
        v_xor_b32 v32, s{48+t}, v31
        v_lshl_add_u32 v{vWA+t}, v32, 5, v30
        """)
    a(f"""
    s_lshl_b32 s45, s{sW}, 12
    s_add_u32 s45, s45, 32768
    s_mov_b32 s46, 0
    s_mov_b32 s47, 0
    v_mov_b32 v{vCS}, 0
    s_mov_b32 s52, 0x3f803f80
    s_waitcnt lgkmcnt(0)
    """)
    srd(a, 8, P_Q, X_BYTES)
    a(f"""
    s_cmp_eq_u32 s32, 0
    s_cselect_b32 s12, s{P_WG}, s{P_WU}
    s_cselect_b32 s13, s{P_WG+1}, s{P_WU+1}
    s_mov_b32 s14, {W_BYTES}
    s_mov_b32 s15, 0x20000
    """)
    srd(a, 16, P_WS, WS_ST_BYTES, WS_ST)
    srd(a, 20, P_WS, WS_H_BYTES, WS_H)
    if stamp:
        stamp(a, 0)
    for st in range(2):
        for d in g1_dmas():
            for i in d:
                a(i)
        for i in g1_advance():
            a(i)
        a(f"s_add_u32 s44, s44, {SLOT}\ns_add_u32 s45, s45, {SLOT}")
    a(f"""
    s_lshl_b32 s7, s6, 9
    v_lshlrev_b32 v7, 3, v7
    buffer_load_dwordx2 v[40:41], v7, s[16:19], s7 offen
    buffer_load_dwordx2 v[42:43], v7, s[16:19], s7 offen offset:256
    s_waitcnt vmcnt(14)
    s_barrier
    """)
    if stamp:
        stamp(a, 1)
    for i in g1_reads(0, 0):
        a(i)
    for st in range(8):
        dm = g1_dmas() if st < 6 else []
        for ks in range(4):
            p = ks & 1
            head = ["s_waitcnt lgkmcnt(0)"]
            nxt = []
            if ks < 3:
                nxt = g1_reads(p ^ 1, ks + 1)
            elif st < 7:
                n_out = 9 if st < 6 else 0
                head = [f"s_waitcnt vmcnt({n_out}) lgkmcnt(0)", "s_barrier"]
                delta = SLOT if (st + 1) % 3 else -2 * SLOT
                nxt = [f"v_add_u32 v{vXA}, {hx(delta)}, v{vXA}"] + [f"v_add_u32 v{vWA+t}, {hx(delta)}, v{vWA+t}" for t in range(4)]
                nxt += g1_reads(p ^ 1, 0) + [f"v_add_u32 v{vXA+k}, {hx(delta)}, v{vXA+k}" for k in range(1, 4)]
            for i in head:
                a(i)
            dots = [f"v_dot2c_f32_bf16 v{vCS}, s52, v{FR[p]+8+j}" for j in range(4)]
            fl = spread(nxt, 8, 0, 5) if nxt else [[] for _ in range(8)]
            dd = [[] for _ in range(8)]
            for j in range(3):
                if dm:
                    dd[5 + j] = dm[ks * 3 + j]
            if dm and ks == 3:
                delta = SLOT if (st + 3) % 3 else -2 * SLOT
                dd[7] = dd[7] + g1_advance() + [f"s_add_u32 s44, s44, {hx(delta)}", f"s_add_u32 s45, s45, {hx(delta)}"]
            weave(a, g1_mfmas(p, first=(st == 0 and ks == 0)), merge(fl, spread(dots, 8, 4, 8), dd))
    if stamp:
        stamp(a, 2)
    CSB = 147456
    a(f"""
    s_nop 2
    v_cvt_pk_bf16_f32 v44, v{vCS}, v{vCS}
    v_and_b32 v45, 0xffff0000, v44
    v_sub_f32 v45, v{vCS}, v45
    v_cvt_pk_bf16_f32 v44, v{vCS}, v45
    s_lshl_b32 s7, s{sW}, 8
    v_lshl_add_u32 v46, v{vLANE}, 2, s7
    v_add_u32 v46, {CSB}, v46
    ds_write_b32 v46, v44
    """)
    for t in range(4):
        a(f"s_lshl_b32 s7, s{48+t}, 8\nv_lshl_add_u32 v{48+t}, v{vLANE}, 2, s7\nv_add_u32 v{48+t}, {CSB}, v{48+t}")
    for j in range(24):
        if j % 4:
            a(f"v_mov_b32 v{FR[0]+j}, 0")
    a("s_waitcnt vmcnt(0) lgkmcnt(0)\ns_barrier")
    for t in range(4):
        a(f"ds_read_b32 v{FR[0]+8+4*t}, v{48+t}")
    for rt in range(2):
        m, den = 40 + 2 * rt, 41 + 2 * rt
        c1, c2, i2 = 52 + 4 * rt, 53 + 4 * rt, 54 + 4 * rt
        a(f"""
        v_cvt_pk_bf16_f32 v{FR[0]+4*rt}, -v{m}, -v{m}
        v_rcp_f32 v{c1}, v{den}
        v_mul_f32 v{i2}, v{den}, v{den}
        v_mul_f32 v{c2}, v{c1}, v{c1}
        v_mul_f32 v{c2}, v{c2}, v{c1}
        v_mul_f32 v{c1}, {hx(f2u(C1))}, v{c1}
        v_mul_f32 v{c2}, {hx(f2u(C2))}, v{c2}
        """)
    a("s_waitcnt lgkmcnt(0)")
    for m in g1_mfmas(0):
        a(m)
    a(f"s_lshl_b32 s7, s6, 1\ns_mul_i32 s7, s7, 112\ns_lshl_b32 s32, s5, 2\ns_add_u32 s7, s7, s32")
    for t in range(4):
        a(f"s_add_u32 s{48+t}, s{48+t}, s7\ns_lshl_b32 s{48+t}, s{48+t}, 10")
    a(f"v_add_u32 v44, {112*1024}, v{vL16}\ns_nop 7")
    for rt in range(2):
        c1 = 52 + 4 * rt
        for t in range(4):
            acc = ACC1 + (rt * 4 + t) * 16
            T = 88 + 12 * (t & 1)
            for j in range(0, 8, 2):
                a(f"v_pk_mul_f32 {vr(T+j,2)}, {vr(acc+j,2)}, {vr(acc+j,2)}")
            for j in range(0, 8, 2):
                a(f"v_pk_fma_f32 {vr(T+j,2)}, {vr(T+j,2)}, {vr(c1,2)}, {vr(c1,2)} op_sel:[0,1,0] op_sel_hi:[1,1,0]")
            for j in range(0, 8, 2):
                a(f"v_pk_mul_f32 {vr(T+j,2)}, {vr(T+j,2)}, {vr(acc+j,2)}")
            for j in range(8):
                a(f"v_exp_f32 v{T+j}, v{T+j}")
            for j in range(0, 8, 2):
                a(f"v_pk_mul_f32 {vr(acc+j,2)}, {vr(acc+j,2)}, {vr(acc+8+j,2)}")
            for j in range(0, 8, 2):
                a(f"v_pk_fma_f32 {vr(T+j,2)}, {vr(T+j,2)}, {vr(c1+2,2)}, {vr(c1+2,2)} op_sel_hi:[1,0,0]")
            for j in range(8):
                a(f"v_rcp_f32 v{T+j}, v{T+j}")
            a("s_nop 0")
            for j in range(0, 8, 2):
                a(f"v_pk_mul_f32 {vr(acc+j,2)}, {vr(acc+j,2)}, {vr(T+j,2)}")
            for j in range(4):
                a(f"v_cvt_pk_bf16_f32 v{acc+8+j}, v{acc+2*j}, v{acc+2*j+1}")
            a(f"buffer_store_dwordx4 {vr(acc+8,4)}, v{44 if rt else vL16}, s[20:23], s{48+t} offen {sc}")
    if stamp:
        stamp(a, 3)
        a("s_waitcnt vmcnt(0)")
        stamp(a, 4)


US, HS = 4640, 4464
CH_LDS = 4 * US + HS + 4224 + 16
CONV_BASE = 98304 + 16


def phase_conv(a, sc="sc1", stamp=None):
    UF, HF, ACC = [32, 96], [64, 128], 160
    a(f"""
    s_lshr_b32 s4, s{sW}, 1
    s_and_b32 s5, s{sW}, 1
    s_lshl_b32 s6, s{sXCD}, 6
    s_lshl_b32 s7, s{sIDX}, 1
    s_add_u32 s6, s6, s7
    s_add_u32 s6, s6, s4
    s_mul_i32 s32, s4, {CH_LDS}
    s_add_u32 s32, s32, {CONV_BASE}
    s_waitcnt lgkmcnt(0)
    """)
    srd(a, 8, P_WS, WS_KV_BYTES, WS_KV)
    srd(a, 12, P_SK, X_BYTES)
    srd(a, 16, P_SD, 1024)
    srd(a, 20, P_WS, WS_Y_BYTES, WS_Y)
    if stamp:
        stamp(a, 0)
    a(f"""
    s_lshl_b32 s33, s6, 13
    s_lshl_b32 s34, s5, 12
    s_add_u32 s33, s33, s34
    s_mul_i32 s34, s5, {US}
    s_sub_u32 s35, s32, s34
    s_add_u32 m0, s35, {3*US}
    s_lshl_b32 s36, s6, 12
    """)
    for j in range(4):
        a(f"buffer_load_dwordx4 v{vL16}, s[8:11], s33 offen offset:{j*1024} {sc} lds")
    a(f"s_add_u32 m0, s35, {US - 4}\ns_nop 0")
    for j in range(4):
        a(f"buffer_load_dwordx4 v{vL16}, s[8:11], s33 offen offset:{j*1024} {sc} lds")
    a(f"""
    s_mul_i32 s37, s5, {HS + 8}
    s_add_u32 s37, s37, s32
    s_add_u32 m0, s37, {4*US + 120}
    s_nop 0
    """)
    for j in range(4):
        a(f"buffer_load_dwordx4 v{vL16}, s[12:15], s36 offen offset:{j*1024} lds")
    a(f"""
    s_lshl_b32 s38, s6, 1
    v_mov_b32 v4, 0
    buffer_load_ushort v5, v4, s[16:19], s38 offen
    v_lshl_add_u32 v6, v{vLANE}, 2, s35
    ds_write_b32 v6, v4 offset:{3*US + 4096}
    ds_write_b32 v6, v4 offset:{3*US + 4096 + 256}
    ds_write_b32 v6, v4 offset:{US + 4092}
    ds_write_b32 v6, v4 offset:{US + 4092 + 256}
    v_min_u32 v7, 29, v{vLANE}
    v_lshl_add_u32 v7, v7, 2, s37
    ds_write_b32 v7, v4 offset:{4*US}
    v_and_b32 v8, 15, v{vLANE}
    v_lshrrev_b32 v9, 4, v{vLANE}
    v_and_b32 v10, 3, v8
    v_mul_u32_u24 v10, {US}, v10
    v_lshrrev_b32 v11, 2, v8
    v_lshlrev_b32 v11, 7, v11
    v_sub_u32 v10, v10, v11
    v_lshl_add_u32 v10, v9, 4, v10
    s_lshl_b32 s39, s5, 8
    s_add_u32 s39, s39, s32
    v_add_u32 v10, s39, v10
    v_add_u32 v10, {248*16 - 7*512}, v10
    v_and_b32 v11, 1, v8
    v_mul_u32_u24 v11, {HS}, v11
    v_add_u32 v12, 1, v8
    v_lshrrev_b32 v12, 1, v12
    v_add_u32 v12, v12, v9
    v_lshl_add_u32 v11, v12, 4, v11
    v_add_u32 v11, s39, v11
    v_add_u32 v11, {4*US}, v11
    s_waitcnt vmcnt(0) lgkmcnt(0)
    s_barrier
    """)
    if stamp:
        stamp(a, 1)

    def reads(p, m):
        r = []
        for j in range(8):
            r.append(f"ds_read_b128 {vr(HF[p]+4*j,4)}, v11 offset:{64*m + 512*j}")
            r.append(f"ds_read_b128 {vr(UF[p]+4*j,4)}, v10 offset:{64*m + 512*(7-j)}")
        return r

    for i in reads(0, 0):
        a(i)
    for m in range(4):
        p = m & 1
        a("s_waitcnt lgkmcnt(0)")
        ms = []
        for aa in range(8):
            for b in range(8 - aa):
                acc = vr(ACC + 4 * (aa + b), 4)
                c = "0" if (m == 0 and aa == 0) else acc
                ms.append(f"v_mfma_f32_16x16x32_bf16 {acc}, {vr(UF[p]+4*b,4)}, {vr(HF[p]+4*aa,4)}, {c}")
        weave(a, ms, spread(reads(p ^ 1, m + 1), 36, 0, 24) if m < 3 else [])
    if stamp:
        stamp(a, 2)
    RB = 0
    odd, join = a.label("odd"), a.label("join")
    a(f"""
    s_lshl_b32 s7, s{sW}, 12
    v_add_u32 v12, s7, v{vL16}
    v_xor_b32 v13, 4096, v12
    s_lshl_b32 s7, s5, 11
    s_sub_u32 s7, s32, s7
    v_lshlrev_b32 v14, 3, v{vLANE}
    v_sub_u32 v15, s7, v14
    v_add_u32 v15, {3*US + 4088 - 3*512}, v15
    v_lshlrev_b32 v5, 16, v5
    s_lshl_b32 s7, s5, 11
    s_add_u32 s36, s36, s7
    s_cmp_eq_u32 s5, 0
    s_cbranch_scc0 {odd}
    """)
    for j in range(4):
        a(f"ds_write_b128 v12, {vr(ACC+16+4*j,4)} offset:{RB + j*1024}")
    a(f"s_branch {join}\n{odd}:")
    for j in range(4):
        a(f"ds_write_b128 v12, {vr(ACC+4*j,4)} offset:{RB + j*1024}")
    a("s_nop 1")
    for j in range(16):
        a(f"v_mov_b32 v{ACC+j}, v{ACC+16+j}")
    a(f"{join}:")
    for j in range(4):
        a(f"ds_read_b64 {vr(64+2*j,2)}, v15 offset:{(3-j)*512}")
    a("s_waitcnt lgkmcnt(0)\ns_barrier")
    for j in range(4):
        a(f"ds_read_b128 {vr(32+4*j,4)}, v13 offset:{RB + j*1024}")
    for j in range(4):
        for r in range(4):
            src = 64 + 2 * j + (1 - (r >> 1))
            if r & 1:
                a(f"v_lshlrev_b32 v72, 16, v{src}")
            else:
                a(f"v_and_b32 v72, 0xffff0000, v{src}")
            a(f"v_fmac_f32 v{ACC+4*j+r}, v72, v5")
    a("s_waitcnt lgkmcnt(0)")
    for j in range(4):
        a(f"v_pk_add_f32 {vr(32+4*j,2)}, {vr(32+4*j,2)}, {vr(ACC+4*j,2)}")
        a(f"v_pk_add_f32 {vr(34+4*j,2)}, {vr(34+4*j,2)}, {vr(ACC+4*j+2,2)}")
        a(f"v_cvt_pk_bf16_f32 v{48+2*j}, v{32+4*j}, v{33+4*j}")
        a(f"v_cvt_pk_bf16_f32 v{49+2*j}, v{34+4*j}, v{35+4*j}")
        a(f"buffer_store_dwordx2 {vr(48+2*j,2)}, v14, s[20:23], s36 offen offset:{j*512} {sc}")
    if stamp:
        stamp(a, 3)


def phase_g2(a, sc="sc1", stamp=None):
    ACC, HR, NH = 128, 64, 16
    YB, YP = 147456, 1040
    a(f"""
    s_and_b32 s4, s{sXCD}, 1
    s_lshl_b32 s4, s4, 2
    s_lshr_b32 s5, s{sXCD}, 1
    s_add_u32 s4, s4, s5
    s_lshl_b32 s4, s4, 2
    s_lshr_b32 s5, s{sIDX}, 3
    s_add_u32 s4, s4, s5
    s_and_b32 s5, s{sIDX}, 7
    v_lshrrev_b32 v4, 3, v{vLANE}
    v_and_b32 v5, 7, v{vLANE}
    v_bfe_u32 v6, v{vLANE}, 4, 1
    v_lshlrev_b32 v6, 2, v6
    v_xor_b32 v6, v5, v6
    v_lshlrev_b32 v6, 4, v6
    v_lshl_add_u32 v6, v4, 10, v6
    s_mul_i32 s6, s{sW}, {448*1024}
    s_lshl_b32 s7, s5, 7
    s_add_u32 s6, s6, s7
    v_add_u32 v6, s6, v6
    """)
    for j in range(4):
        a(f"v_add_u32 v{8+j}, {j*(8192-1024)}, v6")
    a(f"""
    v_lshrrev_b32 v12, 5, v{vLANE}
    v_bfe_u32 v13, v{vLANE}, 2, 2
    v_lshl_add_u32 v12, v12, 2, v13
    v_lshlrev_b32 v12, 7, v12
    v_bfe_u32 v13, v{vLANE}, 4, 1
    v_lshl_add_u32 v12, v13, 5, v12
    v_and_b32 v13, 3, v{vLANE}
    v_lshl_add_u32 v12, v13, 3, v12
    v_bfe_u32 v13, v{vLANE}, 3, 1
    v_lshl_add_u32 v12, v13, 6, v12
    s_mul_i32 s32, s{sW}, {28*1024}
    v_add_u32 v12, s32, v12
    v_xor_b32 v13, 64, v12
    s_waitcnt lgkmcnt(0)
    """)
    srd(a, 8, P_WD, W_BYTES)
    srd(a, 12, P_WS, WS_H_BYTES, WS_H)
    srd(a, 16, P_WS, WS_Y_BYTES, WS_Y)
    srd(a, 20, P_Q, X_BYTES)
    srd(a, 24, P_OUT, X_BYTES)
    srd(a, 28, P_WS, WS_ST_BYTES, WS_ST)
    if stamp:
        stamp(a, 0)
    a("s_mov_b32 s33, 0")
    for half in range(2):
        for g in range(7):
            a(f"s_add_u32 m0, s32, {g*4096}\ns_nop 0")
            for j in range(4):
                a(f"buffer_load_dwordx4 v{8+j}, s[8:11], s33 offen offset:{j*1024} lds")
            a("s_add_u32 s33, s33, 32768")
        for ks in range(14):
            if ks % 2 == 0:
                a(f"s_waitcnt vmcnt({24 - 2*ks})")
            for u in range(2):
                for e in range(2):
                    a(f"ds_read_b64_tr_b16 {ar((half*14+ks)*8 + u*4 + 2*e, 2)}, v{12+u} offset:{ks*2048 + e*1024}")
        a("s_waitcnt lgkmcnt(0)")
    if stamp:
        stamp(a, 1)
    a(f"""
    s_lshl_b32 s6, s5, 18
    s_lshl_b32 s7, s4, 7
    s_add_u32 s6, s6, s7
    s_lshl_b32 s7, s{sW}, 16
    s_add_u32 s6, s6, s7
    v_lshlrev_b32 v14, 12, v4
    v_lshl_add_u32 v14, v5, 4, v14
    s_mul_i32 s7, s{sW}, {2*YP}
    s_add_u32 m0, s7, {YB}
    s_add_u32 s34, s6, 32768
    buffer_load_dwordx4 v14, s[16:19], s6 offen {sc} lds
    s_add_u32 m0, s7, {YB + YP}
    s_lshl_b32 s35, s4, 6
    buffer_load_dwordx4 v14, s[16:19], s34 offen {sc} lds
    s_lshl_b32 s7, s{sW}, 4
    s_add_u32 s35, s35, s7
    v_add_u32 v15, s35, v4
    v_lshlrev_b32 v16, 3, v15
    v_lshlrev_b32 v15, 10, v15
    v_lshl_add_u32 v15, v5, 4, v15
    s_lshl_b32 s36, s5, 7
    s_add_u32 s37, s36, 8192
    buffer_load_dwordx4 v[20:23], v15, s[20:23], s36 offen
    buffer_load_dwordx4 v[24:27], v15, s[20:23], s37 offen
    buffer_load_dwordx2 v[28:29], v16, s[28:31], 0 offen {sc}
    buffer_load_dwordx2 v[30:31], v16, s[28:31], 0 offen offset:64 {sc}
    v_mul_u32_u24 v17, {YP}, v5
    v_add_u32 v18, s7, v4
    v_lshl_add_u32 v17, v18, 1, v17
    v_add_u32 v17, {YB}, v17
    s_mul_i32 s38, s4, {2*112*1024}
    s_mul_i32 s39, s{sW}, {28*1024}
    s_add_u32 s38, s38, s39
    s_add_u32 s39, s38, {112*1024}
    """)
    for j in range(16):
        a(f"v_mov_b32 v{32+j}, 0")

    def hload(n):
        ks, st = n >> 1, n & 1
        pre = []
        if ks and ks % 4 == 0:
            pre = [f"s_add_u32 s{38+st}, s{38+st}, 4096"]
        return pre + [f"buffer_load_dwordx4 {vr(HR + 4*(n % NH), 4)}, v{vL16}, s[12:15], s{38+st} offen offset:{(ks%4)*1024} {sc}"]

    for n in range(NH - 2):
        for i in hload(n):
            a(i)
    a(f"s_waitcnt vmcnt({NH-2})\ns_barrier")
    for p in range(2):
        for j in range(8):
            a(f"ds_read_u16_d16_hi v{32+8*p+j}, v17 offset:{j*128 + p*16}")
    for p in range(2):
        a(f"v_rcp_f32 v{29+2*p}, v{29+2*p}")
        for j in range(4):
            a(f"v_lshlrev_b32 v{48+8*p+2*j}, 16, v{20+4*p+j}\nv_and_b32 v{49+8*p+2*j}, 0xffff0000, v{20+4*p+j}")
    a("s_waitcnt lgkmcnt(0)")
    for p in range(2):
        for j in range(8):
            a(f"v_sub_f32 v19, v{48+8*p+j}, v{28+2*p}\nv_mul_f32 v19, v19, v{29+2*p}\nv_mul_f32 v{32+8*p+j}, v{32+8*p+j}, v19")
    for ks in range(28):
        nx = [n for n in (2 * ks + NH - 2, 2 * ks + NH - 1) if n < 56]
        issued = min(56, 2 * ks + NH - 2)
        a(f"s_waitcnt vmcnt({issued - (2*ks + 2)})")
        ms = []
        for st in range(2):
            for u in range(2):
                acc = vr(ACC + (st * 2 + u) * 16, 16)
                ms.append(f"v_mfma_f32_32x32x16_bf16 {acc}, {ar(ks*8+u*4,4)}, {vr(HR + 4*((2*ks+st) % NH), 4)}, {'0' if ks == 0 else acc}")
        fl = [[], [], [], []]
        for i, n in enumerate(nx):
            fl[2 * i] = hload(n)
        weave(a, ms, fl)
    if stamp:
        stamp(a, 2)
    a(f"""
    v_and_b32 v6, 31, v{vLANE}
    v_lshrrev_b32 v7, 5, v{vLANE}
    v_xor_b32 v7, v7, v5
    v_lshlrev_b32 v7, 4, v7
    v_lshl_add_u32 v7, v6, 8, v7
    s_lshl_b32 s6, s{sW}, 14
    v_add_u32 v7, s6, v7
    v_xor_b32 v8, 32, v7
    v_xor_b32 v9, 64, v7
    v_xor_b32 v10, 96, v7
    v_lshlrev_b32 v11, 1, v5
    v_xor_b32 v11, v11, v4
    v_lshlrev_b32 v11, 4, v11
    v_lshl_add_u32 v11, v18, 8, v11
    v_xor_b32 v12, 16, v11
    s_barrier
    """)
    for st in range(2):
        for u in range(2):
            for rq in range(4):
                a(f"ds_write_b128 v{7+rq}, {vr(ACC + (st*2+u)*16 + 4*rq, 4)} offset:{st*8192 + u*128}")
    a("s_waitcnt lgkmcnt(0)\ns_barrier")
    for p in range(2):
        for w in range(4):
            for e in range(2):
                a(f"ds_read_b128 {vr(64 + 32*p + 8*w + 4*e, 4)}, v{11+e} offset:{w*16384 + p*2048}")
    for p in range(2):
        a(f"s_waitcnt lgkmcnt({8*(1-p)})")
        b = 64 + 32 * p
        for j in range(0, 8, 2):
            a(f"v_pk_add_f32 {vr(b+j,2)}, {vr(b+j,2)}, {vr(b+8+j,2)}")
            a(f"v_pk_add_f32 {vr(b+16+j,2)}, {vr(b+16+j,2)}, {vr(b+24+j,2)}")
        for j in range(0, 8, 2):
            a(f"v_pk_add_f32 {vr(b+j,2)}, {vr(b+j,2)}, {vr(b+16+j,2)}")
        for j in range(8):
            a(f"v_mul_f32 v{b+8+j}, {hx(f2u(-1.4426950408889634))}, v{b+j}")
        for j in range(8):
            a(f"v_exp_f32 v{b+8+j}, v{b+8+j}")
        for j in range(0, 8, 2):
            a(f"v_pk_mul_f32 {vr(b+j,2)}, {vr(b+j,2)}, {vr(32+8*p+j,2)}")
        for j in range(8):
            a(f"v_add_f32 v{b+8+j}, 1.0, v{b+8+j}")
        for j in range(8):
            a(f"v_rcp_f32 v{b+8+j}, v{b+8+j}")
        a("s_nop 0")
        for j in range(0, 8, 2):
            a(f"v_pk_fma_f32 {vr(b+j,2)}, {vr(b+j,2)}, {vr(b+8+j,2)}, {vr(48+8*p+j,2)}")
        for j in range(4):
            a(f"v_cvt_pk_bf16_f32 v{b+16+j}, v{b+2*j}, v{b+2*j+1}")
        a(f"buffer_store_dwordx4 {vr(b+16,4)}, v15, s[24:27], s{36+p} offen")
    if stamp:
        stamp(a, 3)
```

```python
import sys
from common import *
from asmlib import HEAD, kernel_text, descriptor
import phases_v1 as P

STAMP = "--stamp" in sys.argv
out = sys.argv[1]


def stamp(a, n):
    a(f"""
    s_memrealtime s[94:95]
    s_memtime s[96:97]
    s_waitcnt lgkmcnt(0)
    v_writelane_b32 v3, s96, {n}
    v_writelane_b32 v3, s94, {16 + n}
    """)


def stamp_flush(a, kidx):
    a(f"""
    s_add_u32 s56, s{P_WS}, {WS_TS + kidx * 131072}
    s_addc_u32 s57, s{P_WS+1}, 0
    s_mov_b32 s58, 131072
    s_mov_b32 s59, 0x20000
    s_lshl_b32 s98, s2, 2
    s_add_u32 s98, s98, s{sW}
    s_lshl_b32 s98, s98, 7
    v_lshlrev_b32 v4, 2, v{vLANE}
    s_mov_b64 exec, 0xffffffff
    buffer_store_dword v3, v4, s[56:59], s98 offen
    """)


st = stamp if STAMP else None
kernels = []
for i, (nm, fn) in enumerate([("pa", lambda a, e: P.phase_a(a)), ("g1", lambda a, e: P.phase_g1(a, e, stamp=st)),
                              ("cv", lambda a, e: P.phase_conv(a, stamp=st)), ("g2", lambda a, e: P.phase_g2(a, stamp=st))]):
    a = Asm()
    a.uid = i * 1000
    ex = f"L_exit_{nm}"
    prologue(a, ex)
    if STAMP:
        stamp(a, 14)
    fn(a, ex)
    if STAMP:
        a("s_waitcnt vmcnt(0)")
        stamp(a, 15)
        stamp_flush(a, i)
    a(f"{ex}:\ns_endpgm")
    kernels.append((f"{nm}_kernel", a.text()))

t = "".join(f"; @launch kernel={n} grid=(256,1,1) block=(256,1,1) lds={LDS_BYTES}\n" for n, _ in kernels)
t += HEAD
for n, b in kernels:
    t += kernel_text(n, b)
t += '.section .rodata,"a"\n'
for n, b in kernels:
    t += descriptor(n, vgpr=512, accum=256)
open(out, "w").write(t)
```

```python
from asmlib import Asm


class Em(Asm):
    def __init__(self):
        super().__init__()
        self.nvm = 0
        self.nds = 0
        self.tags = {}
        self.tail = []

    def put(self, it):
        if it is None:
            return
        if isinstance(it, str):
            for ln in it.split("\n"):
                s = ln.strip()
                assert not s.startswith(("buffer_", "global_", "ds_")), s
            self(it)
        elif isinstance(it, list):
            for x in it:
                self.put(x)
        elif callable(it):
            it(self)
        elif it[0] == "vm":
            self(it[1])
            self.nvm += 1
            if it[2]:
                self.tags[it[2]] = ("vm", self.nvm)
        elif it[0] == "ds":
            self(it[1])
            self.nds += 1
            if it[2]:
                self.tags[it[2]] = ("ds", self.nds)
        elif it[0] == "wait":
            vm, ds = None, None
            for t in it[1]:
                if t == "allds":
                    ds = 0
                elif t == "allvm":
                    vm = 0
                else:
                    kind, n = self.tags[t]
                    if kind == "vm":
                        c = min(63, self.nvm - n)
                        vm = c if vm is None else min(vm, c)
                    else:
                        c = min(15, self.nds - n)
                        ds = c if ds is None else min(ds, c)
            s = "s_waitcnt"
            if vm is not None:
                s += f" vmcnt({vm})"
            if ds is not None:
                s += f" lgkmcnt({ds})"
            self(s)
        else:
            raise ValueError(it)

    def weave(self, anchors, fillers):
        for i, m in enumerate(anchors):
            self.put(m)
            if i < len(fillers):
                self.put(fillers[i])


def VM(text, tag=None):
    return ("vm", text, tag)


def DS(text, tag=None):
    return ("ds", text, tag)


def WAIT(*tags):
    return ("wait", list(tags))


def lines(s):
    return [x.strip() for x in s.strip().split("\n") if x.strip()]
```

```python
import sys
from common import (NAME, S, D, F, X_BYTES, W_BYTES, WS_H, WS_KV, WS_Y, WS_ST, WS_FL, WS_TS, LDS_BYTES, SLOT,
                    f2u, hx, vr, ar, spread, merge)
from asmlib import HEAD, kernel_text, descriptor
from emit import Em, VM, DS, WAIT, lines

OPT = dict(x[2:].split("=") if "=" in x else (x[2:], "1") for x in sys.argv if x.startswith("--"))
STAMP = "stamp" in OPT
KERNEL = NAME + "_kernel"
WS_BYTES = 16 << 20
SC = "sc1"

rX, rW, rWS, rWD, rSK, rOUT, rDBG, rV = 8, 12, 16, 20, 24, 28, 32, 36
pSD, pSH, pKV = 40, 42, 80
sXM, sWM, sXK, sWK, sHS = 44, 45, 46, 47, 48
sF1, sF2, sPH, sPY, sPK = 56, 57, 58, 59, 60
sDM, sDK = 61, 62
sUM, sHM, sKVO, sSKO, sYS = 63, 64, 65, 66, 67
sYD, sYM, sXO, sSO, sHL, sG1S, sMH, sSPIN = 68, 69, 70, 72, 74, 76, 77, 78
sRB, sFS, sT2, sCT = 84, 85, 86, 87
sXCD, sIDX, sW = 90, 91, 92
srd = lambda r: f"s[{r}:{r+3}]"

vLANE, vL16, vST = 1, 2, 3
vXD, vWD, vXA, vWA, vCS, vSEL, vMS, vGC = 8, 16, 20, 24, 28, 32, 36, 40
vCA, vG1S = 43, 47
vDD, vDA, vUA, vHA, vZU, vZH, vRW, vRR, vDT, vL8, vM0, vDV = 48, 52, 54, 55, 56, 57, 58, 59, 60, 61, 62, 63
vYD, vXO, vSO, vYG, vPW, vPR, vFH, vFY, vFK, vFD, vPOLL = 112, 113, 114, 115, 117, 121, 123, 124, 125, 126, 127
FR = [64, 88]
ACC1 = 128

US, HS = 4640, 4464
CH_LDS = 4 * US + HS + 4224 + 16
CONV_BASE = 2 * SLOT + 16
YB, YP = 155520, 1040
CSB = YB
WDW = 12288
KB, KVP = 0, 1040
VB = 65 * KVP
FL_H, FL_Y, FL_K = WS_FL, WS_FL + 4096, WS_FL + 8192

C1 = -2.0 * 0.7978845608028654 * 1.4426950408889634
C2 = C1 * 0.044715


def stamp(n):
    if not STAMP:
        return None
    return f"""
    s_memrealtime s[94:95]
    s_memtime s[96:97]
    s_waitcnt lgkmcnt(0)
    v_writelane_b32 v{vST}, s96, {n}
    v_writelane_b32 v{vST}, s94, {16 + n}
    """ + (f"v_writelane_b32 v{vST}, s100, 14\nv_writelane_b32 v{vST}, s98, 30" if n == 0 else "")


def poll(a, load, want):
    slow, back = a.label("slow"), a.label("back")
    a(f"v_cmp_ne_u32 vcc, {want}, v{vPOLL}\ns_cbranch_vccnz {slow}\n{back}:")
    a.tail.append(f"""
    {slow}:
    s_mov_b32 s{sSPIN}, 0x10000
    {slow}_l:
    {load}
    s_sub_u32 s{sSPIN}, s{sSPIN}, 1
    s_cmp_eq_u32 s{sSPIN}, 0
    s_waitcnt vmcnt(0)
    s_cbranch_scc1 {back}
    v_cmp_ne_u32 vcc, {want}, v{vPOLL}
    s_cbranch_vccnz {slow}_l
    s_branch {back}
    """)


LD_INIT = f"buffer_load_dword v{vPOLL}, v{vFD}, {srd(rDBG)}, 0 offen {SC}"
LD_KV = f"buffer_load_dword v{vPOLL}, v{vFK}, {srd(rWS)}, s{sPK} offen {SC}"
LD_H = f"buffer_load_dword v{vPOLL}, v{vFH}, {srd(rWS)}, s{sPH} offen {SC}"
LD_Y = f"buffer_load_dword v{vPOLL}, v{vFY}, {srd(rWS)}, s{sPY} offen {SC}"


def entry(a):
    if STAMP:
        a("s_memrealtime s[98:99]\ns_memtime s[100:101]")
    a(f"""
    s_load_dwordx2 s[{rX}:{rX+1}], s[0:1], 0
    s_load_dwordx4 s[36:39], s[0:1], 56
    s_load_dwordx2 s[{rWS}:{rWS+1}], s[0:1], 96
    s_load_dwordx4 s[{pKV}:{pKV+3}], s[0:1], 8
    s_getpc_b64 s[4:5]
    L_pc:
    s_cmp_ge_u32 s2, 256
    s_cbranch_scc1 L_exit
    s_lshr_b32 s{sIDX}, s2, 3
    v_lshrrev_b32 v4, 4, v0
    s_and_b32 s6, s{sIDX}, 15
    s_lshl_b32 s6, s6, 11
    v_lshl_add_u32 v4, v4, 7, s6
    v_min_u32 v4, L_end-L_pc-4, v4
    v_mov_b32 v5, s5
    v_add_co_u32 v4, vcc, s4, v4
    v_lshrrev_b32 v6, 6, v0
    v_and_b32 v{vLANE}, 63, v0
    v_addc_co_u32 v5, vcc, 0, v5, vcc
    """)
    if "nocodepf" not in OPT:
        a.put(VM(f"global_load_dword v{vPOLL}, v[4:5], off"))
    a(f"""
    v_readfirstlane_b32 s{sW}, v6
    s_load_dwordx2 s[{rWD}:{rWD+1}], s[0:1], 72
    s_load_dwordx2 s[{rSK}:{rSK+1}], s[0:1], 32
    s_load_dwordx2 s[{rOUT}:{rOUT+1}], s[0:1], 80
    s_load_dwordx2 s[{rDBG}:{rDBG+1}], s[0:1], 88
    s_load_dwordx2 s[{pSD}:{pSD+1}], s[0:1], 40
    s_load_dwordx2 s[{pSH}:{pSH+1}], s[0:1], 24
    s_and_b32 s{sXCD}, s2, 7
    v_lshlrev_b32 v{vL16}, 4, v{vLANE}
    s_mov_b32 s{rX+2}, {X_BYTES}
    s_mov_b32 s{rX+3}, 0x20000
    s_mov_b32 s{rW+3}, 0x20000
    s_and_b32 s4, s{sXCD}, 1
    s_lshr_b32 s5, s{sXCD}, 1
    s_lshl_b32 s{sRB}, s4, 2
    s_add_u32 s{sT2}, s{sRB}, s5
    s_lshl_b32 s6, s{sT2}, 5
    s_add_u32 s6, s6, s{sIDX}
    s_lshl_b32 s6, s6, 2
    s_add_u32 s6, s6, s{sW}
    s_lshl_b32 s79, s6, 11
    v_lshrrev_b32 v4, 5, v{vLANE}
    v_and_b32 v5, 31, v{vLANE}
    v_lshlrev_b32 v96, 10, v4
    v_lshl_add_u32 v96, v5, 4, v96
    v_lshrrev_b32 v6, 3, v{vLANE}
    v_and_b32 v7, 7, v{vLANE}
    """)
    if STAMP:
        a(f"v_mov_b32 v{vST}, 0")


def stats_loads():
    return [VM(f"buffer_load_dwordx4 v[64:67], v96, {srd(rX)}, s79 offen"),
            VM(f"buffer_load_dwordx4 v[68:71], v96, {srd(rX)}, s79 offen offset:512", "stats_ld")]


def reduce32(v, t):
    r = []
    for ctl in ("quad_perm:[1,0,3,2]", "quad_perm:[2,3,0,1]", "row_half_mirror", "row_mirror"):
        r += ["s_nop 1", f"v_add_f32_dpp v{v}, v{v}, v{v} {ctl} row_mask:0xf bank_mask:0xf"]
    return r + [f"v_mov_b32 v{t}, v{v}", "s_nop 1", f"v_permlane16_swap_b32 v{t}, v{v}", "s_nop 0",
                f"v_add_f32 v{v}, v{t}, v{v}"]


def rnd(v):
    return [f"v_cvt_pk_bf16_f32 v{v}, v{v}, v{v}", f"v_and_b32 v{v}, 0xffff0000, v{v}"]


def stats_compute():
    r = [WAIT("stats_ld")]
    for j in range(8):
        r += [f"v_lshlrev_b32 v{72+2*j}, 16, v{64+j}", f"v_and_b32 v{73+2*j}, 0xffff0000, v{64+j}"]
    r.append("v_pk_add_f32 v[88:89], v[72:73], v[74:75]")
    r += [f"v_pk_add_f32 v[88:89], v[88:89], v[{72+2*j}:{73+2*j}]" for j in range(2, 8)]
    r += ["v_add_f32 v88, v88, v89"] + reduce32(88, 89) + [f"v_mul_f32 v88, {hx(f2u(1.0/512))}, v88"]
    r += [f"v_pk_add_f32 v[{72+2*j}:{73+2*j}], v[{72+2*j}:{73+2*j}], v[88:89] op_sel_hi:[1,0] neg_lo:[0,1] neg_hi:[0,1]"
          for j in range(8)]
    r.append("v_pk_mul_f32 v[90:91], v[72:73], v[72:73]")
    r += [f"v_pk_fma_f32 v[90:91], v[{72+2*j}:{73+2*j}], v[{72+2*j}:{73+2*j}], v[90:91]" for j in range(1, 8)]
    r += ["v_add_f32 v89, v90, v91"] + reduce32(89, 90) + [f"v_mul_f32 v89, {hx(f2u(1.0/512))}, v89"]
    r += rnd(88) + rnd(89) + [f"v_add_f32 v89, {hx(f2u(1e-5))}, v89"] + rnd(89) + ["v_sqrt_f32 v89, v89"]
    r += lines(f"""
    v_cmp_eq_u32 vcc, 0, v5
    s_lshr_b32 s79, s79, 7
    s_add_u32 s79, s79, {WS_ST}
    v_lshlrev_b32 v90, 3, v4
    v_cndmask_b32 v90, -1, v90, vcc
    v_mov_b32 v91, 0
    """) + rnd(89)
    r += [VM(f"buffer_store_dwordx2 v[88:89], v90, {srd(rWS)}, s79 offen {SC}"),
          VM(f"buffer_store_dword v91, v{vM0}, {srd(rWS)}, s{sF1} offen {SC}"),
          VM(f"buffer_store_dword v91, v{vM0}, {srd(rWS)}, s{sF2} offen {SC}", "init_st")]
    return r


def init_signal():
    return lines(f"""
    s_and_b32 s4, s2, 1
    s_lshl_b32 s4, s4, 7
    s_cmp_eq_u32 s{sW}, 0
    s_cselect_b32 s4, s4, 0x1000
    v_mov_b32 v4, 1
    v_add_u32 v5, s4, v{vM0}
    """) + [VM(f"buffer_atomic_add v4, v5, {srd(rDBG)}, 0 offen {SC}")]


def setup_common():
    r = []
    for q, n in ((rWS, WS_BYTES), (rWD, W_BYTES), (rSK, X_BYTES), (rOUT, X_BYTES), (rDBG, 256)):
        r += [f"s_mov_b32 s{q+2}, {n}", f"s_mov_b32 s{q+3}, 0x20000"]
    r += lines(f"""
    v_cmp_eq_u32 vcc, 0, v{vLANE}
    s_lshl_b32 s{sT2}, s{sT2}, 2
    s_lshr_b32 s4, s{sIDX}, 3
    v_bfrev_b32 v{vM0}, 1
    v_cndmask_b32 v{vM0}, v{vM0}, 0, vcc
    s_add_u32 s{sT2}, s{sT2}, s4
    s_and_b32 s{sCT}, s{sIDX}, 7
    s_lshl_b32 s5, s{sXCD}, 2
    s_add_u32 s4, s4, s5
    s_lshl_b32 s4, s4, 7
    s_add_u32 s{sPK}, s4, {FL_K}
    s_lshr_b32 s4, s{sW}, 1
    s_and_b32 s{sMH}, s{sW}, 1
    s_lshl_b32 s5, s{sXCD}, 5
    s_add_u32 s5, s5, s{sIDX}
    s_lshl_b32 s5, s5, 1
    s_add_u32 s5, s5, s4
    s_lshl_b32 s6, s{sMH}, 9
    s_add_u32 s6, s6, s5
    s_lshl_b32 s6, s6, 2
    s_add_u32 s{sF2}, s6, {FL_Y}
    s_lshl_b32 s{sSKO}, s5, 12
    s_lshl_b32 s6, s{sMH}, 11
    s_add_u32 s{sYS}, s{sSKO}, s6
    s_lshl_b32 s{sKVO}, s{sYS}, 1
    s_add_u32 s{sKVO}, s{sKVO}, {WS_KV}
    s_add_u32 s{sYS}, s{sYS}, {WS_Y}
    s_lshl_b32 s5, s5, 1
    v_mov_b32 v97, s5
    s_mul_i32 s4, s4, {CH_LDS}
    s_add_u32 s4, s4, {CONV_BASE}
    s_mul_i32 s5, s{sMH}, {US}
    s_sub_u32 s{sUM}, s4, s5
    s_mul_i32 s5, s{sMH}, {HS + 8}
    s_add_u32 s{sHM}, s4, s5
    s_add_u32 s{sHM}, s{sHM}, {4*US}
    v_lshl_add_u32 v{vZU}, v{vLANE}, 2, s{sUM}
    v_min_u32 v{vZH}, 29, v{vLANE}
    v_lshl_add_u32 v{vZH}, v{vZH}, 2, s{sHM}
    v_lshlrev_b32 v{vL8}, 3, v{vLANE}
    s_sub_u32 s5, s4, s6
    s_add_u32 s5, s5, {3*US + 4088 - 3*512}
    v_sub_u32 v{vDT}, s5, v{vL8}
    s_lshl_b32 s5, s{sMH}, 8
    s_add_u32 s4, s4, s5
    v_lshrrev_b32 v98, 4, v{vLANE}
    v_and_b32 v{vFK}, 3, v{vLANE}
    v_bfe_u32 v99, v{vLANE}, 2, 2
    v_mul_u32_u24 v{vUA}, {US}, v{vFK}
    v_lshlrev_b32 v100, 7, v99
    v_sub_u32 v{vUA}, v{vUA}, v100
    v_lshl_add_u32 v{vUA}, v98, 4, v{vUA}
    s_add_u32 s5, s4, {248*16 - 7*512}
    v_add_u32 v{vUA}, s5, v{vUA}
    v_and_b32 v{vFD}, 1, v{vLANE}
    v_mul_u32_u24 v{vHA}, {HS + 16}, v{vFD}
    v_bfe_u32 v101, v{vLANE}, 1, 3
    v_add_u32 v101, v101, v98
    v_lshl_add_u32 v{vHA}, v101, 4, v{vHA}
    s_add_u32 s5, s4, {4*US}
    v_add_u32 v{vHA}, s5, v{vHA}
    v_lshlrev_b32 v{vFD}, 7, v{vFD}
    s_mul_i32 s{sDM}, s{sW}, {WDW}
    s_add_u32 s5, s{sDM}, 8192
    v_add_u32 v{vRW}, s5, v{vL16}
    s_xor_b32 s5, s{sW}, 1
    s_mul_i32 s5, s5, {WDW}
    s_add_u32 s5, s5, 8192
    v_add_u32 v{vRR}, s5, v{vL16}
    v_and_b32 v101, 1, v98
    v_lshlrev_b32 v102, 2, v101
    v_xor_b32 v102, v7, v102
    v_lshlrev_b32 v102, 4, v102
    v_lshl_add_u32 v{vDD}, v6, 10, v102
    v_add_u32 v{vDD+1}, {8192-1024}, v{vDD}
    v_add_u32 v{vDD+2}, {2*(8192-1024)}, v{vDD}
    v_add_u32 v{vDD+3}, {3*(8192-1024)}, v{vDD}
    s_mul_i32 s{sDK}, s{sW}, {448*1024}
    s_lshl_b32 s5, s{sCT}, 7
    s_add_u32 s{sDK}, s{sDK}, s5
    v_lshl_add_u32 v{vDA}, v4, 9, v100
    v_lshl_add_u32 v{vDA}, v101, 5, v{vDA}
    v_lshl_add_u32 v{vDA}, v{vFK}, 3, v{vDA}
    v_and_b32 v102, 1, v6
    v_lshl_add_u32 v{vDA}, v102, 6, v{vDA}
    v_add_u32 v{vDA}, s{sDM}, v{vDA}
    v_xor_b32 v{vDA+1}, 64, v{vDA}
    v_lshlrev_b32 v{vFK}, 2, v{vFK}
    s_and_b32 s6, s{sCT}, 1
    s_lshl_b32 s7, s{sT2}, 1
    s_add_u32 s7, s7, s6
    s_lshl_b32 s{sXO}, s7, 15
    s_add_u32 s{sXO}, s{sXO}, s5
    s_xor_b32 s{sXO+1}, s{sXO}, 0x8000
    s_lshl_b32 s{sSO}, s7, 8
    s_add_u32 s{sSO}, s{sSO}, {WS_ST}
    s_xor_b32 s{sSO+1}, s{sSO}, 0x100
    s_mul_i32 s4, s{sW}, {28*1024}
    s_mul_i32 s{sHL}, s7, {112*1024}
    s_add_u32 s{sHL}, s{sHL}, s4
    s_xor_b32 s7, s7, 1
    s_mul_i32 s{sHL+1}, s7, {112*1024}
    s_add_u32 s{sHL+1}, s{sHL+1}, s4
    s_lshl_b32 s4, s{sW}, 3
    v_add_u32 v102, s4, v6
    v_lshlrev_b32 v{vSO}, 3, v102
    v_lshlrev_b32 v103, 4, v7
    v_lshl_add_u32 v{vXO}, v102, 10, v103
    v_lshl_add_u32 v{vYD}, v6, 12, v103
    s_lshl_b32 s4, s{sCT}, 2
    s_add_u32 s4, s4, s{sW}
    s_lshl_b32 s{sYD}, s4, 16
    s_lshl_b32 s7, s{sT2}, 7
    s_add_u32 s{sYD}, s{sYD}, s7
    s_add_u32 s{sYD}, s{sYD}, {WS_Y}
    s_mul_i32 s{sPH}, s{sW}, 28
    s_add_u32 s{sPH}, s{sPH}, s7
    s_add_u32 s{sPH}, s{sPH}, {FL_H}
    s_lshl_b32 s4, s4, 6
    s_lshr_b32 s7, s{sT2}, 4
    s_lshl_b32 s7, s7, 11
    s_add_u32 s4, s4, s7
    s_add_u32 s{sPY}, s4, {FL_Y}
    s_mul_i32 s{sYM}, s{sW}, {2*YP}
    s_add_u32 s{sYM}, s{sYM}, {YB}
    v_mul_u32_u24 v103, {YP}, v7
    v_lshl_add_u32 v103, v102, 1, v103
    s_lshl_b32 s6, s6, 6
    s_add_u32 s4, s6, {YB}
    v_add_u32 v{vYG}, s4, v103
    s_sub_u32 s4, {YB + 64}, s6
    v_add_u32 v{vYG+1}, s4, v103
    v_xor_b32 v103, v4, v7
    v_lshlrev_b32 v103, 4, v103
    v_lshl_add_u32 v103, v5, 8, v103
    v_add_u32 v{vPW}, s{sDM}, v103
    v_xor_b32 v{vPW+1}, 32, v{vPW}
    v_xor_b32 v{vPW+2}, 64, v{vPW}
    v_xor_b32 v{vPW+3}, 96, v{vPW}
    v_lshlrev_b32 v103, 1, v7
    v_xor_b32 v103, v103, v6
    v_lshlrev_b32 v103, 4, v103
    v_lshl_add_u32 v{vPR}, v102, 8, v103
    v_xor_b32 v{vPR+1}, 16, v{vPR}
    v_min_u32 v{vFH}, 6, v{vLANE}
    v_lshlrev_b32 v{vFH}, 2, v{vFH}
    v_and_b32 v{vFY}, 15, v{vLANE}
    v_lshlrev_b32 v{vFY}, 2, v{vFY}
    """)
    r.append(VM(f"global_load_short_d16_hi v{vDV}, v97, s[{pSD}:{pSD+1}]"))
    return r


WD_SLOT = {0: 0, 1: 1, 2: 2, 3: 3, 4: 4, 5: 5, 6: 0, 7: 1, 8: 2, 9: 3, 10: 4, 11: 5, 12: 0, 13: 1}


def wd_off(g):
    s = WD_SLOT[g]
    return (s // 3) * SLOT + (s % 3) * 4096


def wd_dma(g):
    r = []
    for j in range(4):
        it = [VM(f"buffer_load_dwordx4 v{vDD+j}, {srd(rWD)}, s{sDK} offen offset:{j*1024} lds", f"wd{g}" if j == 3 else None)]
        if j == 0:
            it = [f"s_add_u32 m0, s{sDM}, {wd_off(g)}", "s_nop 0"] + it
        if j == 3:
            it.append(f"s_add_u32 s{sDK}, s{sDK}, 32768")
        r.append(it)
    return r


def wd_reads(g):
    r = []
    for k in range(2):
        for u in range(2):
            for e in range(2):
                last = k == 1 and u == 1 and e == 1
                r.append(DS(f"ds_read_b64_tr_b16 {ar((2*g+k)*8 + u*4 + 2*e, 2)}, v{vDA+u} offset:{wd_off(g) + k*2048 + e*1024}",
                            f"wr{g}" if last else None))
    return r


def conv_dma():
    r = []
    for m0, rs, so, sc in ((f"s{sUM}, {3*US}", rWS, sKVO, SC), (f"s{sUM}, {US-4}", rWS, sKVO, SC), (f"s{sHM}, 120", rSK, sSKO, "")):
        for j in range(4):
            it = [VM(f"buffer_load_dwordx4 v{vL16}, {srd(rs)}, s{so} offen offset:{j*1024} {sc} lds", "cv_dma")]
            if j == 0:
                it = [f"s_add_u32 m0, {m0}", "s_nop 0"] + it
            r.append(it)
    return r


def conv_zero(z):
    return [DS(f"ds_write2st64_b32 v{vZU}, v{z}, v{z} offset0:0 offset1:1".replace(f"v{vZU}", "v4")),
            DS(f"ds_write2st64_b32 v5, v{z}, v{z} offset0:0 offset1:1"),
            DS(f"ds_write_b32 v{vZH}, v{z}", "cv_zero")]


def conv_zero_addr():
    return [f"v_add_u32 v4, {3*US + 4096}, v{vZU}", f"v_add_u32 v5, {US + 4092}, v{vZU}"]


CUF = [("v", 128), ("a", 160)]
CHF = [("v", 160), ("a", 192)]
CACC = 64
rg = lambda kb, o, n: (vr if kb[0] == "v" else ar)(kb[1] + o, n)


def conv_reads(m):
    p, r = m & 1, []
    for j in range(8):
        r.append(DS(f"ds_read_b128 {rg(CUF[p], 4*j, 4)}, v{vUA} offset:{64*m + 512*(7-j)}"))
        r.append(DS(f"ds_read_b128 {rg(CHF[p], 4*j, 4)}, v{vHA} offset:{64*m + 512*j}", f"cf{m}"))
    return r


def g1_dma_setup():
    r = lines(f"""
    s_and_b32 s6, s{sIDX}, 3
    s_add_u32 s{sRB}, s{sRB}, s6
    s_mul_i32 s{sFS}, s5, 7
    s_lshr_b32 s6, s{sIDX}, 2
    s_add_u32 s{sFS}, s{sFS}, s6
    v_lshrrev_b32 v98, 4, v{vLANE}
    s_lshr_b32 s4, s{sW}, 1
    s_and_b32 s6, s{sW}, 1
    v_and_b32 v99, 1, v98
    s_lshl_b32 s7, s4, 2
    v_lshl_or_b32 v99, v99, 1, s7
    v_xor_b32 v99, v7, v99
    v_mul_u32_u24 v100, {F*2}, v6
    v_lshl_add_u32 v99, v99, 4, v100
    s_mul_i32 s6, s6, {32*F*2}
    s_lshl_b32 s7, s{sFS}, 7
    s_add_u32 s6, s6, s7
    v_add_u32 v{vWD}, s6, v99
    v_add_u32 v{vWD+1}, {8*F*2 - 1024}, v{vWD}
    v_add_u32 v{vWD+2}, {2*(8*F*2 - 1024)}, v{vWD}
    v_add_u32 v{vWD+3}, {3*(8*F*2 - 1024)}, v{vWD}
    s_lshl_b32 s{sG1S}, s{sRB}, 2
    s_add_u32 s{sG1S}, s{sG1S}, s{sW}
    s_lshl_b32 s7, s{sG1S}, 16
    v_xor_b32 v99, v7, v98
    v_lshlrev_b32 v99, 4, v99
    v_lshl_add_u32 v99, v6, 10, v99
    v_add_u32 v{vXD}, s7, v99
    v_xor_b32 v99, 64, v{vXD}
    """)
    for j in range(1, 8):
        r.append(f"v_add_u32 v{vXD+j}, {j*8192 - (j%4)*1024}, v{99 if j & 1 else vXD}")
    rot = f"s_lshl_b32 s{sXK}, s{sRB}, 7" if "norot" not in OPT else f"s_mov_b32 s{sXK}, 0"
    r += lines(f"""
    s_lshl_b32 s{sXM}, s{sW}, 13
    s_add_u32 s{sXM}, s{sXM}, {SLOT}
    s_lshl_b32 s{sWM}, s{sW}, 12
    s_add_u32 s{sWM}, s{sWM}, {SLOT + 32768}
    {rot}
    s_mul_i32 s{sWK}, s{sXK}, {F}
    s_mov_b32 s{rW+2}, {W_BYTES}
    s_cmp_eq_u32 s4, 0
    s_waitcnt lgkmcnt(0)
    s_cselect_b32 s{rW}, s36, s38
    s_cselect_b32 s{rW+1}, s37, s39
    """)
    return r


def g1_setup():
    r = lines(f"""
    v_bfe_u32 v98, v{vLANE}, 1, 3
    v_xor_b32 v98, v4, v98
    v_lshlrev_b32 v98, 4, v98
    v_lshl_add_u32 v98, v5, 7, v98
    s_lshl_b32 s4, s{sW}, 13
    s_add_u32 s4, s4, {SLOT}
    v_add_u32 v{vXA}, s4, v98
    v_xor_b32 v{vXA+1}, 32, v{vXA}
    v_xor_b32 v{vXA+2}, 64, v{vXA}
    v_xor_b32 v{vXA+3}, 96, v{vXA}
    v_bfe_u32 v98, v{vLANE}, 4, 1
    v_and_b32 v99, 3, v6
    v_lshlrev_b32 v98, 13, v98
    v_lshl_add_u32 v98, v4, 10, v98
    v_bfe_u32 v100, v{vLANE}, 2, 2
    v_lshl_add_u32 v98, v100, 7, v98
    v_and_b32 v101, 3, v{vLANE}
    v_lshl_add_u32 v98, v101, 3, v98
    v_add_u32 v98, {SLOT + 32768}, v98
    s_lshl_b32 s4, s{sG1S}, 7
    s_lshl_b32 s5, s{sFS}, 2
    s_add_u32 s{sF1}, s4, s5
    s_add_u32 s{sF1}, s{sF1}, {FL_H}
    s_mul_i32 s4, s{sG1S}, 224
    s_add_u32 s4, s4, s5
    """)
    for t in range(4):
        r += lines(f"""
        s_add_u32 s5, s{sW}, {t}
        s_and_b32 s5, s5, 3
        v_xor_b32 v101, s5, v99
        v_lshl_add_u32 v{vWA+t}, v101, 5, v98
        s_add_u32 s5, s5, s4
        s_lshl_b32 s{sHS+t}, s5, 10
        s_add_u32 s{sHS+4+t}, s{sHS+t}, {112*1024}
        """)
    r += lines(f"""
    v_lshrrev_b32 v101, 4, v{vLANE}
    v_cmp_eq_u32 vcc, v100, v101
    s_lshl_b32 s{sG1S}, s{sG1S}, 9
    s_add_u32 s{sG1S}, s{sG1S}, {WS_ST}
    v_mov_b32 v{vSEL}, 0x3f803f80
    v_cndmask_b32 v{vSEL}, 0, v{vSEL}, vcc
    v_mov_b32 v{vSEL+1}, v{vSEL}
    v_mov_b32 v{vSEL+2}, v{vSEL}
    v_mov_b32 v{vSEL+3}, v{vSEL}
    v_lshlrev_b32 v{vG1S}, 3, v5
    s_lshl_b32 s4, s{sW}, 8
    s_add_u32 s4, s4, {CSB}
    v_lshl_add_u32 v{vCA}, v{vLANE}, 2, s4
    """)
    return r


def g1_reads(p, ks):
    r = [DS(f"ds_read_b128 {vr(FR[p], 4)}, v{vXA+ks}")]
    for t in range(4):
        for e in range(2):
            r.append(DS(f"ds_read_b64_tr_b16 {vr(FR[p]+8+4*t+2*e, 2)}, v{vWA+t} offset:{ks*2048+e*512}"))
    r.append(DS(f"ds_read_b128 {vr(FR[p]+4, 4)}, v{vXA+ks} offset:4096", "g1f"))
    return r


def g1_mfmas(p, first=False):
    m = []
    for rt in range(2):
        for t in range(4):
            acc = vr(ACC1 + (rt * 4 + t) * 16, 16)
            m.append(f"v_mfma_f32_32x32x16_bf16 {acc}, {vr(FR[p]+8+4*t, 4)}, {vr(FR[p]+4*rt, 4)}, {'0' if first else acc}")
    return m


def g1_dmas(st):
    d = []
    for j in range(4):
        pre = [f"s_mov_b32 m0, s{sWM}", "s_nop 0"] if j == 0 else []
        d.append(pre + [VM(f"buffer_load_dwordx4 v{vWD+j}, {srd(rW)}, s{sWK} offen offset:{j*1024} lds")])
    for j in range(8):
        pre = [f"s_add_u32 m0, s{sXM}, {j*1024}", "s_nop 0"] if j % 4 == 0 else []
        d.append(pre + [VM(f"buffer_load_dwordx4 v{vXD+j}, {srd(rX)}, s{sXK} offen offset:{(j%4)*1024} lds", f"st{st}")])
    if st < 7:
        delta = SLOT if (st + 2) % 3 else -2 * SLOT
        d[-1] += [f"s_add_u32 s{sXK}, s{sXK}, 128", f"s_and_b32 s{sXK}, s{sXK}, 1023", f"s_mul_i32 s{sWK}, s{sXK}, {F}",
                  f"s_add_u32 s{sXM}, s{sXM}, {hx(delta)}", f"s_add_u32 s{sWM}, s{sWM}, {hx(delta)}"]
    return d


def gemm_role(a):
    a.put(g1_dma_setup())
    a.put(stamp(0))
    a.put(stats_loads())
    a.put(g1_dmas(0))
    a.put(stamp(1))
    a.put(g1_setup())
    a.put(setup_common())
    a.put(stats_compute())
    a.put(g1_dmas(1))
    a.put([WAIT("st0"), "s_barrier", stamp(2)])
    a.put(g1_reads(0, 0))
    for st in range(8):
        if st < 6:
            dm = g1_dmas(st + 2)
        else:
            dm = sum((wd_dma(3 * (st - 6) + j) for j in range(3)), [])
        for ks in range(4):
            p = ks & 1
            side = [[] for _ in range(8)]
            nxt = []
            if ks < 3:
                a.put(WAIT("g1f"))
                nxt = g1_reads(p ^ 1, ks + 1)
            elif st < 7:
                a.put([WAIT(f"st{st+1}", "allds"), "s_barrier"])
                delta = SLOT if (st + 2) % 3 else -2 * SLOT
                nxt = [f"v_add_u32 v{vXA}, {hx(delta)}, v{vXA}"] + [f"v_add_u32 v{vWA+t}, {hx(delta)}, v{vWA+t}" for t in range(4)]
                nxt += g1_reads(p ^ 1, 0) + [f"v_add_u32 v{vXA+k}, {hx(delta)}, v{vXA+k}" for k in range(1, 4)]
            else:
                a.put(WAIT("g1f"))
            if st == 1 and ks == 0:
                side = spread(init_signal(), 8, 0, 4)
            if st == 5 and ks == 0:
                side[0] = [VM(LD_INIT, "p_init")]
            if st == 6 and ks == 0:
                side[0] = [WAIT("p_init"), lambda e: poll(e, LD_INIT, "0x80")]
                side[1] = [VM(f"buffer_load_dwordx2 {vr(vMS,2)}, v{vG1S}, {srd(rWS)}, s{sG1S} offen {SC}")]
                side[2] = [VM(f"buffer_load_dwordx2 {vr(vMS+2,2)}, v{vG1S}, {srd(rWS)}, s{sG1S} offen offset:256 {SC}", "g1st")]
            if st == 7 and ks == 0:
                side[0] = [VM(LD_KV, "p_kv")]
                c = [WAIT("g1st")]
                for rt in range(2):
                    den, c1 = vMS + 2 * rt + 1, vGC + 4 * rt
                    c += lines(f"""
                    v_rcp_f32 v{c1}, v{den}
                    v_mul_f32 v{c1+2}, v{den}, v{den}
                    v_mul_f32 v{c1+1}, v{c1}, v{c1}
                    v_mul_f32 v{c1+1}, v{c1+1}, v{c1}
                    v_mul_f32 v{c1}, {hx(f2u(C1))}, v{c1}
                    v_mul_f32 v{c1+1}, {hx(f2u(C2))}, v{c1+1}
                    """)
                side = merge(side, spread(c, 8, 1, 8))
            if st == 7 and ks in (1, 2):
                side = spread([WAIT(f"wd{ks-1}")] + wd_reads(ks - 1), 8, 4, 8)
            if st == 7 and ks == 3:
                z = [f"v_mov_b32 v{FR[0]+j}, 0" for j in range(24) if j % 4]
                z += [f"v_cvt_pk_bf16_f32 v{FR[0]+4*rt}, -v{vMS+2*rt}, -v{vMS+2*rt}" for rt in range(2)]
                cs = lines(f"""
                v_cvt_pk_bf16_f32 v6, v{vCS}, v{vCS}
                v_and_b32 v6, 0xffff0000, v6
                v_sub_f32 v6, v{vCS}, v6
                v_cvt_pk_bf16_f32 v{FR[0]+8}, v{vCS}, v6
                """) + [DS(f"ds_write2st64_b32 v{vCA}, v{FR[0]+8}, v{FR[0]+8} offset0:0 offset1:4")]
                side = merge(spread(z, 8, 0, 5), spread(cs, 8, 3, 5), spread([WAIT("wd2")] + wd_reads(2), 8, 5, 8))
            cs_m = f"v_mfma_f32_16x16x32_bf16 {vr(vCS,4)}, {vr(vSEL,4)}, {vr(FR[p]+8,4)}, {'0' if st == 0 and ks == 0 else vr(vCS,4)}"
            a.put(cs_m)
            dd = [[] for _ in range(8)]
            for j in range(3):
                dd[5 + j] = dm[ks * 3 + j]
            a.weave(g1_mfmas(p, first=(st == 0 and ks == 0)), merge(spread(nxt, 8, 0, 5) if nxt else [[]], side, dd))
    a.put([stamp(3), WAIT("allds"), "s_barrier"])
    a.put([DS(f"ds_read_b32 v{FR[0]+8+4*t}, v{vCA} offset:{256*t}", "csr") for t in range(1, 4)])
    a.put([WAIT("p_kv"), lambda e: poll(e, LD_KV, "1")])
    cd = conv_dma()
    a.put(conv_zero_addr() + cd[0] + [WAIT("csr")])
    a.weave(g1_mfmas(0), [conv_zero(FR[0] + 1), cd[1], cd[2], cd[3], cd[4], cd[5], cd[6], cd[7]])
    a.put(stamp(4))
    extra = [cd[8:12], wd_dma(6), wd_dma(7), wd_dma(8)]
    for n in range(8):
        rt, t = n >> 2, n & 3
        c1, acc, T = vGC + 4 * rt, ACC1 + n * 16, 88 + 12 * (t & 1)
        ex = extra[(n + 1) // 2] if OPT.get("gx", "0") == "1" and n % 2 == (n > 0) and (n + 1) // 2 < 4 else None
        if OPT.get("gx", "0") == "0":
            ex = extra[n] if n < 4 else None
        ex = ex or [[], [], [], []]
        E = range(0, 8, 2)
        a.put([f"v_pk_mul_f32 {vr(T+j,2)}, {vr(acc+j,2)}, {vr(acc+j,2)}" for j in E])
        a.put([f"v_pk_fma_f32 {vr(T+j,2)}, {vr(T+j,2)}, {vr(c1,2)}, {vr(c1,2)} op_sel:[0,1,0] op_sel_hi:[1,1,0]" for j in E])
        a.put([f"v_pk_mul_f32 {vr(T+j,2)}, {vr(T+j,2)}, {vr(acc+j,2)}" for j in E] + ex[0])
        a.put([f"v_exp_f32 v{T+j}, v{T+j}" for j in range(8)] + ex[1])
        a.put([f"v_pk_mul_f32 {vr(acc+j,2)}, {vr(acc+j,2)}, {vr(acc+8+j,2)}" for j in E])
        a.put([f"v_pk_fma_f32 {vr(T+j,2)}, {vr(T+j,2)}, {vr(c1+2,2)}, {vr(c1+2,2)} op_sel_hi:[1,0,0]" for j in E] + ex[2])
        a.put([f"v_rcp_f32 v{T+j}, v{T+j}" for j in range(8)] + ex[3])
        a.put([f"v_pk_mul_f32 {vr(acc+j,2)}, {vr(acc+j,2)}, {vr(T+j,2)}" for j in E])
        a.put([f"v_cvt_pk_bf16_f32 v{acc+8+j}, v{acc+2*j}, v{acc+2*j+1}" for j in range(4)])
        a.put(VM(f"buffer_store_dwordx4 {vr(acc+8,4)}, v{vL16}, {srd(rWS)}, s{sHS+n} offen {SC}", "h_st"))
        if n == 6:
            a.put([WAIT("cv_dma", "cv_zero"), "s_barrier"] + conv_reads(0))
    a.put(stamp(5))


def service_role(a):
    a.put(lines(f"""
    s_sub_u32 s{sFS}, s{sIDX}, 28
    s_lshl_b32 s6, s{sFS}, 19
    s_lshl_b32 s7, s{sXCD}, 7
    s_add_u32 s6, s6, s7
    v_lshlrev_b32 v8, 10, v6
    v_lshl_add_u32 v8, v7, 4, v8
    v_add_u32 v8, s6, v8
    v_subrev_u32 v10, 8192, v8
    s_lshl_b32 s6, s{sW}, 14
    v_add_u32 v8, s6, v8
    v_add_u32 v9, {8192 - KVP}, v8
    s_mul_i32 s{sXM}, s{sW}, {2*KVP}
    s_add_u32 s{sXM}, s{sXM}, {KB + KVP}
    s_mov_b32 s{sXK}, 0
    s_mov_b32 s{rW+2}, {X_BYTES}
    s_waitcnt lgkmcnt(0)
    s_mov_b32 s{rW}, s{pKV}
    s_mov_b32 s{rW+1}, s{pKV+1}
    s_mov_b32 s{rV}, s{pKV+2}
    s_mov_b32 s{rV+1}, s{pKV+3}
    s_mov_b32 s{rV+2}, {X_BYTES}
    s_mov_b32 s{rV+3}, 0x20000
    """))
    a.put(stamp(0))
    a.put(stats_loads())

    def tile_dma(tag):
        return [f"s_mov_b32 m0, s{sXM}", "s_nop 0",
                VM(f"buffer_load_dwordx4 v8, {srd(rW)}, s{sXK} offen nt lds"),
                VM(f"buffer_load_dwordx4 v9, {srd(rW)}, s{sXK} offen offset:{KVP} nt lds"),
                f"s_add_u32 m0, s{sXM}, {VB - KB}", f"s_add_u32 s{sXM}, s{sXM}, {8*KVP}",
                VM(f"buffer_load_dwordx4 v8, {srd(rV)}, s{sXK} offen nt lds"),
                VM(f"buffer_load_dwordx4 v9, {srd(rV)}, s{sXK} offen offset:{KVP} nt lds", tag),
                f"s_add_u32 s{sXK}, s{sXK}, 65536"]

    a.put([f"s_mov_b32 m0, {KB}", "s_nop 0", VM(f"buffer_load_dwordx4 v10, {srd(rW)}, 0 offen lds"),
           f"s_mov_b32 m0, {VB}", "s_nop 0", VM(f"buffer_load_dwordx4 v10, {srd(rV)}, 0 offen lds")])
    a.put(lines(f"""
    s_lshl_b32 s4, s{sW}, 3
    v_add_u32 v11, s4, v6
    s_lshl_b32 s4, s{sXCD}, 9
    v_lshl_add_u32 v12, v11, 4, s4
    """) + [VM(f"global_load_dwordx4 v[16:19], v12, s[{pSH}:{pSH+1}]", "taps")])
    a.put(tile_dma("kv0") + tile_dma("kv1"))
    a.put(lines(f"""
    v_sub_u32 v12, 7, v7
    v_mul_u32_u24 v13, {KVP}, v12
    v_lshl_add_u32 v13, v11, 2, v13
    v_add_u32 v14, {VB}, v13
    v_lshlrev_b32 v15, 14, v11
    v_lshl_add_u32 v15, v7, 4, v15
    s_lshl_b32 s4, s{sXCD}, 19
    s_lshl_b32 s5, s{sFS}, 10
    s_sub_u32 s4, s4, s5
    s_add_u32 s{sHS}, s4, {WS_KV + 4096 - 128}
    s_lshl_b32 s4, s{sXCD}, 2
    s_add_u32 s4, s4, s{sW}
    s_lshl_b32 s4, s4, 7
    s_lshl_b32 s5, s{sFS}, 2
    s_add_u32 s4, s4, s5
    s_add_u32 s{sF1}, s4, {FL_K}
    """))
    a.put(setup_common())
    a.put(stats_compute())
    r = [WAIT("taps")]
    for t in range(4):
        for ch in range(2):
            src = 16 + 2 * ch + (t >> 1)
            r.append(f"v_and_b32 v{20+2*t+ch}, 0xffff0000, v{src}" if t & 1 else f"v_lshlrev_b32 v{20+2*t+ch}, 16, v{src}")
    a.put(r)
    a.put([WAIT("allvm"), "s_barrier"] + init_signal() + [stamp(2)])
    a(f"s_mov_b32 s{sWK}, 0")
    a("L_kv_loop:")
    a(f"s_cmp_ge_u32 s{sWK}, 6\ns_cbranch_scc1 L_kv_nodma")
    a.put(tile_dma(None))
    a("s_waitcnt vmcnt(16)\ns_branch L_kv_go\nL_kv_nodma:\ns_waitcnt vmcnt(8)\nL_kv_go:\ns_barrier")
    for jj in range(12):
        rho = 4 + jj
        a.put(DS(f"ds_read_b32 v{64+jj}, v13 offset:{KB + (rho >> 3) * KVP + (rho & 7) * 128}", f"k{jj}"))
    for jj in range(9):
        rho = 7 + jj
        a.put(DS(f"ds_read_b32 v{76+jj}, v14 offset:{(rho >> 3) * KVP + (rho & 7) * 128}", f"v{jj}"))
    a.put([f"v_add_u32 v13, {8*KVP}, v13", f"v_add_u32 v14, {8*KVP}, v14"])
    a.put([f"s_add_u32 s{sHS+j}, s{sHS}, {4096*j}" for j in range(1, 4)])
    kp = lambda jj: f"v[{128+2*jj}:{129+2*jj}]"
    up = lambda jj: 172 + 2 * jj
    unp = lambda j: [f"v_lshlrev_b32 v{128+2*j}, 16, v{64+j}", f"v_and_b32 v{129+2*j}, 0xffff0000, v{64+j}"]
    a.put([WAIT("k11")] + [unp(j) for j in range(12)])
    for jj in range(9):
        u = f"v[{up(jj)}:{up(jj)+1}]"
        a(f"v_pk_mul_f32 {u}, {kp(jj)}, v[26:27]")
        for t in (2, 1, 0):
            a(f"v_pk_fma_f32 {u}, {kp(jj+3-t)}, v[{20+2*t}:{21+2*t}], {u}")
    a.put([WAIT("v8")] + [unp(j) for j in range(12, 21)])
    for jj in range(9):
        u = f"v[{up(jj)}:{up(jj)+1}]"
        a(f"v_pk_mul_f32 {u}, {u}, {kp(12+jj)}")
    for ch in range(2):
        for cp in range(2):
            n = 2 * ch + cp
            for e in range(4):
                lo = 8 - cp - 2 * e
                a(f"v_cvt_pk_bf16_f32 v{192+4*n+e}, v{up(lo)+ch}, v{up(lo-1)+ch}")
            a.put(VM(f"buffer_store_dwordx4 v[{192+4*n}:{195+4*n}], v15, {srd(rWS)}, s{sHS+n} offen {SC}"))
    a(f"""
    s_sub_u32 s{sHS}, s{sHS}, 128
    s_add_u32 s{sWK}, s{sWK}, 1
    s_cmp_lt_u32 s{sWK}, 8
    s_cbranch_scc1 L_kv_loop
    """)
    a.put(stamp(3))
    a.put(lines(f"""
    s_lshl_b32 s4, s{sFS}, 3
    s_add_u32 s4, s4, s{sXCD}
    s_lshl_b32 s4, s4, 2
    s_add_u32 s4, s4, s{sW}
    s_lshl_b32 s4, s4, 13
    v_lshl_add_u32 v8, v{vLANE}, 7, s4
    v_add_u32 v9, {128*8192}, v8
    v_mov_b32 v12, 1
    """))
    a.put([WAIT("allvm"), VM(f"buffer_store_dword v12, v{vM0}, {srd(rWS)}, s{sF1} offen {SC}")])
    if "notouch" not in OPT:
        a.put([VM(f"buffer_load_dword v10, v8, {srd(rWD)}, 0 offen"), VM(f"buffer_load_dword v11, v9, {srd(rWD)}, 0 offen")])
    a.put([VM(LD_INIT), WAIT("allvm"), lambda e: poll(e, LD_INIT, "0x80"), "s_barrier", stamp(4)])
    a.put([wd_dma(g) for g in range(6)])
    a.put([VM(LD_KV), WAIT("allvm"), lambda e: poll(e, LD_KV, "1")])
    a.put(conv_dma() + conv_zero_addr() + ["v_mov_b32 v12, 0"] + conv_zero(12))
    a.put([wd_reads(g) for g in range(3)] + [WAIT("allds")])
    a.put([wd_dma(g) for g in range(6, 9)])
    a.put([WAIT("allvm"), "s_barrier"] + conv_reads(0))
    a.put(stamp(5))


HR, NH = 192, 16


def h_load(n):
    st, ks = divmod(n, 28)
    pre = [f"s_add_u32 s{sHL+st}, s{sHL+st}, 4096"] if ks and ks % 4 == 0 else []
    return pre + [VM(f"buffer_load_dwordx4 {vr(HR + 4*(n % NH), 4)}, v{vL16}, {srd(rWS)}, s{sHL+st} offen offset:{(ks%4)*1024} {SC}", f"h{n}")]


def conv(a):
    for m in range(4):
        p = m & 1
        ms = []
        for aa in range(8):
            for b in range(8 - aa):
                acc = vr(CACC + 4 * (aa + b), 4)
                c = "0" if (m == 0 and aa == 0) else acc
                ms.append(f"v_mfma_f32_16x16x32_bf16 {acc}, {rg(CUF[p], 4*b, 4)}, {rg(CHF[p], 4*aa, 4)}, {c}")
        if m == 0:
            a.put(WAIT("cf0", "wd5"))
            fl = spread(wd_reads(3) + wd_reads(4) + wd_reads(5) + conv_reads(1), 36, 0, 30)
        elif m == 1:
            a.put([WAIT("allds", "h_st"), "v_mov_b32 v4, 1", VM(f"buffer_store_dword v4, v{vM0}, {srd(rWS)}, s{sF1} offen {SC}"), stamp(6)])
            fl = merge(spread(wd_reads(6) + wd_reads(7) + wd_reads(8) + conv_reads(2), 36, 0, 30),
                       spread(wd_dma(9) + wd_dma(10) + wd_dma(11), 36, 0, 36))
        elif m == 2:
            a.put(WAIT("allds"))
            fl = merge(spread(conv_reads(3), 36, 0, 30), spread(wd_dma(12) + wd_dma(13), 36, 0, 20))
            fl[24] += [VM(LD_H, "p_h")]
        else:
            a.put([WAIT("allds", "p_h"), lambda e: poll(e, LD_H, "1"), stamp(7)])
            fl = spread([h_load(n) for n in range(NH - 1)], 36, 0, 36)
            fl = merge(fl, spread([DS(f"ds_read_b64 {vr(96+2*j,2)}, v{vDT} offset:{(3-j)*512}", "dt") for j in range(4)], 36, 0, 8))
        a.weave(ms, fl)
    odd, join = a.label("odd"), a.label("join")
    a.put([stamp(8), f"v_and_b32 v{vDV}, 0xffff0000, v{vDV}", WAIT("dt")])
    for j in range(4):
        for r in range(4):
            src = 96 + 2 * j + (1 - (r >> 1))
            a(f"v_lshlrev_b32 v{8+4*j+r}, 16, v{src}" if r & 1 else f"v_and_b32 v{8+4*j+r}, 0xffff0000, v{src}")
    a(f"s_cmp_eq_u32 s{sMH}, 0\ns_cbranch_scc0 {odd}")
    n0 = a.nds
    dv = f"v[{vDV-1}:{vDV}]"
    for half, end in ((0, f"s_branch {join}\n{odd}:"), (1, f"{join}:")):
        a.nds = n0
        a.put([DS(f"ds_write_b128 v{vRW}, {vr(CACC+16*(1-half)+4*j,4)} offset:{j*1024}") for j in range(4)])
        a.put([f"v_pk_fma_f32 {vr(8+j,2)}, {vr(8+j,2)}, {dv}, {vr(CACC+16*half+j,2)} op_sel:[0,1,0] op_sel_hi:[1,1,1]" for j in range(0, 16, 2)])
        a(end)
    a.put([WAIT("allds"), "s_barrier"])
    a.put([DS(f"ds_read_b128 {vr(96+4*j,4)}, v{vRR} offset:{j*1024}", f"rr{j}") for j in range(4)])
    for j in range(4):
        a.put([WAIT(f"rr{j}"),
               f"v_pk_add_f32 {vr(8+4*j,2)}, {vr(8+4*j,2)}, {vr(96+4*j,2)}",
               f"v_pk_add_f32 {vr(10+4*j,2)}, {vr(10+4*j,2)}, {vr(98+4*j,2)}",
               f"v_cvt_pk_bf16_f32 v{24+2*j}, v{8+4*j}, v{9+4*j}",
               f"v_cvt_pk_bf16_f32 v{25+2*j}, v{10+4*j}, v{11+4*j}",
               VM(f"buffer_store_dwordx2 {vr(24+2*j,2)}, v{vL8}, {srd(rWS)}, s{sYS} offen offset:{j*512} {SC}", "y_st")])
    a.put(stamp(9))


ACC2 = 128
XR, SR, XF, YV, PB = 32, 40, 8, 96, 64


def part_writes(p):
    return [DS(f"ds_write_b128 v{vPW+rq}, {vr(ACC2 + (p*2+u)*16 + 4*rq, 4)} offset:{p*SLOT + u*128}", f"pw{p}")
            for u in range(2) for rq in range(4)]


def part_reads(p):
    pre = [f"v_add_u32 v{vPR+e}, {SLOT}, v{vPR+e}" for e in range(2)] if p else []
    return pre, [DS(f"ds_read_b128 {vr(PB + 8*w + 4*e, 4)}, v{vPR+e} offset:{w*WDW}", f"pr{p}") for w in range(4) for e in range(2)]


def finalize(p, pk):
    b, r = PB, []
    if pk:
        for j in range(0, 8, 2):
            r += [f"v_pk_add_f32 {vr(b+j,2)}, {vr(b+j,2)}, {vr(b+8+j,2)}", f"v_pk_add_f32 {vr(b+16+j,2)}, {vr(b+16+j,2)}, {vr(b+24+j,2)}"]
        r += [f"v_pk_add_f32 {vr(b+j,2)}, {vr(b+j,2)}, {vr(b+16+j,2)}" for j in range(0, 8, 2)]
    else:
        for o in (8, 16, 24):
            r += [f"v_add_f32 v{b+j}, v{b+j}, v{b+o+j}" for j in range(8)]
    r += [f"v_mul_f32 v{b+8+j}, {hx(f2u(-1.4426950408889634))}, v{b+j}" for j in range(8)]
    r += [f"v_exp_f32 v{b+8+j}, v{b+8+j}" for j in range(8)]
    if pk:
        r += [f"v_pk_mul_f32 {vr(b+j,2)}, {vr(b+j,2)}, {vr(YV+8*p+j,2)}" for j in range(0, 8, 2)]
        r += [f"v_pk_add_f32 {vr(b+8+j,2)}, {vr(b+8+j,2)}, 1.0 op_sel_hi:[1,0]" for j in range(0, 8, 2)]
    else:
        r += [f"v_mul_f32 v{b+j}, v{b+j}, v{YV+8*p+j}" for j in range(8)]
        r += [f"v_add_f32 v{b+8+j}, 1.0, v{b+8+j}" for j in range(8)]
    r += [f"v_rcp_f32 v{b+8+j}, v{b+8+j}" for j in range(8)]
    if pk:
        r += [f"v_pk_fma_f32 {vr(b+j,2)}, {vr(b+j,2)}, {vr(b+8+j,2)}, {vr(XF+8*p+j,2)}" for j in range(0, 8, 2)]
    else:
        r += [f"v_fma_f32 v{b+j}, v{b+j}, v{b+8+j}, v{XF+8*p+j}" for j in range(8)]
    r += [f"v_cvt_pk_bf16_f32 v{b+16+j}, v{b+2*j}, v{b+2*j+1}" for j in range(4)]
    r.append(VM(f"buffer_store_dwordx4 {vr(b+16,4)}, v{vXO}, {srd(rOUT)}, s{sXO+p} offen"))
    return r


def gemm2(a):
    side = [[] for _ in range(112)]

    def place(items, n0, n1):
        for g, l in enumerate(spread(items, 112, 2 * n0, 2 * n1)):
            side[g] += l

    place(sum((wd_reads(g) for g in range(9, 14)), []), 0, 10)
    place([VM(f"buffer_load_dwordx4 {vr(XR+4*p,4)}, v{vXO}, {srd(rX)}, s{sXO+p} offen") for p in range(2)] +
          [VM(f"buffer_load_dwordx2 {vr(SR+2*p,2)}, v{vSO}, {srd(rWS)}, s{sSO+p} offen {SC}", "xs") for p in range(2)], 0, 4)
    NF = int(OPT.get("nf", 8))
    place([[WAIT("y_st"), "v_mov_b32 v4, 1", VM(f"buffer_store_dword v4, v{vM0}, {srd(rWS)}, s{sF2} offen {SC}")]], NF, NF + 1)
    NY = int(OPT.get("ny", 16))
    place([VM(LD_Y, "p_y")], NY, NY + 1)
    xs = [WAIT("xs")]
    for p in range(2):
        xs.append(f"v_rcp_f32 v{SR+2*p+1}, v{SR+2*p+1}")
        for j in range(4):
            xs += [f"v_lshlrev_b32 v{XF+8*p+2*j}, 16, v{XR+4*p+j}", f"v_and_b32 v{XF+8*p+2*j+1}, 0xffff0000, v{XR+4*p+j}"]
        xs.append(f"v_mul_f32 v{SR+2*p}, v{SR+2*p}, v{SR+2*p+1}")
    xs += [f"v_fma_f32 v{24+8*p+j}, v{XF+8*p+j}, v{SR+2*p+1}, -v{SR+2*p}" for p in range(2) for j in range(8)]
    xs += [f"v_mov_b32 v{YV+j}, 0" for j in range(16)]
    place(xs, 18, 27)
    place([[WAIT("p_y"), lambda e: poll(e, LD_Y, "1"), f"s_mov_b32 m0, s{sYM}", f"s_add_u32 s4, s{sYD}, {32768 - YP}",
            VM(f"buffer_load_dwordx4 v{vYD}, {srd(rWS)}, s{sYD} offen {SC} lds")],
           VM(f"buffer_load_dwordx4 v{vYD}, {srd(rWS)}, s4 offen offset:{YP} {SC} lds", "y_dma")], NY + 10, NY + 11)
    place(part_writes(0), 30, 34)
    NB = NY + 22
    pre1, rd1 = part_reads(1)
    place([[WAIT("y_dma", "pw0"), "s_barrier"]] + part_reads(0)[1] +
          [DS(f"ds_read_u16_d16_hi v{YV+8*p+j}, v{vYG+p} offset:{j*128}", "yg") for p in range(2) for j in range(8)], NB, NB + 3)
    fin = [WAIT("yg")] + [f"v_mul_f32 v{YV+j}, v{YV+j}, v{24+j}" for j in range(16)] + pre1 + finalize(0, False)
    place(fin, NB + 4, 56)
    a.put(WAIT("wd13"))
    for n in range(56):
        st, ks = divmod(n, 28)
        w = [f"h{n}"] + ([f"wr{ks // 2}"] if st == 0 and ks >= 18 and ks % 2 == 0 else [])
        a.put(WAIT(*w))
        ms = []
        for u in range(2):
            acc = vr(ACC2 + (st * 2 + u) * 16, 16)
            ms.append(f"v_mfma_f32_32x32x16_bf16 {acc}, {ar(ks*8+u*4,4)}, {vr(HR + 4*(n % NH), 4)}, {'0' if ks == 0 else acc}")
        nxt = h_load(n + NH - 1) if n + NH - 1 < 56 else []
        a.weave(ms, [nxt + side[2 * n], side[2 * n + 1]])
    a.put([stamp(10), "s_nop 9"] + part_writes(1) + [WAIT("pw1"), "s_barrier"] + rd1 + [WAIT("pr1")] + finalize(1, True))


def build():
    a = Em()
    entry(a)
    a(f"s_cmp_ge_u32 s{sIDX}, 28\ns_cbranch_scc1 L_service")
    snap = (a.nvm, a.nds)
    gemm_role(a)
    a("L_join:")
    conv(a)
    gemm2(a)
    if STAMP:
        a.put([stamp(11), WAIT("allvm"), stamp(15)])
        a(f"""
        s_add_u32 s{rWS}, s{rWS}, {WS_TS}
        s_addc_u32 s{rWS+1}, s{rWS+1}, 0
        s_lshl_b32 s4, s2, 3
        s_add_u32 s4, s4, s{sW}
        s_lshl_b32 s4, s4, 7
        v_lshlrev_b32 v4, 2, v{vLANE}
        s_mov_b64 exec, 0xffffffff
        buffer_store_dword v{vST}, v4, {srd(rWS)}, s4 offen
        """)
    a("L_exit:\ns_endpgm\nL_service:")
    a.nvm, a.nds = snap
    service_role(a)
    a("s_branch L_join")
    for t in a.tail:
        a(t)
    a("L_end:\ns_endpgm")
    hdr = open("cdna_kernels/" + NAME + ".s.ref").read().split("; Override launch")[0]
    t = hdr + f"; @launch grid=(256,1,1) block=(256,1,1) lds={LDS_BYTES}\n" + HEAD + kernel_text(KERNEL, a.text())
    t += '.section .rodata,"a"\n' + descriptor(KERNEL, vgpr=512, accum=256)
    return t


if __name__ == "__main__":
    open(sys.argv[1], "w").write(build())
```

```python
import sys
from common import (NAME, S, D, F, X_BYTES, W_BYTES, WS_H, WS_KV, WS_Y, WS_ST, WS_FL, WS_TS, LDS_BYTES, SLOT,
                    f2u, hx, vr, ar, spread, merge)
from asmlib import HEAD, kernel_text, descriptor
from emit import Em, VM, DS, WAIT, lines

OPT = dict(x[2:].split("=") if "=" in x else (x[2:], "1") for x in sys.argv if x.startswith("--"))
STAMP = "stamp" in OPT
KERNEL = NAME + "_kernel"
WS_BYTES = 16 << 20
SC = "sc1"

rX, rW, rWS, rWD, rSK, rOUT, rDBG, rV = 8, 12, 16, 20, 24, 28, 32, 36
pSD, pSH, pKV = 40, 42, 80
sXM, sWM, sXK, sWK, sHS = 44, 45, 46, 47, 48
sF1, sF2, sPH, sPY, sPK = 56, 57, 58, 59, 60
sDM, sDK = 61, 62
sUM, sHM, sKVO, sSKO, sYS = 63, 64, 65, 66, 67
sYD, sYM, sXO, sSO, sHL, sG1S, sMH, sSPIN = 68, 69, 70, 72, 74, 76, 77, 78
sRB, sFS, sT2, sCT = 84, 85, 86, 87
sXCD, sIDX, sW = 90, 91, 92
srd = lambda r: f"s[{r}:{r+3}]"

vLANE, vL16, vST = 1, 2, 3
vXD, vWD, vXA, vWA, vCS, vSEL, vMS, vGC = 8, 16, 20, 24, 28, 32, 36, 40
vCA, vG1S = 43, 47
vDD, vDA, vUA, vHA, vZU, vZH, vRW, vRR, vDT, vL8, vM0, vDV = 48, 52, 54, 55, 56, 57, 58, 59, 60, 61, 62, 63
vYD, vXO, vSO, vYG, vPW, vPR, vFH, vFY, vFK, vFD, vPOLL = 112, 113, 114, 115, 117, 121, 123, 124, 125, 126, 127
FR = [64, 88]
ACC1 = 128

US, HS = 4640, 4464
CH_LDS = 4 * US + HS + 4224 + 16
CONV_BASE = 2 * SLOT + 16
YB, YP = 155520, 1040
CSB = YB
WDW = 12288
KB, KVP = 0, 1040
VB = 65 * KVP
FL_H, FL_Y, FL_K = WS_FL, WS_FL + 4096, WS_FL + 8192

C1 = -2.0 * 0.7978845608028654 * 1.4426950408889634
C2 = C1 * 0.044715


def stamp(n):
    if not STAMP:
        return None
    return f"""
    s_memrealtime s[94:95]
    s_memtime s[96:97]
    s_waitcnt lgkmcnt(0)
    v_writelane_b32 v{vST}, s96, {n}
    v_writelane_b32 v{vST}, s94, {16 + n}
    """ + (f"v_writelane_b32 v{vST}, s100, 14\nv_writelane_b32 v{vST}, s98, 30" if n == 0 else "")


def poll(a, load, want):
    slow, back = a.label("slow"), a.label("back")
    a(f"v_cmp_gt_u32 vcc, {want}, v{vPOLL}\ns_cbranch_vccnz {slow}\n{back}:")
    a.tail.append(f"""
    {slow}:
    s_mov_b32 s{sSPIN}, 0x10000
    {slow}_l:
    {load}
    s_sub_u32 s{sSPIN}, s{sSPIN}, 1
    s_cmp_eq_u32 s{sSPIN}, 0
    s_waitcnt vmcnt(0)
    s_cbranch_scc1 {back}
    v_cmp_gt_u32 vcc, {want}, v{vPOLL}
    s_cbranch_vccnz {slow}_l
    s_branch {back}
    """)


LD_INIT = f"buffer_load_dword v{vPOLL}, v{vFD}, {srd(rDBG)}, 0 offen {SC}"
LD_KV = f"buffer_load_dword v{vPOLL}, v{vFK}, {srd(rWS)}, s{sPK} offen {SC}"
LD_H = f"buffer_load_dword v{vPOLL}, v{vFH}, {srd(rWS)}, s{sPH} offen {SC}"
LD_Y = f"buffer_load_dword v{vPOLL}, v{vFY}, {srd(rWS)}, s{sPY} offen {SC}"


def entry(a):
    if STAMP:
        a("s_memrealtime s[98:99]\ns_memtime s[100:101]")
    a(f"""
    s_load_dwordx2 s[{rX}:{rX+1}], s[0:1], 0
    s_load_dwordx4 s[36:39], s[0:1], 56
    s_load_dwordx2 s[{rWS}:{rWS+1}], s[0:1], 96
    s_load_dwordx4 s[{pKV}:{pKV+3}], s[0:1], 8
    s_getpc_b64 s[4:5]
    L_pc:
    s_cmp_ge_u32 s2, 256
    s_cbranch_scc1 L_exit
    s_lshr_b32 s{sIDX}, s2, 3
    v_lshrrev_b32 v4, 4, v0
    s_and_b32 s6, s{sIDX}, 15
    s_lshl_b32 s6, s6, 11
    v_lshl_add_u32 v4, v4, 7, s6
    v_min_u32 v4, L_end-L_pc-4, v4
    v_mov_b32 v5, s5
    v_add_co_u32 v4, vcc, s4, v4
    v_lshrrev_b32 v6, 6, v0
    v_and_b32 v{vLANE}, 63, v0
    v_addc_co_u32 v5, vcc, 0, v5, vcc
    """)
    if "nocodepf" not in OPT:
        a.put(VM(f"global_load_dword v{vPOLL}, v[4:5], off"))
    a(f"""
    v_readfirstlane_b32 s{sW}, v6
    s_load_dwordx2 s[{rWD}:{rWD+1}], s[0:1], 72
    s_load_dwordx2 s[{rSK}:{rSK+1}], s[0:1], 32
    s_load_dwordx2 s[{rOUT}:{rOUT+1}], s[0:1], 80
    s_load_dwordx2 s[{rDBG}:{rDBG+1}], s[0:1], 88
    s_load_dwordx2 s[{pSD}:{pSD+1}], s[0:1], 40
    s_load_dwordx2 s[{pSH}:{pSH+1}], s[0:1], 24
    s_and_b32 s{sXCD}, s2, 7
    v_lshlrev_b32 v{vL16}, 4, v{vLANE}
    s_mov_b32 s{rX+2}, {X_BYTES}
    s_mov_b32 s{rX+3}, 0x20000
    s_mov_b32 s{rW+3}, 0x20000
    s_and_b32 s4, s{sXCD}, 1
    s_lshr_b32 s5, s{sXCD}, 1
    s_lshl_b32 s{sRB}, s4, 2
    s_add_u32 s{sT2}, s{sRB}, s5
    s_lshl_b32 s6, s{sT2}, 5
    s_add_u32 s6, s6, s{sIDX}
    s_lshl_b32 s6, s6, 2
    s_add_u32 s6, s6, s{sW}
    s_lshl_b32 s79, s6, 11
    v_lshrrev_b32 v4, 5, v{vLANE}
    v_and_b32 v5, 31, v{vLANE}
    v_lshlrev_b32 v96, 10, v4
    v_lshl_add_u32 v96, v5, 4, v96
    v_lshrrev_b32 v6, 3, v{vLANE}
    v_and_b32 v7, 7, v{vLANE}
    """)
    if STAMP:
        a(f"v_mov_b32 v{vST}, 0")


def stats_loads():
    return [VM(f"buffer_load_dwordx4 v[64:67], v96, {srd(rX)}, s79 offen"),
            VM(f"buffer_load_dwordx4 v[68:71], v96, {srd(rX)}, s79 offen offset:512", "stats_ld")]


def reduce32(v, t):
    r = []
    for ctl in ("quad_perm:[1,0,3,2]", "quad_perm:[2,3,0,1]", "row_half_mirror", "row_mirror"):
        r += ["s_nop 1", f"v_add_f32_dpp v{v}, v{v}, v{v} {ctl} row_mask:0xf bank_mask:0xf"]
    return r + [f"v_mov_b32 v{t}, v{v}", "s_nop 1", f"v_permlane16_swap_b32 v{t}, v{v}", "s_nop 0",
                f"v_add_f32 v{v}, v{t}, v{v}"]


def rnd(v):
    return [f"v_cvt_pk_bf16_f32 v{v}, v{v}, v{v}", f"v_and_b32 v{v}, 0xffff0000, v{v}"]


def stats_compute():
    r = [WAIT("stats_ld")]
    for j in range(8):
        r += [f"v_lshlrev_b32 v{72+2*j}, 16, v{64+j}", f"v_and_b32 v{73+2*j}, 0xffff0000, v{64+j}"]
    r.append("v_pk_add_f32 v[88:89], v[72:73], v[74:75]")
    r += [f"v_pk_add_f32 v[88:89], v[88:89], v[{72+2*j}:{73+2*j}]" for j in range(2, 8)]
    r += ["v_add_f32 v88, v88, v89"] + reduce32(88, 89) + [f"v_mul_f32 v88, {hx(f2u(1.0/512))}, v88"]
    r += [f"v_pk_add_f32 v[{72+2*j}:{73+2*j}], v[{72+2*j}:{73+2*j}], v[88:89] op_sel_hi:[1,0] neg_lo:[0,1] neg_hi:[0,1]"
          for j in range(8)]
    r.append("v_pk_mul_f32 v[90:91], v[72:73], v[72:73]")
    r += [f"v_pk_fma_f32 v[90:91], v[{72+2*j}:{73+2*j}], v[{72+2*j}:{73+2*j}], v[90:91]" for j in range(1, 8)]
    r += ["v_add_f32 v89, v90, v91"] + reduce32(89, 90) + [f"v_mul_f32 v89, {hx(f2u(1.0/512))}, v89"]
    r += rnd(88) + rnd(89) + [f"v_add_f32 v89, {hx(f2u(1e-5))}, v89"] + rnd(89) + ["v_sqrt_f32 v89, v89"]
    r += lines(f"""
    v_cmp_eq_u32 vcc, 0, v5
    s_lshr_b32 s79, s79, 7
    s_add_u32 s79, s79, {WS_ST}
    v_lshlrev_b32 v90, 3, v4
    v_cndmask_b32 v90, -1, v90, vcc
    v_mov_b32 v91, 0
    """) + rnd(89)
    r += [VM(f"buffer_store_dwordx2 v[88:89], v90, {srd(rWS)}, s79 offen {SC}"),
          VM(f"buffer_store_dword v91, v{vM0}, {srd(rWS)}, s{sF1} offen {SC}"),
          VM(f"buffer_store_dword v91, v{vM0}, {srd(rWS)}, s{sF2} offen {SC}", "init_st")]
    return r


def init_signal():
    return lines(f"""
    s_and_b32 s4, s2, 1
    s_lshl_b32 s4, s4, 7
    s_cmp_eq_u32 s{sW}, 0
    s_cselect_b32 s4, s4, 0x1000
    v_mov_b32 v4, 1
    v_add_u32 v5, s4, v{vM0}
    """) + [VM(f"buffer_atomic_add v4, v5, {srd(rDBG)}, 0 offen {SC}")]


def setup_common():
    r = []
    for q, n in ((rWS, WS_BYTES), (rWD, W_BYTES), (rSK, X_BYTES), (rOUT, X_BYTES), (rDBG, 256)):
        r += [f"s_mov_b32 s{q+2}, {n}", f"s_mov_b32 s{q+3}, 0x20000"]
    r += lines(f"""
    v_cmp_eq_u32 vcc, 0, v{vLANE}
    s_lshl_b32 s{sT2}, s{sT2}, 2
    s_lshr_b32 s4, s{sIDX}, 3
    v_bfrev_b32 v{vM0}, 1
    v_cndmask_b32 v{vM0}, v{vM0}, 0, vcc
    s_add_u32 s{sT2}, s{sT2}, s4
    s_and_b32 s{sCT}, s{sIDX}, 7
    s_lshl_b32 s5, s{sXCD}, 2
    s_add_u32 s4, s4, s5
    s_lshl_b32 s4, s4, 7
    s_add_u32 s{sPK}, s4, {FL_K}
    s_lshr_b32 s4, s{sW}, 1
    s_and_b32 s{sMH}, s{sW}, 1
    s_lshl_b32 s5, s{sXCD}, 5
    s_add_u32 s5, s5, s{sIDX}
    s_lshl_b32 s5, s5, 1
    s_add_u32 s5, s5, s4
    s_lshl_b32 s6, s{sMH}, 9
    s_add_u32 s6, s6, s5
    s_lshl_b32 s6, s6, 2
    s_add_u32 s{sF2}, s6, {FL_Y}
    s_lshl_b32 s{sSKO}, s5, 12
    s_lshl_b32 s6, s{sMH}, 11
    s_add_u32 s{sYS}, s{sSKO}, s6
    s_lshl_b32 s{sKVO}, s{sYS}, 1
    s_add_u32 s{sKVO}, s{sKVO}, {WS_KV}
    s_add_u32 s{sYS}, s{sYS}, {WS_Y}
    s_lshl_b32 s5, s5, 1
    v_mov_b32 v97, s5
    s_mul_i32 s4, s4, {CH_LDS}
    s_add_u32 s4, s4, {CONV_BASE}
    s_mul_i32 s5, s{sMH}, {US}
    s_sub_u32 s{sUM}, s4, s5
    s_mul_i32 s5, s{sMH}, {HS + 8}
    s_add_u32 s{sHM}, s4, s5
    s_add_u32 s{sHM}, s{sHM}, {4*US}
    v_lshl_add_u32 v{vZU}, v{vLANE}, 2, s{sUM}
    v_min_u32 v{vZH}, 29, v{vLANE}
    v_lshl_add_u32 v{vZH}, v{vZH}, 2, s{sHM}
    v_lshlrev_b32 v{vL8}, 3, v{vLANE}
    s_sub_u32 s5, s4, s6
    s_add_u32 s5, s5, {3*US + 4088 - 3*512}
    v_sub_u32 v{vDT}, s5, v{vL8}
    s_lshl_b32 s5, s{sMH}, 8
    s_add_u32 s4, s4, s5
    v_lshrrev_b32 v98, 4, v{vLANE}
    v_and_b32 v{vFK}, 3, v{vLANE}
    v_bfe_u32 v99, v{vLANE}, 2, 2
    v_mul_u32_u24 v{vUA}, {US}, v{vFK}
    v_lshlrev_b32 v100, 7, v99
    v_sub_u32 v{vUA}, v{vUA}, v100
    v_lshl_add_u32 v{vUA}, v98, 4, v{vUA}
    s_add_u32 s5, s4, {248*16 - 7*512}
    v_add_u32 v{vUA}, s5, v{vUA}
    v_and_b32 v{vFD}, 1, v{vLANE}
    v_mul_u32_u24 v{vHA}, {HS + 16}, v{vFD}
    v_bfe_u32 v101, v{vLANE}, 1, 3
    v_add_u32 v101, v101, v98
    v_lshl_add_u32 v{vHA}, v101, 4, v{vHA}
    s_add_u32 s5, s4, {4*US}
    v_add_u32 v{vHA}, s5, v{vHA}
    v_lshlrev_b32 v{vFD}, 7, v{vFD}
    s_mul_i32 s{sDM}, s{sW}, {WDW}
    s_add_u32 s5, s{sDM}, 8192
    v_add_u32 v{vRW}, s5, v{vL16}
    s_xor_b32 s5, s{sW}, 1
    s_mul_i32 s5, s5, {WDW}
    s_add_u32 s5, s5, 8192
    v_add_u32 v{vRR}, s5, v{vL16}
    v_and_b32 v101, 1, v98
    v_lshlrev_b32 v102, 2, v101
    v_xor_b32 v102, v7, v102
    v_lshlrev_b32 v102, 4, v102
    v_lshl_add_u32 v{vDD}, v6, 10, v102
    v_add_u32 v{vDD+1}, {8192-1024}, v{vDD}
    v_add_u32 v{vDD+2}, {2*(8192-1024)}, v{vDD}
    v_add_u32 v{vDD+3}, {3*(8192-1024)}, v{vDD}
    s_mul_i32 s{sDK}, s{sW}, {448*1024}
    s_lshl_b32 s5, s{sCT}, 7
    s_add_u32 s{sDK}, s{sDK}, s5
    v_lshl_add_u32 v{vDA}, v4, 9, v100
    v_lshl_add_u32 v{vDA}, v101, 5, v{vDA}
    v_lshl_add_u32 v{vDA}, v{vFK}, 3, v{vDA}
    v_and_b32 v102, 1, v6
    v_lshl_add_u32 v{vDA}, v102, 6, v{vDA}
    v_add_u32 v{vDA}, s{sDM}, v{vDA}
    v_xor_b32 v{vDA+1}, 64, v{vDA}
    v_lshlrev_b32 v{vFK}, 2, v{vFK}
    s_and_b32 s6, s{sCT}, 1
    s_lshl_b32 s7, s{sT2}, 1
    s_add_u32 s7, s7, s6
    s_lshl_b32 s{sXO}, s7, 15
    s_add_u32 s{sXO}, s{sXO}, s5
    s_xor_b32 s{sXO+1}, s{sXO}, 0x8000
    s_lshl_b32 s{sSO}, s7, 8
    s_add_u32 s{sSO}, s{sSO}, {WS_ST}
    s_xor_b32 s{sSO+1}, s{sSO}, 0x100
    s_mul_i32 s4, s{sW}, {28*1024}
    s_mul_i32 s{sHL}, s7, {112*1024}
    s_add_u32 s{sHL}, s{sHL}, s4
    s_xor_b32 s7, s7, 1
    s_mul_i32 s{sHL+1}, s7, {112*1024}
    s_add_u32 s{sHL+1}, s{sHL+1}, s4
    s_lshl_b32 s4, s{sW}, 3
    v_add_u32 v102, s4, v6
    v_lshlrev_b32 v{vSO}, 3, v102
    v_lshlrev_b32 v103, 4, v7
    v_lshl_add_u32 v{vXO}, v102, 10, v103
    v_lshl_add_u32 v{vYD}, v6, 12, v103
    s_lshl_b32 s4, s{sCT}, 2
    s_add_u32 s4, s4, s{sW}
    s_lshl_b32 s{sYD}, s4, 16
    s_lshl_b32 s7, s{sT2}, 7
    s_add_u32 s{sYD}, s{sYD}, s7
    s_add_u32 s{sYD}, s{sYD}, {WS_Y}
    s_mul_i32 s{sPH}, s{sW}, 28
    s_add_u32 s{sPH}, s{sPH}, s7
    s_add_u32 s{sPH}, s{sPH}, {FL_H}
    s_lshl_b32 s4, s4, 6
    s_lshr_b32 s7, s{sT2}, 4
    s_lshl_b32 s7, s7, 11
    s_add_u32 s4, s4, s7
    s_add_u32 s{sPY}, s4, {FL_Y}
    s_mul_i32 s{sYM}, s{sW}, {2*YP}
    s_add_u32 s{sYM}, s{sYM}, {YB}
    v_mul_u32_u24 v103, {YP}, v7
    v_lshl_add_u32 v103, v102, 1, v103
    s_lshl_b32 s6, s6, 6
    s_add_u32 s4, s6, {YB}
    v_add_u32 v{vYG}, s4, v103
    s_sub_u32 s4, {YB + 64}, s6
    v_add_u32 v{vYG+1}, s4, v103
    v_xor_b32 v103, v4, v7
    v_lshlrev_b32 v103, 4, v103
    v_lshl_add_u32 v103, v5, 8, v103
    v_add_u32 v{vPW}, s{sDM}, v103
    v_xor_b32 v{vPW+1}, 32, v{vPW}
    v_xor_b32 v{vPW+2}, 64, v{vPW}
    v_xor_b32 v{vPW+3}, 96, v{vPW}
    v_lshlrev_b32 v103, 1, v7
    v_xor_b32 v103, v103, v6
    v_lshlrev_b32 v103, 4, v103
    v_lshl_add_u32 v{vPR}, v102, 8, v103
    v_xor_b32 v{vPR+1}, 16, v{vPR}
    v_min_u32 v{vFH}, 6, v{vLANE}
    v_lshlrev_b32 v{vFH}, 2, v{vFH}
    v_and_b32 v{vFY}, 15, v{vLANE}
    v_lshlrev_b32 v{vFY}, 2, v{vFY}
    """)
    r.append(VM(f"global_load_short_d16_hi v{vDV}, v97, s[{pSD}:{pSD+1}]"))
    return r


WD_SLOT = {0: 0, 1: 1, 2: 2, 3: 3, 4: 4, 5: 5, 6: 0, 7: 1, 8: 2, 9: 3, 10: 4, 11: 5, 12: 0, 13: 1}


def wd_off(g):
    s = WD_SLOT[g]
    return (s // 3) * SLOT + (s % 3) * 4096


def wd_dma(g):
    r = []
    for j in range(4):
        it = [VM(f"buffer_load_dwordx4 v{vDD+j}, {srd(rWD)}, s{sDK} offen offset:{j*1024} lds", f"wd{g}" if j == 3 else None)]
        if j == 0:
            it = [f"s_add_u32 m0, s{sDM}, {wd_off(g)}", "s_nop 0"] + it
        if j == 3:
            it.append(f"s_add_u32 s{sDK}, s{sDK}, 32768")
        r.append(it)
    return r


def wd_reads(g):
    r = []
    for k in range(2):
        for u in range(2):
            for e in range(2):
                last = k == 1 and u == 1 and e == 1
                r.append(DS(f"ds_read_b64_tr_b16 {ar((2*g+k)*8 + u*4 + 2*e, 2)}, v{vDA+u} offset:{wd_off(g) + k*2048 + e*1024}",
                            f"wr{g}" if last else None))
    return r


def conv_dma():
    r = []
    for m0, rs, so, sc in ((f"s{sUM}, {3*US}", rWS, sKVO, SC), (f"s{sUM}, {US-4}", rWS, sKVO, SC), (f"s{sHM}, 120", rSK, sSKO, "")):
        for j in range(4):
            it = [VM(f"buffer_load_dwordx4 v{vL16}, {srd(rs)}, s{so} offen offset:{j*1024} {sc} lds", "cv_dma")]
            if j == 0:
                it = [f"s_add_u32 m0, {m0}", "s_nop 0"] + it
            r.append(it)
    return r


def conv_zero(z):
    return [DS(f"ds_write2st64_b32 v{vZU}, v{z}, v{z} offset0:0 offset1:1".replace(f"v{vZU}", "v4")),
            DS(f"ds_write2st64_b32 v5, v{z}, v{z} offset0:0 offset1:1"),
            DS(f"ds_write_b32 v{vZH}, v{z}", "cv_zero")]


def conv_zero_addr():
    return [f"v_add_u32 v4, {3*US + 4096}, v{vZU}", f"v_add_u32 v5, {US + 4092}, v{vZU}"]


CUF = [("v", 128), ("a", 160)]
CHF = [("v", 160), ("a", 192)]
CACC = 64
rg = lambda kb, o, n: (vr if kb[0] == "v" else ar)(kb[1] + o, n)


def conv_reads(m):
    p, r = m & 1, []
    for j in range(8):
        r.append(DS(f"ds_read_b128 {rg(CUF[p], 4*j, 4)}, v{vUA} offset:{64*m + 512*(7-j)}"))
        r.append(DS(f"ds_read_b128 {rg(CHF[p], 4*j, 4)}, v{vHA} offset:{64*m + 512*j}", f"cf{m}"))
    return r


def g1_dma_setup():
    r = lines(f"""
    s_and_b32 s6, s{sIDX}, 3
    s_add_u32 s{sRB}, s{sRB}, s6
    s_mul_i32 s{sFS}, s5, 7
    s_lshr_b32 s6, s{sIDX}, 2
    s_add_u32 s{sFS}, s{sFS}, s6
    v_lshrrev_b32 v98, 4, v{vLANE}
    s_lshr_b32 s4, s{sW}, 1
    s_and_b32 s6, s{sW}, 1
    v_and_b32 v99, 1, v98
    s_lshl_b32 s7, s4, 2
    v_lshl_or_b32 v99, v99, 1, s7
    v_xor_b32 v99, v7, v99
    v_mul_u32_u24 v100, {F*2}, v6
    v_lshl_add_u32 v99, v99, 4, v100
    s_mul_i32 s6, s6, {32*F*2}
    s_lshl_b32 s7, s{sFS}, 7
    s_add_u32 s6, s6, s7
    v_add_u32 v{vWD}, s6, v99
    v_add_u32 v{vWD+1}, {8*F*2 - 1024}, v{vWD}
    v_add_u32 v{vWD+2}, {2*(8*F*2 - 1024)}, v{vWD}
    v_add_u32 v{vWD+3}, {3*(8*F*2 - 1024)}, v{vWD}
    s_lshl_b32 s{sG1S}, s{sRB}, 2
    s_add_u32 s{sG1S}, s{sG1S}, s{sW}
    s_lshl_b32 s7, s{sG1S}, 16
    v_xor_b32 v99, v7, v98
    v_lshlrev_b32 v99, 4, v99
    v_lshl_add_u32 v99, v6, 10, v99
    v_add_u32 v{vXD}, s7, v99
    v_xor_b32 v99, 64, v{vXD}
    """)
    for j in range(1, 8):
        r.append(f"v_add_u32 v{vXD+j}, {j*8192 - (j%4)*1024}, v{99 if j & 1 else vXD}")
    rot = f"s_lshl_b32 s{sXK}, s{sRB}, 7" if "norot" not in OPT else f"s_mov_b32 s{sXK}, 0"
    r += lines(f"""
    s_lshl_b32 s{sXM}, s{sW}, 13
    s_add_u32 s{sXM}, s{sXM}, {SLOT}
    s_lshl_b32 s{sWM}, s{sW}, 12
    s_add_u32 s{sWM}, s{sWM}, {SLOT + 32768}
    {rot}
    s_mul_i32 s{sWK}, s{sXK}, {F}
    s_mov_b32 s{rW+2}, {W_BYTES}
    s_cmp_eq_u32 s4, 0
    s_waitcnt lgkmcnt(0)
    s_cselect_b32 s{rW}, s36, s38
    s_cselect_b32 s{rW+1}, s37, s39
    """)
    return r


def g1_setup():
    r = lines(f"""
    v_bfe_u32 v98, v{vLANE}, 1, 3
    v_xor_b32 v98, v4, v98
    v_lshlrev_b32 v98, 4, v98
    v_lshl_add_u32 v98, v5, 7, v98
    s_lshl_b32 s4, s{sW}, 13
    s_add_u32 s4, s4, {SLOT}
    v_add_u32 v{vXA}, s4, v98
    v_xor_b32 v{vXA+1}, 32, v{vXA}
    v_xor_b32 v{vXA+2}, 64, v{vXA}
    v_xor_b32 v{vXA+3}, 96, v{vXA}
    v_bfe_u32 v98, v{vLANE}, 4, 1
    v_and_b32 v99, 3, v6
    v_lshlrev_b32 v98, 13, v98
    v_lshl_add_u32 v98, v4, 10, v98
    v_bfe_u32 v100, v{vLANE}, 2, 2
    v_lshl_add_u32 v98, v100, 7, v98
    v_and_b32 v101, 3, v{vLANE}
    v_lshl_add_u32 v98, v101, 3, v98
    v_add_u32 v98, {SLOT + 32768}, v98
    s_lshl_b32 s4, s{sG1S}, 7
    s_lshl_b32 s5, s{sFS}, 2
    s_add_u32 s{sF1}, s4, s5
    s_add_u32 s{sF1}, s{sF1}, {FL_H}
    s_mul_i32 s4, s{sG1S}, 224
    s_add_u32 s4, s4, s5
    """)
    for t in range(4):
        r += lines(f"""
        s_add_u32 s5, s{sW}, {t}
        s_and_b32 s5, s5, 3
        v_xor_b32 v101, s5, v99
        v_lshl_add_u32 v{vWA+t}, v101, 5, v98
        s_add_u32 s5, s5, s4
        s_lshl_b32 s{sHS+t}, s5, 10
        s_add_u32 s{sHS+4+t}, s{sHS+t}, {112*1024}
        """)
    r += lines(f"""
    v_lshrrev_b32 v101, 4, v{vLANE}
    v_cmp_eq_u32 vcc, v100, v101
    s_lshl_b32 s{sG1S}, s{sG1S}, 9
    s_add_u32 s{sG1S}, s{sG1S}, {WS_ST}
    v_mov_b32 v{vSEL}, 0x3f803f80
    v_cndmask_b32 v{vSEL}, 0, v{vSEL}, vcc
    v_mov_b32 v{vSEL+1}, v{vSEL}
    v_mov_b32 v{vSEL+2}, v{vSEL}
    v_mov_b32 v{vSEL+3}, v{vSEL}
    v_lshlrev_b32 v{vG1S}, 3, v5
    s_lshl_b32 s4, s{sW}, 8
    s_add_u32 s4, s4, {CSB}
    v_lshl_add_u32 v{vCA}, v{vLANE}, 2, s4
    """)
    return r


def g1_reads(p, ks):
    r = [DS(f"ds_read_b128 {vr(FR[p], 4)}, v{vXA+ks}")]
    for t in range(4):
        for e in range(2):
            r.append(DS(f"ds_read_b64_tr_b16 {vr(FR[p]+8+4*t+2*e, 2)}, v{vWA+t} offset:{ks*2048+e*512}"))
    r.append(DS(f"ds_read_b128 {vr(FR[p]+4, 4)}, v{vXA+ks} offset:4096", "g1f"))
    return r


def g1_mfmas(p, first=False):
    m = []
    for rt in range(2):
        for t in range(4):
            acc = vr(ACC1 + (rt * 4 + t) * 16, 16)
            m.append(f"v_mfma_f32_32x32x16_bf16 {acc}, {vr(FR[p]+8+4*t, 4)}, {vr(FR[p]+4*rt, 4)}, {'0' if first else acc}")
    return m


def g1_dmas(st):
    d = []
    for j in range(4):
        pre = [f"s_mov_b32 m0, s{sWM}", "s_nop 0"] if j == 0 else []
        d.append(pre + [VM(f"buffer_load_dwordx4 v{vWD+j}, {srd(rW)}, s{sWK} offen offset:{j*1024} lds")])
    for j in range(8):
        pre = [f"s_add_u32 m0, s{sXM}, {j*1024}", "s_nop 0"] if j % 4 == 0 else []
        d.append(pre + [VM(f"buffer_load_dwordx4 v{vXD+j}, {srd(rX)}, s{sXK} offen offset:{(j%4)*1024} lds", f"st{st}")])
    if st < 7:
        delta = SLOT if (st + 2) % 3 else -2 * SLOT
        d[-1] += [f"s_add_u32 s{sXK}, s{sXK}, 128", f"s_and_b32 s{sXK}, s{sXK}, 1023", f"s_mul_i32 s{sWK}, s{sXK}, {F}",
                  f"s_add_u32 s{sXM}, s{sXM}, {hx(delta)}", f"s_add_u32 s{sWM}, s{sWM}, {hx(delta)}"]
    return d


def gemm_role(a):
    a.put(g1_dma_setup())
    a.put(stamp(0))
    a.put(stats_loads())
    a.put(g1_dmas(0))
    a.put(stamp(1))
    a.put(g1_setup())
    a.put(setup_common())
    a.put(stats_compute())
    a.put(g1_dmas(1))
    a.put([WAIT("st0"), "s_barrier", stamp(2)])
    a.put(g1_reads(0, 0))
    for st in range(8):
        if st < 6:
            dm = g1_dmas(st + 2)
        else:
            dm = sum((wd_dma(3 * (st - 6) + j) for j in range(3)), [])
        for ks in range(4):
            p = ks & 1
            side = [[] for _ in range(8)]
            nxt = []
            if ks < 3:
                a.put(WAIT("g1f"))
                nxt = g1_reads(p ^ 1, ks + 1)
            elif st < 7:
                a.put([WAIT(f"st{st+1}", "allds"), "s_barrier"])
                delta = SLOT if (st + 2) % 3 else -2 * SLOT
                nxt = [f"v_add_u32 v{vXA}, {hx(delta)}, v{vXA}"] + [f"v_add_u32 v{vWA+t}, {hx(delta)}, v{vWA+t}" for t in range(4)]
                nxt += g1_reads(p ^ 1, 0) + [f"v_add_u32 v{vXA+k}, {hx(delta)}, v{vXA+k}" for k in range(1, 4)]
            else:
                a.put(WAIT("g1f"))
            if st == 1 and ks == 0:
                side = spread(init_signal(), 8, 0, 4)
            if st == 5 and ks == 0:
                side[0] = [VM(LD_INIT, "p_init")]
            if st == 6 and ks == 0:
                side[0] = [WAIT("p_init"), lambda e: poll(e, LD_INIT, "0x80")]
                side[1] = [VM(f"buffer_load_dwordx2 {vr(vMS,2)}, v{vG1S}, {srd(rWS)}, s{sG1S} offen {SC}")]
                side[2] = [VM(f"buffer_load_dwordx2 {vr(vMS+2,2)}, v{vG1S}, {srd(rWS)}, s{sG1S} offen offset:256 {SC}", "g1st")]
            if st == 7 and ks == 0:
                side[0] = [VM(LD_KV, "p_kv")]
                c = [WAIT("g1st")]
                for rt in range(2):
                    den, c1 = vMS + 2 * rt + 1, vGC + 4 * rt
                    c += lines(f"""
                    v_rcp_f32 v{c1}, v{den}
                    v_mul_f32 v{c1+2}, v{den}, v{den}
                    v_mul_f32 v{c1+1}, v{c1}, v{c1}
                    v_mul_f32 v{c1+1}, v{c1+1}, v{c1}
                    v_mul_f32 v{c1}, {hx(f2u(C1))}, v{c1}
                    v_mul_f32 v{c1+1}, {hx(f2u(C2))}, v{c1+1}
                    """)
                side = merge(side, spread(c, 8, 1, 8))
            if st == 7 and ks in (1, 2):
                side = spread([WAIT(f"wd{ks-1}")] + wd_reads(ks - 1), 8, 4, 8)
            if st == 7 and ks == 3:
                z = [f"v_mov_b32 v{FR[0]+j}, 0" for j in range(24) if j % 4]
                z += [f"v_cvt_pk_bf16_f32 v{FR[0]+4*rt}, -v{vMS+2*rt}, -v{vMS+2*rt}" for rt in range(2)]
                cs = lines(f"""
                v_cvt_pk_bf16_f32 v6, v{vCS}, v{vCS}
                v_and_b32 v6, 0xffff0000, v6
                v_sub_f32 v6, v{vCS}, v6
                v_cvt_pk_bf16_f32 v{FR[0]+8}, v{vCS}, v6
                """) + [DS(f"ds_write2st64_b32 v{vCA}, v{FR[0]+8}, v{FR[0]+8} offset0:0 offset1:4")]
                side = merge(spread(z, 8, 0, 5), spread(cs, 8, 3, 5), spread([WAIT("wd2")] + wd_reads(2), 8, 5, 8))
            cs_m = f"v_mfma_f32_16x16x32_bf16 {vr(vCS,4)}, {vr(vSEL,4)}, {vr(FR[p]+8,4)}, {'0' if st == 0 and ks == 0 else vr(vCS,4)}"
            a.put(cs_m)
            dd = [[] for _ in range(8)]
            for j in range(3):
                dd[5 + j] = dm[ks * 3 + j]
            a.weave(g1_mfmas(p, first=(st == 0 and ks == 0)), merge(spread(nxt, 8, 0, 5) if nxt else [[]], side, dd))
    a.put([stamp(3), WAIT("allds"), "s_barrier"])
    a.put([DS(f"ds_read_b32 v{FR[0]+8+4*t}, v{vCA} offset:{256*t}", "csr") for t in range(1, 4)])
    a.put([WAIT("p_kv"), lambda e: poll(e, LD_KV, "1")])
    cd = conv_dma()
    a.put(conv_zero_addr() + cd[0] + [WAIT("csr")])
    a.weave(g1_mfmas(0), [conv_zero(FR[0] + 1), cd[1], cd[2], cd[3], cd[4], cd[5], cd[6], cd[7]])
    a.put(stamp(4))
    extra = [cd[8:12], wd_dma(6), wd_dma(7), wd_dma(8)]
    for n in range(8):
        rt, t = n >> 2, n & 3
        c1, acc, T = vGC + 4 * rt, ACC1 + n * 16, 88 + 12 * (t & 1)
        ex = extra[(n + 1) // 2] if OPT.get("gx", "0") == "1" and n % 2 == (n > 0) and (n + 1) // 2 < 4 else None
        if OPT.get("gx", "0") == "0":
            ex = extra[n] if n < 4 else None
        ex = ex or [[], [], [], []]
        E = range(0, 8, 2)
        a.put([f"v_pk_mul_f32 {vr(T+j,2)}, {vr(acc+j,2)}, {vr(acc+j,2)}" for j in E])
        a.put([f"v_pk_fma_f32 {vr(T+j,2)}, {vr(T+j,2)}, {vr(c1,2)}, {vr(c1,2)} op_sel:[0,1,0] op_sel_hi:[1,1,0]" for j in E])
        a.put([f"v_pk_mul_f32 {vr(T+j,2)}, {vr(T+j,2)}, {vr(acc+j,2)}" for j in E] + ex[0])
        a.put([f"v_exp_f32 v{T+j}, v{T+j}" for j in range(8)] + ex[1])
        a.put([f"v_pk_mul_f32 {vr(acc+j,2)}, {vr(acc+j,2)}, {vr(acc+8+j,2)}" for j in E])
        a.put([f"v_pk_fma_f32 {vr(T+j,2)}, {vr(T+j,2)}, {vr(c1+2,2)}, {vr(c1+2,2)} op_sel_hi:[1,0,0]" for j in E] + ex[2])
        a.put([f"v_rcp_f32 v{T+j}, v{T+j}" for j in range(8)] + ex[3])
        a.put([f"v_pk_mul_f32 {vr(acc+j,2)}, {vr(acc+j,2)}, {vr(T+j,2)}" for j in E])
        a.put([f"v_cvt_pk_bf16_f32 v{acc+8+j}, v{acc+2*j}, v{acc+2*j+1}" for j in range(4)])
        a.put(VM(f"buffer_store_dwordx4 {vr(acc+8,4)}, v{vL16}, {srd(rWS)}, s{sHS+n} offen {SC}", "h_st"))
        if n == 6:
            a.put([WAIT("cv_dma", "cv_zero"), "s_barrier"] + conv_reads(0))
    a.put(stamp(5))


def service_role(a):
    a.put(lines(f"""
    s_sub_u32 s{sFS}, s{sIDX}, 28
    s_lshl_b32 s6, s{sFS}, 19
    s_lshl_b32 s7, s{sXCD}, 7
    s_add_u32 s6, s6, s7
    v_lshlrev_b32 v8, 10, v6
    v_lshl_add_u32 v8, v7, 4, v8
    v_add_u32 v8, s6, v8
    v_subrev_u32 v10, 8192, v8
    s_lshl_b32 s6, s{sW}, 14
    v_add_u32 v8, s6, v8
    v_add_u32 v9, {8192 - KVP}, v8
    s_mul_i32 s{sXM}, s{sW}, {2*KVP}
    s_add_u32 s{sXM}, s{sXM}, {KB + KVP}
    s_mov_b32 s{sXK}, 0
    s_mov_b32 s{rW+2}, {X_BYTES}
    s_waitcnt lgkmcnt(0)
    s_mov_b32 s{rW}, s{pKV}
    s_mov_b32 s{rW+1}, s{pKV+1}
    s_mov_b32 s{rV}, s{pKV+2}
    s_mov_b32 s{rV+1}, s{pKV+3}
    s_mov_b32 s{rV+2}, {X_BYTES}
    s_mov_b32 s{rV+3}, 0x20000
    """))
    a.put(stamp(0))
    a.put(stats_loads())

    def tile_dma(tag):
        return [f"s_mov_b32 m0, s{sXM}", "s_nop 0",
                VM(f"buffer_load_dwordx4 v8, {srd(rW)}, s{sXK} offen nt lds"),
                VM(f"buffer_load_dwordx4 v9, {srd(rW)}, s{sXK} offen offset:{KVP} nt lds"),
                f"s_add_u32 m0, s{sXM}, {VB - KB}", f"s_add_u32 s{sXM}, s{sXM}, {8*KVP}",
                VM(f"buffer_load_dwordx4 v8, {srd(rV)}, s{sXK} offen nt lds"),
                VM(f"buffer_load_dwordx4 v9, {srd(rV)}, s{sXK} offen offset:{KVP} nt lds", tag),
                f"s_add_u32 s{sXK}, s{sXK}, 65536"]

    a.put([f"s_mov_b32 m0, {KB}", "s_nop 0", VM(f"buffer_load_dwordx4 v10, {srd(rW)}, 0 offen lds"),
           f"s_mov_b32 m0, {VB}", "s_nop 0", VM(f"buffer_load_dwordx4 v10, {srd(rV)}, 0 offen lds")])
    a.put(lines(f"""
    s_lshl_b32 s4, s{sW}, 3
    v_add_u32 v11, s4, v6
    s_lshl_b32 s4, s{sXCD}, 9
    v_lshl_add_u32 v12, v11, 4, s4
    """) + [VM(f"global_load_dwordx4 v[16:19], v12, s[{pSH}:{pSH+1}]", "taps")])
    a.put(tile_dma("kv0") + tile_dma("kv1"))
    a.put(lines(f"""
    v_sub_u32 v12, 7, v7
    v_mul_u32_u24 v13, {KVP}, v12
    v_lshl_add_u32 v13, v11, 2, v13
    v_add_u32 v14, {VB}, v13
    v_lshlrev_b32 v15, 14, v11
    v_lshl_add_u32 v15, v7, 4, v15
    s_lshl_b32 s4, s{sXCD}, 19
    s_lshl_b32 s5, s{sFS}, 10
    s_sub_u32 s4, s4, s5
    s_add_u32 s{sHS}, s4, {WS_KV + 4096 - 128}
    s_lshl_b32 s4, s{sXCD}, 2
    s_add_u32 s4, s4, s{sW}
    s_lshl_b32 s4, s4, 7
    s_lshl_b32 s5, s{sFS}, 2
    s_add_u32 s4, s4, s5
    s_add_u32 s{sF1}, s4, {FL_K}
    """))
    a.put(setup_common())
    a.put(stats_compute())
    r = [WAIT("taps")]
    for t in range(4):
        for ch in range(2):
            src = 16 + 2 * ch + (t >> 1)
            r.append(f"v_and_b32 v{20+2*t+ch}, 0xffff0000, v{src}" if t & 1 else f"v_lshlrev_b32 v{20+2*t+ch}, 16, v{src}")
    a.put(r)
    a.put([WAIT("allvm"), "s_barrier"] + init_signal() + [stamp(2)])
    a(f"s_mov_b32 s{sWK}, 0")
    a("L_kv_loop:")
    a(f"s_cmp_ge_u32 s{sWK}, 6\ns_cbranch_scc1 L_kv_nodma")
    a.put(tile_dma(None))
    a("s_waitcnt vmcnt(16)\ns_branch L_kv_go\nL_kv_nodma:\ns_waitcnt vmcnt(8)\nL_kv_go:\ns_barrier")
    for jj in range(12):
        rho = 4 + jj
        a.put(DS(f"ds_read_b32 v{64+jj}, v13 offset:{KB + (rho >> 3) * KVP + (rho & 7) * 128}", f"k{jj}"))
    for jj in range(9):
        rho = 7 + jj
        a.put(DS(f"ds_read_b32 v{76+jj}, v14 offset:{(rho >> 3) * KVP + (rho & 7) * 128}", f"v{jj}"))
    a.put([f"v_add_u32 v13, {8*KVP}, v13", f"v_add_u32 v14, {8*KVP}, v14"])
    a.put([f"s_add_u32 s{sHS+j}, s{sHS}, {4096*j}" for j in range(1, 4)])
    kp = lambda jj: f"v[{128+2*jj}:{129+2*jj}]"
    up = lambda jj: 172 + 2 * jj
    unp = lambda j: [f"v_lshlrev_b32 v{128+2*j}, 16, v{64+j}", f"v_and_b32 v{129+2*j}, 0xffff0000, v{64+j}"]
    a.put([WAIT("k11")] + [unp(j) for j in range(12)])
    for jj in range(9):
        u = f"v[{up(jj)}:{up(jj)+1}]"
        a(f"v_pk_mul_f32 {u}, {kp(jj)}, v[26:27]")
        for t in (2, 1, 0):
            a(f"v_pk_fma_f32 {u}, {kp(jj+3-t)}, v[{20+2*t}:{21+2*t}], {u}")
    a.put([WAIT("v8")] + [unp(j) for j in range(12, 21)])
    for jj in range(9):
        u = f"v[{up(jj)}:{up(jj)+1}]"
        a(f"v_pk_mul_f32 {u}, {u}, {kp(12+jj)}")
    for ch in range(2):
        for cp in range(2):
            n = 2 * ch + cp
            for e in range(4):
                lo = 8 - cp - 2 * e
                a(f"v_cvt_pk_bf16_f32 v{192+4*n+e}, v{up(lo)+ch}, v{up(lo-1)+ch}")
            a.put(VM(f"buffer_store_dwordx4 v[{192+4*n}:{195+4*n}], v15, {srd(rWS)}, s{sHS+n} offen {SC}"))
    a(f"""
    s_sub_u32 s{sHS}, s{sHS}, 128
    s_add_u32 s{sWK}, s{sWK}, 1
    s_cmp_lt_u32 s{sWK}, 8
    s_cbranch_scc1 L_kv_loop
    """)
    a.put(stamp(3))
    a.put(lines(f"""
    s_lshl_b32 s4, s{sFS}, 3
    s_add_u32 s4, s4, s{sXCD}
    s_lshl_b32 s4, s4, 2
    s_add_u32 s4, s4, s{sW}
    s_lshl_b32 s4, s4, 13
    v_lshl_add_u32 v8, v{vLANE}, 7, s4
    v_add_u32 v9, {128*8192}, v8
    v_mov_b32 v12, 1
    """))
    a.put([WAIT("allvm"), VM(f"buffer_store_dword v12, v{vM0}, {srd(rWS)}, s{sF1} offen {SC}")])
    if "notouch" not in OPT:
        a.put([VM(f"buffer_load_dword v10, v8, {srd(rWD)}, 0 offen"), VM(f"buffer_load_dword v11, v9, {srd(rWD)}, 0 offen")])
    a.put([VM(LD_INIT), WAIT("allvm"), lambda e: poll(e, LD_INIT, "0x80"), "s_barrier", stamp(4)])
    a.put([wd_dma(g) for g in range(6)])
    a.put([VM(LD_KV), WAIT("allvm"), lambda e: poll(e, LD_KV, "1")])
    a.put(conv_dma() + conv_zero_addr() + ["v_mov_b32 v12, 0"] + conv_zero(12))
    a.put([wd_reads(g) for g in range(3)] + [WAIT("allds")])
    a.put([wd_dma(g) for g in range(6, 9)])
    a.put([WAIT("allvm"), "s_barrier"] + conv_reads(0))
    a.put(stamp(5))


HR, NH = 192, 16


def h_load(n):
    st, ks = divmod(n, 28)
    pre = [f"s_add_u32 s{sHL+st}, s{sHL+st}, 4096"] if ks and ks % 4 == 0 else []
    return pre + [VM(f"buffer_load_dwordx4 {vr(HR + 4*(n % NH), 4)}, v{vL16}, {srd(rWS)}, s{sHL+st} offen offset:{(ks%4)*1024} {SC}", f"h{n}")]


def conv(a):
    for m in range(4):
        p = m & 1
        ms = []
        for aa in range(8):
            for b in range(8 - aa):
                acc = vr(CACC + 4 * (aa + b), 4)
                c = "0" if (m == 0 and aa == 0) else acc
                ms.append(f"v_mfma_f32_16x16x32_bf16 {acc}, {rg(CUF[p], 4*b, 4)}, {rg(CHF[p], 4*aa, 4)}, {c}")
        if m == 0:
            a.put(WAIT("cf0", "wd5"))
            fl = spread(wd_reads(3) + wd_reads(4) + wd_reads(5) + conv_reads(1), 36, 0, 30)
        elif m == 1:
            a.put([WAIT("allds", "h_st"), "v_mov_b32 v4, 1", VM(f"buffer_store_dword v4, v{vM0}, {srd(rWS)}, s{sF1} offen {SC}"), stamp(6)])
            fl = merge(spread(wd_reads(6) + wd_reads(7) + wd_reads(8) + conv_reads(2), 36, 0, 30),
                       spread(wd_dma(9) + wd_dma(10) + wd_dma(11), 36, 0, 36))
        elif m == 2:
            a.put(WAIT("allds"))
            fl = merge(spread(conv_reads(3), 36, 0, 30), spread(wd_dma(12) + wd_dma(13), 36, 0, 20))
            fl[24] += [VM(LD_H, "p_h")]
        else:
            a.put([WAIT("allds", "p_h"), lambda e: poll(e, LD_H, "1"), stamp(7)])
            fl = spread([h_load(n) for n in range(NH - 1)], 36, 0, 36)
            fl = merge(fl, spread([DS(f"ds_read_b64 {vr(96+2*j,2)}, v{vDT} offset:{(3-j)*512}", "dt") for j in range(4)], 36, 0, 8))
        a.weave(ms, fl)
    odd, join = a.label("odd"), a.label("join")
    a.put([stamp(8), f"v_and_b32 v{vDV}, 0xffff0000, v{vDV}", WAIT("dt")])
    for j in range(4):
        for r in range(4):
            src = 96 + 2 * j + (1 - (r >> 1))
            a(f"v_lshlrev_b32 v{8+4*j+r}, 16, v{src}" if r & 1 else f"v_and_b32 v{8+4*j+r}, 0xffff0000, v{src}")
    a(f"s_cmp_eq_u32 s{sMH}, 0\ns_cbranch_scc0 {odd}")
    n0 = a.nds
    dv = f"v[{vDV-1}:{vDV}]"
    for half, end in ((0, f"s_branch {join}\n{odd}:"), (1, f"{join}:")):
        a.nds = n0
        a.put([DS(f"ds_write_b128 v{vRW}, {vr(CACC+16*(1-half)+4*j,4)} offset:{j*1024}") for j in range(4)])
        a.put([f"v_pk_fma_f32 {vr(8+j,2)}, {vr(8+j,2)}, {dv}, {vr(CACC+16*half+j,2)} op_sel:[0,1,0] op_sel_hi:[1,1,1]" for j in range(0, 16, 2)])
        a(end)
    a.put([WAIT("allds"), "s_barrier"])
    a.put([DS(f"ds_read_b128 {vr(96+4*j,4)}, v{vRR} offset:{j*1024}", f"rr{j}") for j in range(4)])
    for j in range(4):
        a.put([WAIT(f"rr{j}"),
               f"v_pk_add_f32 {vr(8+4*j,2)}, {vr(8+4*j,2)}, {vr(96+4*j,2)}",
               f"v_pk_add_f32 {vr(10+4*j,2)}, {vr(10+4*j,2)}, {vr(98+4*j,2)}",
               f"v_cvt_pk_bf16_f32 v{24+2*j}, v{8+4*j}, v{9+4*j}",
               f"v_cvt_pk_bf16_f32 v{25+2*j}, v{10+4*j}, v{11+4*j}",
               VM(f"buffer_store_dwordx2 {vr(24+2*j,2)}, v{vL8}, {srd(rWS)}, s{sYS} offen offset:{j*512} {SC}", "y_st")])
    a.put(stamp(9))


ACC2 = 128
XR, SR, XF, YV, PB = 32, 40, 8, 96, 64


def part_writes(p):
    return [DS(f"ds_write_b128 v{vPW+rq}, {vr(ACC2 + (p*2+u)*16 + 4*rq, 4)} offset:{p*SLOT + u*128}", f"pw{p}")
            for u in range(2) for rq in range(4)]


def part_reads(p):
    pre = [f"v_add_u32 v{vPR+e}, {SLOT}, v{vPR+e}" for e in range(2)] if p else []
    return pre, [DS(f"ds_read_b128 {vr(PB + 8*w + 4*e, 4)}, v{vPR+e} offset:{w*WDW}", f"pr{p}") for w in range(4) for e in range(2)]


def finalize(p, pk):
    b, r = PB, []
    if pk:
        for j in range(0, 8, 2):
            r += [f"v_pk_add_f32 {vr(b+j,2)}, {vr(b+j,2)}, {vr(b+8+j,2)}", f"v_pk_add_f32 {vr(b+16+j,2)}, {vr(b+16+j,2)}, {vr(b+24+j,2)}"]
        r += [f"v_pk_add_f32 {vr(b+j,2)}, {vr(b+j,2)}, {vr(b+16+j,2)}" for j in range(0, 8, 2)]
    else:
        for o in (8, 16, 24):
            r += [f"v_add_f32 v{b+j}, v{b+j}, v{b+o+j}" for j in range(8)]
    r += [f"v_mul_f32 v{b+8+j}, {hx(f2u(-1.4426950408889634))}, v{b+j}" for j in range(8)]
    r += [f"v_exp_f32 v{b+8+j}, v{b+8+j}" for j in range(8)]
    if pk:
        r += [f"v_pk_mul_f32 {vr(b+j,2)}, {vr(b+j,2)}, {vr(YV+8*p+j,2)}" for j in range(0, 8, 2)]
        r += [f"v_pk_add_f32 {vr(b+8+j,2)}, {vr(b+8+j,2)}, 1.0 op_sel_hi:[1,0]" for j in range(0, 8, 2)]
    else:
        r += [f"v_mul_f32 v{b+j}, v{b+j}, v{YV+8*p+j}" for j in range(8)]
        r += [f"v_add_f32 v{b+8+j}, 1.0, v{b+8+j}" for j in range(8)]
    r += [f"v_rcp_f32 v{b+8+j}, v{b+8+j}" for j in range(8)]
    if pk:
        r += [f"v_pk_fma_f32 {vr(b+j,2)}, {vr(b+j,2)}, {vr(b+8+j,2)}, {vr(XF+8*p+j,2)}" for j in range(0, 8, 2)]
    else:
        r += [f"v_fma_f32 v{b+j}, v{b+j}, v{b+8+j}, v{XF+8*p+j}" for j in range(8)]
    r += [f"v_cvt_pk_bf16_f32 v{b+16+j}, v{b+2*j}, v{b+2*j+1}" for j in range(4)]
    r.append(VM(f"buffer_store_dwordx4 {vr(b+16,4)}, v{vXO}, {srd(rOUT)}, s{sXO+p} offen"))
    return r


def gemm2(a):
    side = [[] for _ in range(112)]

    def place(items, n0, n1):
        for g, l in enumerate(spread(items, 112, 2 * n0, 2 * n1)):
            side[g] += l

    place(sum((wd_reads(g) for g in range(9, 14)), []), 0, 10)
    place([VM(f"buffer_load_dwordx4 {vr(XR+4*p,4)}, v{vXO}, {srd(rX)}, s{sXO+p} offen") for p in range(2)] +
          [VM(f"buffer_load_dwordx2 {vr(SR+2*p,2)}, v{vSO}, {srd(rWS)}, s{sSO+p} offen {SC}", "xs") for p in range(2)], 0, 4)
    NF = int(OPT.get("nf", 8))
    place([[WAIT("y_st"), "v_mov_b32 v4, 1", VM(f"buffer_store_dword v4, v{vM0}, {srd(rWS)}, s{sF2} offen {SC}")]], NF, NF + 1)
    NY = int(OPT.get("ny", 16))
    place([VM(LD_Y, "p_y")], NY, NY + 1)
    xs = [WAIT("xs")]
    for p in range(2):
        xs.append(f"v_rcp_f32 v{SR+2*p+1}, v{SR+2*p+1}")
        for j in range(4):
            xs += [f"v_lshlrev_b32 v{XF+8*p+2*j}, 16, v{XR+4*p+j}", f"v_and_b32 v{XF+8*p+2*j+1}, 0xffff0000, v{XR+4*p+j}"]
        xs.append(f"v_mul_f32 v{SR+2*p}, v{SR+2*p}, v{SR+2*p+1}")
    xs += [f"v_fma_f32 v{24+8*p+j}, v{XF+8*p+j}, v{SR+2*p+1}, -v{SR+2*p}" for p in range(2) for j in range(8)]
    xs += [f"v_mov_b32 v{YV+j}, 0" for j in range(16)]
    place(xs, 18, 27)
    place([[WAIT("p_y"), lambda e: poll(e, LD_Y, "1"), f"s_mov_b32 m0, s{sYM}", f"s_add_u32 s4, s{sYD}, {32768 - YP}",
            VM(f"buffer_load_dwordx4 v{vYD}, {srd(rWS)}, s{sYD} offen {SC} lds")],
           VM(f"buffer_load_dwordx4 v{vYD}, {srd(rWS)}, s4 offen offset:{YP} {SC} lds", "y_dma")], NY + 10, NY + 11)
    place(part_writes(0), 30, 34)
    NB = NY + 22
    pre1, rd1 = part_reads(1)
    place([[WAIT("y_dma", "pw0"), "s_barrier"]] + part_reads(0)[1] +
          [DS(f"ds_read_u16_d16_hi v{YV+8*p+j}, v{vYG+p} offset:{j*128}", "yg") for p in range(2) for j in range(8)], NB, NB + 3)
    fin = [WAIT("yg")] + [f"v_mul_f32 v{YV+j}, v{YV+j}, v{24+j}" for j in range(16)] + pre1 + finalize(0, False)
    place(fin, NB + 4, 56)
    a.put(WAIT("wd13"))
    for n in range(56):
        st, ks = divmod(n, 28)
        w = [f"h{n}"] + ([f"wr{ks // 2}"] if st == 0 and ks >= 18 and ks % 2 == 0 else [])
        a.put(WAIT(*w))
        ms = []
        for u in range(2):
            acc = vr(ACC2 + (st * 2 + u) * 16, 16)
            ms.append(f"v_mfma_f32_32x32x16_bf16 {acc}, {ar(ks*8+u*4,4)}, {vr(HR + 4*(n % NH), 4)}, {'0' if ks == 0 else acc}")
        nxt = h_load(n + NH - 1) if n + NH - 1 < 56 else []
        a.weave(ms, [nxt + side[2 * n], side[2 * n + 1]])
    a.put([stamp(10), "s_nop 9"] + part_writes(1) + [WAIT("pw1"), "s_barrier"] + rd1 + [WAIT("pr1")] + finalize(1, True))


def build():
    a = Em()
    entry(a)
    a(f"s_cmp_ge_u32 s{sIDX}, 28\ns_cbranch_scc1 L_service")
    snap = (a.nvm, a.nds)
    gemm_role(a)
    a("L_join:")
    conv(a)
    gemm2(a)
    if STAMP:
        a.put([stamp(11), WAIT("allvm"), stamp(15)])
        a(f"""
        s_add_u32 s{rWS}, s{rWS}, {WS_TS}
        s_addc_u32 s{rWS+1}, s{rWS+1}, 0
        s_lshl_b32 s4, s2, 3
        s_add_u32 s4, s4, s{sW}
        s_lshl_b32 s4, s4, 7
        v_lshlrev_b32 v4, 2, v{vLANE}
        s_mov_b64 exec, 0xffffffff
        buffer_store_dword v{vST}, v4, {srd(rWS)}, s4 offen
        """)
    if "diag" in OPT:
        k = int(OPT["diag"])
        a(f"""
        v_readlane_b32 s4, v{vST}, 30
        v_readlane_b32 s5, v{vST}, {16 + k}
        s_nop 3
        s_cmp_eq_u32 s5, 0
        s_cselect_b32 s5, s4, s5
        s_cmp_eq_u32 s2, {OPT.get("diagwg", 40)}
        s_cselect_b32 s5, s5, s4
        s_add_u32 s5, s5, 4000
        L_diag:
        s_memrealtime s[94:95]
        s_waitcnt lgkmcnt(0)
        s_sub_u32 s6, s94, s5
        s_cmp_lt_i32 s6, 0
        s_cbranch_scc1 L_diag
        """)
    a("L_exit:\ns_endpgm\nL_service:")
    a.nvm, a.nds = snap
    service_role(a)
    a("s_branch L_join")
    for t in a.tail:
        a(t)
    a("L_end:\ns_endpgm")
    hdr = open("cdna_kernels/" + NAME + ".s.ref").read().split("; Override launch")[0]
    t = hdr + f"; @launch grid=(256,1,1) block=(256,1,1) lds={LDS_BYTES}\n" + HEAD + kernel_text(KERNEL, a.text())
    t += '.section .rodata,"a"\n' + descriptor(KERNEL, vgpr=512, accum=256)
    return t


if __name__ == "__main__":
    open(sys.argv[1], "w").write(build())
```

```python
from asmlib import Asm
import struct

NAME = "recurrent_scan__ssm_conv_h3__glu_gated_geglu__prompt"

S, D, F = 2048, 512, 1792
X_BYTES = S * D * 2
W_BYTES = D * F * 2

WS_H = 0
WS_H_BYTES = 64 * 112 * 1024
WS_KV = 8 << 20
KVP_COPY = 4224
WS_KV_BYTES = 512 * KVP_COPY
WS_Y = 13 << 20
WS_Y_BYTES = 512 * KVP_COPY
WS_ST = (15 << 20) + (256 << 10)
WS_ST_BYTES = 2048 * 16
WS_CS = (15 << 20) + (320 << 10)
WS_FL = (15 << 20) + (512 << 10)
WS_TS = 16 << 20

P_Q, P_K, P_V, P_SH, P_SK, P_SD, P_BX, P_WG = 64, 66, 68, 70, 72, 74, 76, 78
P_WU, P_WD, P_OUT, P_DBG, P_WS = 80, 82, 84, 86, 88

sXCD, sIDX, sW = 90, 91, 92
vLANE = 1
vL16 = 2

LDS_BYTES = 163840
SLOT = 49152


def f2u(x):
    return struct.unpack("<I", struct.pack("<f", x))[0]


def hx(x):
    return hex(x & 0xFFFFFFFF)


def vr(a, n=1):
    return f"v{a}" if n == 1 else f"v[{a}:{a+n-1}]"


def ar(a, n=1):
    return f"a{a}" if n == 1 else f"a[{a}:{a+n-1}]"


def sr(a, n=1):
    return f"s{a}" if n == 1 else f"s[{a}:{a+n-1}]"


def prologue(a, exit_label):
    a(f"""
    s_cmp_ge_u32 s2, 256
    s_cbranch_scc1 {exit_label}
    s_load_dwordx16 s[64:79], s[0:1], 0
    s_load_dwordx8 s[80:87], s[0:1], 64
    s_load_dwordx2 s[88:89], s[0:1], 96
    v_lshrrev_b32 v3, 6, v0
    v_and_b32 v{vLANE}, 63, v0
    v_readfirstlane_b32 s{sW}, v3
    s_and_b32 s{sXCD}, s2, 7
    s_lshr_b32 s{sIDX}, s2, 3
    v_lshlrev_b32 v{vL16}, 4, v{vLANE}
    """)


def srd(a, dst, ptr, nbytes, off=0, off_sgpr=None):
    if off_sgpr is not None:
        a(f"s_add_u32 s{dst}, s{ptr}, s{off_sgpr}\ns_addc_u32 s{dst+1}, s{ptr+1}, 0")
        if off:
            a(f"s_add_u32 s{dst}, s{dst}, {hx(off)}\ns_addc_u32 s{dst+1}, s{dst+1}, 0")
    elif off:
        a(f"s_add_u32 s{dst}, s{ptr}, {hx(off)}\ns_addc_u32 s{dst+1}, s{ptr+1}, 0")
    else:
        a(f"s_mov_b32 s{dst}, s{ptr}\ns_mov_b32 s{dst+1}, s{ptr+1}")
    a(f"s_mov_b32 s{dst+2}, {hx(nbytes)}\ns_mov_b32 s{dst+3}, 0x20000")


def weave(a, anchors, fillers):
    for i, m in enumerate(anchors):
        a(m)
        if i < len(fillers):
            for f in fillers[i]:
                a(f)


def spread(items, ngaps, first=0, last=None):
    last = ngaps if last is None else last
    out = [[] for _ in range(ngaps)]
    n = last - first
    for i, it in enumerate(items):
        out[first + i * n // len(items)].append(it)
    return out


def merge(*fl):
    n = max(len(f) for f in fl)
    return [sum((f[i] if i < len(f) else [] for f in fl), []) for i in range(n)]
```

```python
import sys
from common import (NAME, S, D, F, X_BYTES, W_BYTES, WS_H, WS_KV, WS_Y, WS_ST, WS_FL, WS_TS, LDS_BYTES, SLOT, KVP_COPY,
                    f2u, hx, vr, ar, spread, merge)
from asmlib import HEAD, kernel_text, descriptor
from emit import Em, VM, DS, WAIT, lines

OPT = dict(x[2:].split("=") if "=" in x else (x[2:], "1") for x in sys.argv if x.startswith("--"))
STAMP = "stamp" in OPT
KERNEL = NAME + "_kernel"
WS_BYTES = 16 << 20
SC = "sc1"

rX, rW, rWS, rWD, rSK, rOUT, rDBG, rV = 8, 12, 16, 20, 24, 28, 32, 36
pSD, pSH, pKV = 40, 42, 80
sXM, sWM, sXK, sWK, sHS = 44, 45, 46, 47, 48
sF1, sF2, sPH, sPY, sPK = 56, 57, 58, 59, 60
sDM, sDK = 61, 62
sUM, sHM, sKVO, sSKO, sYS = 63, 64, 65, 66, 67
sYD, sYM, sXO, sSO, sHL, sG1S, sMH, sSPIN = 68, 69, 70, 72, 74, 76, 77, 78
sRB, sFS, sT2, sCT = 84, 85, 86, 87
sDE, sHE = 88, 82
sXCD, sIDX, sW = 90, 91, 92
srd = lambda r: f"s[{r}:{r+3}]"

vLANE, vL16, vST = 1, 2, 3
vXD, vWD, vXA, vWA, vCS, vSEL, vMS, vGC = 8, 16, 20, 24, 28, 32, 36, 40
vCA, vG1S = 43, 47
vDD, vDA, vUA, vHA, vZU, vZH, vRW, vRR, vDT, vL8, vM0, vDV = 48, 52, 54, 55, 56, 57, 58, 59, 60, 61, 62, 63
vYD, vXO, vSO, vYG, vPW, vPR, vFH, vFY, vFK, vFD, vPOLL = 112, 113, 114, 115, 117, 121, 123, 124, 125, 126, 127
FR = [64, 88]
ACC1 = 128

US, HS = 4640, 4464
CH_LDS = 4 * US + HS + 4224 + 16
CONV_BASE = 2 * SLOT + 16
YB, YP = 155520, 1040
CSB = YB
WDW = 12288
KB, KVP = 0, 1056
VB = 9 * KVP
KVT = 18 * KVP
FL_H, FL_Y, FL_K = WS_FL, WS_FL + 131072, WS_FL + 262144

C1 = -2.0 * 0.7978845608028654 * 1.4426950408889634
C2 = C1 * 0.044715


def stamp(n, g1=False):
    mode = "g1" if "g1st" in OPT else ("ge" if "gest" in OPT else False)
    g1 = "g1" if g1 is True else g1
    keep = (0, 1, 2, 15) if mode == "g1" else (0, 1, 2, 3, 4, 15)
    if not STAMP or (mode != g1 and (g1 or n not in keep)):
        return None
    return f"""
    s_memrealtime s[94:95]
    s_memtime s[96:97]
    s_waitcnt lgkmcnt(0)
    v_writelane_b32 v{vST}, s96, {n}
    v_writelane_b32 v{vST}, s94, {16 + n}
    """ + (f"v_writelane_b32 v{vST}, s100, 14\nv_writelane_b32 v{vST}, s98, 30" if n == 0 else "")


def poll(a, load, want):
    if "x_nokvpoll" in OPT and load == LD_KV:
        return
    slow, back = a.label("slow"), a.label("back")
    a(f"v_cmp_gt_u32 vcc, {want}, v{vPOLL}\ns_cbranch_vccnz {slow}\n{back}:")
    a.tail.append(f"""
    {slow}:
    s_mov_b32 s{sSPIN}, 0x10000
    {slow}_l:
    {load}
    s_sub_u32 s{sSPIN}, s{sSPIN}, 1
    s_cmp_eq_u32 s{sSPIN}, 0
    s_waitcnt vmcnt(0)
    s_cbranch_scc1 {back}
    v_cmp_gt_u32 vcc, {want}, v{vPOLL}
    s_cbranch_vccnz {slow}_l
    s_branch {back}
    """)


LD_INIT = f"buffer_load_dword v{vPOLL}, v{vFD}, {srd(rDBG)}, 0 offen {SC}"
LD_KV = f"buffer_load_dword v{vPOLL}, v{vFK}, {srd(rWS)}, s{sPK if 'x_nokvpoll' not in OPT else sSO} offen {SC}"
LD_H = f"buffer_load_dword v{vPOLL}, v{vFH}, {srd(rWS)}, s{sPH} offen {SC}"
LD_Y = f"buffer_load_dword v{vPOLL}, v{vFY}, {srd(rWS)}, s{sPY} offen {SC}"


def entry(a):
    if STAMP:
        a("s_memrealtime s[98:99]\ns_memtime s[100:101]")
    a(f"""
    s_load_dwordx2 s[{rX}:{rX+1}], s[0:1], 0
    s_load_dwordx4 s[36:39], s[0:1], 56
    s_load_dwordx2 s[{rWS}:{rWS+1}], s[0:1], 96
    s_load_dwordx4 s[{pKV}:{pKV+3}], s[0:1], 8
    s_getpc_b64 s[4:5]
    L_pc:
    s_cmp_ge_u32 s2, 256
    s_cbranch_scc1 L_exit
    s_lshr_b32 s{sIDX}, s2, 3
    v_lshrrev_b32 v4, 4, v0
    s_and_b32 s6, s{sIDX}, 15
    s_lshl_b32 s6, s6, 11
    v_lshl_add_u32 v4, v4, 7, s6
    v_min_u32 v4, L_end-L_pc-4, v4
    v_mov_b32 v5, s5
    v_add_co_u32 v4, vcc, s4, v4
    v_lshrrev_b32 v6, 6, v0
    v_and_b32 v{vLANE}, 63, v0
    v_addc_co_u32 v5, vcc, 0, v5, vcc
    """)
    if "nocodepf" not in OPT:
        a.put(VM(f"global_load_dword v{vPOLL}, v[4:5], off"))
    a(f"""
    v_readfirstlane_b32 s{sW}, v6
    s_load_dwordx2 s[{rWD}:{rWD+1}], s[0:1], 72
    s_load_dwordx2 s[{rSK}:{rSK+1}], s[0:1], 32
    s_load_dwordx2 s[{rOUT}:{rOUT+1}], s[0:1], 80
    s_load_dwordx2 s[{rDBG}:{rDBG+1}], s[0:1], 88
    s_load_dwordx2 s[{pSD}:{pSD+1}], s[0:1], 40
    s_load_dwordx2 s[{pSH}:{pSH+1}], s[0:1], 24
    s_and_b32 s{sXCD}, s2, 7
    v_lshlrev_b32 v{vL16}, 4, v{vLANE}
    s_mov_b32 s{rX+2}, {X_BYTES}
    s_mov_b32 s{rX+3}, 0x20000
    s_mov_b32 s{rW+3}, 0x20000
    s_and_b32 s4, s{sXCD}, 1
    s_lshr_b32 s5, s{sXCD}, 1
    s_lshl_b32 s{sRB}, s4, 2
    s_add_u32 s{sT2}, s{sRB}, s5
    s_lshl_b32 s6, s{sT2}, 5
    s_add_u32 s6, s6, s{sIDX}
    s_lshl_b32 s6, s6, 2
    s_add_u32 s6, s6, s{sW}
    s_lshl_b32 s79, s6, 11
    v_lshrrev_b32 v4, 5, v{vLANE}
    v_and_b32 v5, 31, v{vLANE}
    v_lshlrev_b32 v96, 10, v4
    v_lshl_add_u32 v96, v5, 4, v96
    v_lshrrev_b32 v6, 3, v{vLANE}
    v_and_b32 v7, 7, v{vLANE}
    """)
    if STAMP:
        a(f"v_mov_b32 v{vST}, 0")


def stats_loads():
    return [VM(f"buffer_load_dwordx4 v[64:67], v96, {srd(rX)}, s79 offen"),
            VM(f"buffer_load_dwordx4 v[68:71], v96, {srd(rX)}, s79 offen offset:512", "stats_ld")]


def reduce32(v, t):
    r = []
    for ctl in ("quad_perm:[1,0,3,2]", "quad_perm:[2,3,0,1]", "row_half_mirror", "row_mirror"):
        r += ["s_nop 1", f"v_add_f32_dpp v{v}, v{v}, v{v} {ctl} row_mask:0xf bank_mask:0xf"]
    return r + [f"v_mov_b32 v{t}, v{v}", "s_nop 1", f"v_permlane16_swap_b32 v{t}, v{v}", "s_nop 0",
                f"v_add_f32 v{v}, v{t}, v{v}"]


def rnd(v):
    return [f"v_cvt_pk_bf16_f32 v{v}, v{v}, v{v}", f"v_and_b32 v{v}, 0xffff0000, v{v}"]


def stats_compute(vf1=vM0):
    r = [WAIT("stats_ld")]
    for j in range(8):
        r += [f"v_lshlrev_b32 v{72+2*j}, 16, v{64+j}", f"v_and_b32 v{73+2*j}, 0xffff0000, v{64+j}"]
    r.append("v_pk_add_f32 v[88:89], v[72:73], v[74:75]")
    r += [f"v_pk_add_f32 v[88:89], v[88:89], v[{72+2*j}:{73+2*j}]" for j in range(2, 8)]
    r += ["v_add_f32 v88, v88, v89"] + reduce32(88, 89) + [f"v_mul_f32 v88, {hx(f2u(1.0/512))}, v88"]
    r += [f"v_pk_add_f32 v[{72+2*j}:{73+2*j}], v[{72+2*j}:{73+2*j}], v[88:89] op_sel_hi:[1,0] neg_lo:[0,1] neg_hi:[0,1]"
          for j in range(8)]
    r.append("v_pk_mul_f32 v[90:91], v[72:73], v[72:73]")
    r += [f"v_pk_fma_f32 v[90:91], v[{72+2*j}:{73+2*j}], v[{72+2*j}:{73+2*j}], v[90:91]" for j in range(1, 8)]
    r += ["v_add_f32 v89, v90, v91"] + reduce32(89, 90) + [f"v_mul_f32 v89, {hx(f2u(1.0/512))}, v89"]
    r += rnd(88) + rnd(89) + [f"v_add_f32 v89, {hx(f2u(1e-5))}, v89"] + rnd(89) + ["v_sqrt_f32 v89, v89"]
    r += lines(f"""
    v_cmp_eq_u32 vcc, 0, v5
    s_lshr_b32 s79, s79, 7
    s_add_u32 s79, s79, {WS_ST}
    v_lshlrev_b32 v90, 3, v4
    v_cndmask_b32 v90, -1, v90, vcc
    v_mov_b32 v91, 0
    """) + rnd(89)
    r += [VM(f"buffer_store_dwordx2 v[88:89], v90, {srd(rWS)}, s79 offen {SC}"),
          VM(f"buffer_store_dword v91, v{vf1}, {srd(rWS)}, s{sF1} offen {SC}"),
          VM(f"buffer_store_dword v91, v{vM0}, {srd(rWS)}, s{sF2} offen {SC}", "init_st")]
    return r


def init_signal():
    return lines(f"""
    s_and_b32 s4, s2, 1
    s_lshl_b32 s4, s4, 7
    s_cmp_eq_u32 s{sW}, 0
    s_cselect_b32 s4, s4, 0x1000
    v_mov_b32 v4, 1
    v_add_u32 v5, s4, v{vM0}
    """) + [VM(f"buffer_atomic_add v4, v5, {srd(rDBG)}, 0 offen {SC}")]


def setup_common(part=None):
    r = setup_all()
    cut = r.index(f"s_add_u32 s{sF2}, s6, {FL_Y}") + 1
    if part == 0:
        return r[:cut]
    if part == 1:
        redo = r.index(f"s_lshr_b32 s4, s{sW}, 1")
        return [f"v_lshrrev_b32 v4, 5, v{vLANE}", f"v_and_b32 v5, 31, v{vLANE}"] + r[redo:]
    return r


def setup_all():
    r = []
    for q, n in ((rWS, WS_BYTES), (rWD, W_BYTES), (rSK, X_BYTES), (rOUT, X_BYTES), (rDBG, 256)):
        r += [f"s_mov_b32 s{q+2}, {n}", f"s_mov_b32 s{q+3}, 0x20000"]
    r += lines(f"""
    v_cmp_eq_u32 vcc, 0, v{vLANE}
    s_lshl_b32 s{sT2}, s{sT2}, 2
    s_lshr_b32 s4, s{sIDX}, 3
    v_bfrev_b32 v{vM0}, 1
    v_cndmask_b32 v{vM0}, v{vM0}, 0, vcc
    s_add_u32 s{sT2}, s{sT2}, s4
    s_and_b32 s{sCT}, s{sIDX}, 7
    s_lshr_b32 s4, s4, 1
    s_and_b32 s5, s{sXCD}, 1
    s_lshl_b32 s5, s5, 1
    s_add_u32 s4, s4, s5
    s_lshl_b32 s4, s4, 2
    s_add_u32 s4, s4, s{sW}
    s_lshl_b32 s4, s4, 10
    s_add_u32 s{sPK}, s4, {FL_K}
    s_lshr_b32 s4, s{sW}, 1
    s_and_b32 s{sMH}, s{sW}, 1
    s_lshl_b32 s5, s{sXCD}, 5
    s_add_u32 s5, s5, s{sIDX}
    s_lshl_b32 s5, s5, 1
    s_add_u32 s5, s5, s4
    s_lshl_b32 s6, s{sMH}, 9
    s_add_u32 s6, s6, s5
    s_lshl_b32 s6, s6, 7
    s_add_u32 s{sF2}, s6, {FL_Y}
    s_lshl_b32 s{sSKO}, s5, 12
    s_lshl_b32 s6, s{sMH}, 11
    s_mul_i32 s{sYS}, s5, {KVP_COPY}
    s_add_u32 s{sKVO}, s{sYS}, {WS_KV}
    s_add_u32 s89, s{sKVO}, 2
    s_add_u32 s{sYS}, s{sYS}, s6
    s_add_u32 s{sYS}, s{sYS}, {WS_Y}
    s_lshl_b32 s5, s5, 1
    v_mov_b32 v97, s5
    s_mul_i32 s4, s4, {CH_LDS}
    s_add_u32 s4, s4, {CONV_BASE}
    s_mul_i32 s5, s{sMH}, {2*US + 4}
    s_sub_u32 s{sUM}, s4, s5
    s_mul_i32 s5, s{sMH}, {HS + 8}
    s_add_u32 s{sHM}, s4, s5
    s_add_u32 s{sHM}, s{sHM}, {4*US}
    v_lshl_add_u32 v{vZU}, v{vLANE}, 2, s{sUM}
    v_min_u32 v{vZH}, 29, v{vLANE}
    v_lshl_add_u32 v{vZH}, v{vZH}, 2, s{sHM}
    v_lshlrev_b32 v{vL8}, 3, v{vLANE}
    s_sub_u32 s5, s4, s6
    s_add_u32 s5, s5, {3*US + 4088 - 3*512}
    v_sub_u32 v{vDT}, s5, v{vL8}
    s_lshl_b32 s5, s{sMH}, 8
    s_add_u32 s4, s4, s5
    v_lshrrev_b32 v98, 4, v{vLANE}
    v_and_b32 v{vFK}, 3, v{vLANE}
    v_bfe_u32 v99, v{vLANE}, 2, 2
    v_mul_u32_u24 v{vUA}, {US}, v{vFK}
    v_lshlrev_b32 v100, 7, v99
    v_sub_u32 v{vUA}, v{vUA}, v100
    v_lshl_add_u32 v{vUA}, v98, 4, v{vUA}
    s_add_u32 s5, s4, {248*16 - 7*512}
    v_add_u32 v{vUA}, s5, v{vUA}
    v_and_b32 v{vFD}, 1, v{vLANE}
    v_mul_u32_u24 v{vHA}, {HS + 16}, v{vFD}
    v_bfe_u32 v101, v{vLANE}, 1, 3
    v_add_u32 v101, v101, v98
    v_lshl_add_u32 v{vHA}, v101, 4, v{vHA}
    s_add_u32 s5, s4, {4*US}
    v_add_u32 v{vHA}, s5, v{vHA}
    v_lshlrev_b32 v{vFD}, 7, v4
    s_mul_i32 s{sDM}, s{sW}, {WDW}
    s_add_u32 s5, s{sDM}, 8192
    v_add_u32 v{vRW}, s5, v{vL16}
    s_xor_b32 s5, s{sW}, 1
    s_mul_i32 s5, s5, {WDW}
    s_add_u32 s5, s5, 8192
    v_add_u32 v{vRR}, s5, v{vL16}
    v_and_b32 v101, 1, v98
    v_lshlrev_b32 v102, 2, v101
    v_xor_b32 v102, v7, v102
    v_lshlrev_b32 v102, 4, v102
    v_lshl_add_u32 v{vDD}, v6, 10, v102
    v_add_u32 v{vDD+1}, {8192-1024}, v{vDD}
    v_add_u32 v{vDD+2}, {2*(8192-1024)}, v{vDD}
    v_add_u32 v{vDD+3}, {3*(8192-1024)}, v{vDD}
    s_and_b32 s6, s{sT2}, 3
    s_mul_i32 s6, s6, 7
    s_lshr_b32 s6, s6, 1
    s_xor_b32 s7, s{sCT}, 3
    s_min_u32 s7, s7, 1
    s_sub_u32 s7, 1, s7
    s_mul_i32 s6, s6, s7
    s_mul_i32 s7, s{sXCD}, {int(OPT.get("xrot", 7))}
    s_lshr_b32 s7, s7, 2
    s_add_u32 s93, s6, s7
    s_sub_u32 s7, s93, 14
    s_min_u32 s93, s93, s7
    s_mul_i32 s{sDK}, s{sW}, {448*1024}
    s_lshl_b32 s5, s{sCT}, 7
    s_add_u32 s{sDK}, s{sDK}, s5
    s_add_u32 s{sDE}, s{sDK}, {13*32768}
    s_lshl_b32 s6, s93, 15
    s_add_u32 s{sDK}, s{sDK}, s6
    v_lshl_add_u32 v{vDA}, v4, 9, v100
    v_lshl_add_u32 v{vDA}, v101, 5, v{vDA}
    v_lshl_add_u32 v{vDA}, v{vFK}, 3, v{vDA}
    v_and_b32 v102, 1, v6
    v_lshl_add_u32 v{vDA}, v102, 6, v{vDA}
    v_add_u32 v{vDA}, s{sDM}, v{vDA}
    v_xor_b32 v{vDA+1}, 64, v{vDA}
    v_lshlrev_b32 v{vFK}, 7, v6
    s_and_b32 s6, s{sCT}, 1
    s_lshl_b32 s7, s{sT2}, 1
    s_add_u32 s7, s7, s6
    s_lshl_b32 s{sXO}, s7, 15
    s_add_u32 s{sXO}, s{sXO}, s5
    s_xor_b32 s{sXO+1}, s{sXO}, 0x8000
    s_lshl_b32 s{sSO}, s7, 8
    s_add_u32 s{sSO}, s{sSO}, {WS_ST}
    s_xor_b32 s{sSO+1}, s{sSO}, 0x100
    s_mul_i32 s4, s{sW}, {28*1024}
    s_mul_i32 s{sHL}, s7, {112*1024}
    s_add_u32 s{sHL}, s{sHL}, s4
    s_xor_b32 s7, s7, 1
    s_mul_i32 s{sHL+1}, s7, {112*1024}
    s_add_u32 s{sHL+1}, s{sHL+1}, s4
    s_add_u32 s{sHE}, s{sHL}, {13*2048}
    s_add_u32 s{sHE+1}, s{sHL+1}, {13*2048}
    s_lshl_b32 s4, s93, 11
    s_add_u32 s{sHL}, s{sHL}, s4
    s_add_u32 s{sHL+1}, s{sHL+1}, s4
    s_lshl_b32 s4, s{sW}, 3
    v_add_u32 v102, s4, v6
    v_lshlrev_b32 v{vSO}, 3, v102
    v_lshlrev_b32 v103, 4, v7
    v_lshl_add_u32 v{vXO}, v102, 10, v103
    v_mul_u32_u24 v{vYD}, {KVP_COPY}, v6
    v_add_u32 v{vYD}, v{vYD}, v103
    s_lshl_b32 s4, s{sCT}, 2
    s_add_u32 s4, s4, s{sW}
    s_mul_i32 s{sYD}, s4, {16*KVP_COPY}
    s_lshl_b32 s7, s{sT2}, 7
    s_add_u32 s{sYD}, s{sYD}, s7
    s_add_u32 s{sYD}, s{sYD}, {WS_Y}
    s_mul_i32 s{sPH}, s{sW}, {7*128}
    s_lshl_b32 s7, s7, 5
    s_add_u32 s{sPH}, s{sPH}, s7
    s_add_u32 s{sPH}, s{sPH}, {FL_H}
    s_lshl_b32 s4, s4, 11
    s_lshr_b32 s7, s{sT2}, 4
    s_lshl_b32 s7, s7, 16
    s_add_u32 s4, s4, s7
    s_add_u32 s{sPY}, s4, {FL_Y}
    s_mul_i32 s{sYM}, s{sW}, {2*YP}
    s_add_u32 s{sYM}, s{sYM}, {YB}
    v_mul_u32_u24 v103, {YP}, v7
    v_lshl_add_u32 v103, v102, 1, v103
    s_lshl_b32 s6, s6, 6
    s_add_u32 s4, s6, {YB}
    v_add_u32 v{vYG}, s4, v103
    s_sub_u32 s4, {YB + 64}, s6
    v_add_u32 v{vYG+1}, s4, v103
    v_xor_b32 v103, v4, v7
    v_lshlrev_b32 v103, 4, v103
    v_lshl_add_u32 v103, v5, 8, v103
    v_add_u32 v{vPW}, s{sDM}, v103
    v_xor_b32 v{vPW+1}, 32, v{vPW}
    v_xor_b32 v{vPW+2}, 64, v{vPW}
    v_xor_b32 v{vPW+3}, 96, v{vPW}
    v_lshlrev_b32 v103, 1, v7
    v_xor_b32 v103, v103, v6
    v_lshlrev_b32 v103, 4, v103
    v_lshl_add_u32 v{vPR}, v102, 8, v103
    v_xor_b32 v{vPR+1}, 16, v{vPR}
    v_min_u32 v{vFH}, 6, v6
    v_lshlrev_b32 v{vFH}, 7, v{vFH}
    v_lshrrev_b32 v{vFY}, 2, v{vLANE}
    v_lshlrev_b32 v{vFY}, 7, v{vFY}
    """)
    r.append(VM(f"global_load_short_d16_hi v{vDV}, v97, s[{pSD}:{pSD+1}]"))
    return r


WD_SLOT = {0: 0, 1: 1, 2: 2, 3: 3, 4: 4, 5: 5, 6: 0, 7: 1, 8: 2, 9: 3, 10: 4, 11: 5, 12: 0, 13: 1}


def wd_off(g):
    s = WD_SLOT[g]
    return (s // 3) * SLOT + (s % 3) * 4096


def wd_dma(g):
    r = []
    for j in range(4):
        it = [VM(f"buffer_load_dwordx4 v{vDD+j}, {srd(rWD)}, s{sDK} offen offset:{j*1024} lds", f"wd{g}" if j == 3 else None)]
        if j == 0:
            it = [f"s_add_u32 m0, s{sDM}, {wd_off(g)}", "s_nop 0"] + it
        if j == 3:
            it += [f"s_cmp_eq_u32 s{sDK}, s{sDE}", f"s_cselect_b32 s7, {hx(-14*32768)}, 0",
                   f"s_add_u32 s{sDK}, s{sDK}, 32768", f"s_add_u32 s{sDK}, s{sDK}, s7"]
        r.append(it)
    return r


def wd_reads(g):
    r = []
    for k in range(2):
        for u in range(2):
            for e in range(2):
                last = k == 1 and u == 1 and e == 1
                r.append(DS(f"ds_read_b64_tr_b16 {ar((2*g+k)*8 + u*4 + 2*e, 2)}, v{vDA+u} offset:{wd_off(g) + k*2048 + e*1024}",
                            f"wr{g}" if last else None))
    return r


def conv_dma():
    r = []
    for m0, rs, so, sc in ((f"s{sUM}, {3*US}", rWS, sKVO, SC), (f"s{sUM}, {2*US}", rWS, 89, OPT.get("mispol", SC).replace("none", "")), (f"s{sHM}, 120", rSK, sSKO, "")):
        for j in range(4):
            it = [VM(f"buffer_load_dwordx4 v{vL16}, {srd(rs)}, s{so} offen offset:{j*1024} {sc} lds", "cv_dma")]
            if j == 0:
                it = [f"s_add_u32 m0, {m0}", "s_nop 0"] + it
            r.append(it)
    return r


def conv_zero(z):
    return [DS(f"ds_write2st64_b32 v{vZU}, v{z}, v{z} offset0:0 offset1:1".replace(f"v{vZU}", "v4")),
            DS(f"ds_write2st64_b32 v5, v{z}, v{z} offset0:0 offset1:1"),
            DS(f"ds_write_b32 v{vZH}, v{z}", "cv_zero")]


def conv_zero_addr():
    return [f"v_add_u32 v4, {3*US + 4096}, v{vZU}", f"v_add_u32 v5, {2*US + 4096}, v{vZU}"]


CUF = [("v", 128), ("a", 160)]
CHF = [("v", 160), ("a", 192)]
CACC = 64
rg = lambda kb, o, n: (vr if kb[0] == "v" else ar)(kb[1] + o, n)


def conv_reads(m):
    p, r = m & 1, []
    for j in range(8):
        r.append(DS(f"ds_read_b128 {rg(CUF[p], 4*j, 4)}, v{vUA} offset:{64*m + 512*(7-j)}"))
        r.append(DS(f"ds_read_b128 {rg(CHF[p], 4*j, 4)}, v{vHA} offset:{64*m + 512*j}", f"cf{m}"))
    return r


def g1_dma_setup():
    r = lines(f"""
    s_and_b32 s6, s{sIDX}, 3
    s_add_u32 s{sRB}, s{sRB}, s6
    s_mul_i32 s{sFS}, s5, 7
    s_lshr_b32 s6, s{sIDX}, 2
    s_add_u32 s{sFS}, s{sFS}, s6
    v_lshrrev_b32 v98, 4, v{vLANE}
    s_lshr_b32 s4, s{sW}, 1
    s_and_b32 s6, s{sW}, 1
    v_and_b32 v99, 1, v98
    s_lshl_b32 s7, s4, 2
    v_lshl_or_b32 v99, v99, 1, s7
    v_xor_b32 v99, v7, v99
    v_mul_u32_u24 v100, {F*2}, v6
    v_lshl_add_u32 v99, v99, 4, v100
    s_mul_i32 s6, s6, {32*F*2}
    s_lshl_b32 s7, s{sFS}, 7
    s_add_u32 s6, s6, s7
    v_add_u32 v{vWD}, s6, v99
    v_add_u32 v{vWD+1}, {8*F*2 - 1024}, v{vWD}
    v_add_u32 v{vWD+2}, {2*(8*F*2 - 1024)}, v{vWD}
    v_add_u32 v{vWD+3}, {3*(8*F*2 - 1024)}, v{vWD}
    s_lshl_b32 s{sG1S}, s{sRB}, 2
    s_add_u32 s{sG1S}, s{sG1S}, s{sW}
    s_lshl_b32 s7, s{sG1S}, 16
    v_xor_b32 v99, v7, v98
    v_lshlrev_b32 v99, 4, v99
    v_lshl_add_u32 v99, v6, 10, v99
    v_add_u32 v{vXD}, s7, v99
    v_xor_b32 v99, 64, v{vXD}
    """)
    for j in range(1, 8):
        r.append(f"v_add_u32 v{vXD+j}, {j*8192 - (j%4)*1024}, v{99 if j & 1 else vXD}")
    rot = f"s_lshl_b32 s{sXK}, s{sRB}, 7" if "norot" not in OPT else f"s_mov_b32 s{sXK}, 0"
    r += lines(f"""
    s_lshl_b32 s{sXM}, s{sW}, 13
    s_add_u32 s{sXM}, s{sXM}, {SLOT}
    s_lshl_b32 s{sWM}, s{sW}, 12
    s_add_u32 s{sWM}, s{sWM}, {SLOT + 32768}
    {rot}
    s_mul_i32 s{sWK}, s{sXK}, {F}
    s_mov_b32 s{rW+2}, {W_BYTES}
    s_cmp_eq_u32 s4, 0
    s_waitcnt lgkmcnt(0)
    s_cselect_b32 s{rW}, s36, s38
    s_cselect_b32 s{rW+1}, s37, s39
    """)
    return r


def g1_setup():
    r = lines(f"""
    v_bfe_u32 v98, v{vLANE}, 1, 3
    v_xor_b32 v98, v4, v98
    v_lshlrev_b32 v98, 4, v98
    v_lshl_add_u32 v98, v5, 7, v98
    s_lshl_b32 s4, s{sW}, 13
    s_add_u32 s4, s4, {SLOT}
    v_add_u32 v{vXA}, s4, v98
    v_xor_b32 v{vXA+1}, 32, v{vXA}
    v_xor_b32 v{vXA+2}, 64, v{vXA}
    v_xor_b32 v{vXA+3}, 96, v{vXA}
    v_bfe_u32 v98, v{vLANE}, 4, 1
    v_and_b32 v99, 3, v6
    v_lshlrev_b32 v98, 13, v98
    v_lshl_add_u32 v98, v4, 10, v98
    v_bfe_u32 v100, v{vLANE}, 2, 2
    v_lshl_add_u32 v98, v100, 7, v98
    v_and_b32 v101, 3, v{vLANE}
    v_lshl_add_u32 v98, v101, 3, v98
    v_add_u32 v98, {SLOT + 32768}, v98
    s_lshl_b32 s4, s{sG1S}, 5
    s_add_u32 s4, s4, s{sFS}
    s_lshl_b32 s4, s4, 7
    s_add_u32 s{sF1}, s4, {FL_H}
    s_lshl_b32 s5, s{sFS}, 2
    s_mul_i32 s4, s{sG1S}, 224
    s_add_u32 s4, s4, s5
    """)
    for t in range(4):
        r += lines(f"""
        s_add_u32 s5, s{sW}, {t}
        s_and_b32 s5, s5, 3
        v_xor_b32 v101, s5, v99
        v_lshl_add_u32 v{vWA+t}, v101, 5, v98
        s_add_u32 s5, s5, s4
        s_lshl_b32 s{sHS+t}, s5, 10
        s_add_u32 s{sHS+4+t}, s{sHS+t}, {112*1024}
        """)
    r += lines(f"""
    v_lshrrev_b32 v101, 4, v{vLANE}
    v_cmp_eq_u32 vcc, v100, v101
    s_lshl_b32 s{sG1S}, s{sG1S}, 9
    s_add_u32 s{sG1S}, s{sG1S}, {WS_ST}
    v_mov_b32 v{vSEL}, 0x3f803f80
    v_cndmask_b32 v{vSEL}, 0, v{vSEL}, vcc
    v_mov_b32 v{vSEL+1}, v{vSEL}
    v_mov_b32 v{vSEL+2}, v{vSEL}
    v_mov_b32 v{vSEL+3}, v{vSEL}
    v_lshlrev_b32 v{vG1S}, 3, v5
    s_lshl_b32 s4, s{sW}, 8
    s_add_u32 s4, s4, {CSB}
    v_lshl_add_u32 v{vCA}, v{vLANE}, 2, s4
    """)
    return r


def g1_reads(p, ks):
    r = [DS(f"ds_read_b128 {vr(FR[p], 4)}, v{vXA+ks}")]
    for t in range(4):
        for e in range(2):
            r.append(DS(f"ds_read_b64_tr_b16 {vr(FR[p]+8+4*t+2*e, 2)}, v{vWA+t} offset:{ks*2048+e*512}"))
    r.append(DS(f"ds_read_b128 {vr(FR[p]+4, 4)}, v{vXA+ks} offset:4096", "g1f"))
    return r


def g1_mfmas(p, first=False):
    m = []
    for rt in range(2):
        for t in range(4):
            acc = vr(ACC1 + (rt * 4 + t) * 16, 16)
            m.append(f"v_mfma_f32_32x32x16_bf16 {acc}, {vr(FR[p]+8+4*t, 4)}, {vr(FR[p]+4*rt, 4)}, {'0' if first else acc}")
    return m


def g1_dmas(st):
    d = []
    for j in range(4):
        pre = [f"s_mov_b32 m0, s{sWM}", "s_nop 0"] if j == 0 else []
        d.append(pre + [VM(f"buffer_load_dwordx4 v{vWD+j}, {srd(rW)}, s{sWK} offen offset:{j*1024} lds")])
    for j in range(8):
        pre = [f"s_add_u32 m0, s{sXM}, {j*1024}", "s_nop 0"] if j % 4 == 0 else []
        d.append(pre + [VM(f"buffer_load_dwordx4 v{vXD+j}, {srd(rX)}, s{sXK} offen offset:{(j%4)*1024} lds", f"st{st}")])
    if st < 7:
        delta = SLOT if (st + 2) % 3 else -2 * SLOT
        d[-1] += [f"s_add_u32 s{sXK}, s{sXK}, 128", f"s_and_b32 s{sXK}, s{sXK}, 1023", f"s_mul_i32 s{sWK}, s{sXK}, {F}",
                  f"s_add_u32 s{sXM}, s{sXM}, {hx(delta)}", f"s_add_u32 s{sWM}, s{sWM}, {hx(delta)}"]
    return d


def gemm_role(a):
    a.put(g1_dma_setup())
    a.put(stamp(0))
    d0, d1 = g1_dmas(0), g1_dmas(1)
    n_first = int(OPT.get("nfirst", 5))
    n_late = int(OPT.get("nlate", 4))
    a.put(stats_loads() + d0[:n_first])
    su = g1_setup() + setup_common()
    cut = int(OPT.get("sucut", 190))
    a.put(su[:cut])
    a.put(stamp(1))
    rest = d0[n_first:] + d1[:12 - n_late]
    a.weave(rest, spread(su[cut:] + stats_compute(), len(rest), 0, len(rest) - 1))
    late = d1[12 - n_late:]
    a.put([WAIT("st0"), "s_barrier", stamp(2)])
    a.put(g1_reads(0, 0))
    dma_plan = [3] * 32
    dma_plan[24:32] = [int(c) for c in OPT.get("wdplan", "40404444")]
    assert sum(dma_plan[24:28]) <= 12 and sum(dma_plan[24:32]) == 24
    queue = []
    for st in range(8):
        if st < 6:
            queue += g1_dmas(st + 2)
        else:
            queue += sum((wd_dma(3 * (st - 6) + j) for j in range(3)), [])
        for ks in range(4):
            p = ks & 1
            side = [[] for _ in range(8)]
            nxt, post = [], []
            if ks < 3:
                a.put(WAIT("g1f"))
                nxt = g1_reads(p ^ 1, ks + 1)
            elif st < 7:
                a.put([WAIT(f"st{st+1}", "allds"), "s_barrier", stamp([3, 4, 5, 6, 7, 8, 9][st], True)])
                delta = SLOT if (st + 2) % 3 else -2 * SLOT
                nxt = [f"v_add_u32 v{vXA}, {hx(delta)}, v{vXA}"] + [f"v_add_u32 v{vWA+t}, {hx(delta)}, v{vWA+t}" for t in range(4)]
                nxt += g1_reads(p ^ 1, 0) + [f"v_add_u32 v{vXA+k}, {hx(delta)}, v{vXA+k}" for k in range(1, 4)]
            else:
                a.put(WAIT("g1f"))
            if st == 0 and ks == 0 and late:
                side = spread(late, 8, 0, 5)
            if st == 1 and ks == 1:
                side = spread(init_signal(), 8, 0, 4)
            if st == 5 and ks == 3 and "notouch" not in OPT:
                side = spread(lines(f"""
                v_lshrrev_b32 v4, 2, v{vLANE}
                v_lshlrev_b32 v4, 7, v4
                s_lshl_b32 s5, s{sMH}, 11
                s_add_u32 s5, s5, s{sSKO}
                """), 8, 5, 7)
                post = [VM(f"buffer_load_dword v7, v4, {srd(rSK)}, s5 offen")]
            if st == 5 and ks == 0:
                side[0] = [VM(LD_INIT, "p_init")]
            if st == 6 and ks == 0:
                side[0] = [WAIT("p_init"), lambda e: poll(e, LD_INIT, "0x80")]
                side[1] = [VM(f"buffer_load_dwordx2 {vr(vMS,2)}, v{vG1S}, {srd(rWS)}, s{sG1S} offen {SC}")]
                side[2] = [VM(f"buffer_load_dwordx2 {vr(vMS+2,2)}, v{vG1S}, {srd(rWS)}, s{sG1S} offen offset:256 {SC}", "g1st")]
            if st == 7 and ks == 0:
                c = [WAIT("g1st")]
                for rt in range(2):
                    den, c1 = vMS + 2 * rt + 1, vGC + 4 * rt
                    c += lines(f"""
                    v_rcp_f32 v{c1}, v{den}
                    v_mul_f32 v{c1+2}, v{den}, v{den}
                    v_mul_f32 v{c1+1}, v{c1}, v{c1}
                    v_mul_f32 v{c1+1}, v{c1+1}, v{c1}
                    v_mul_f32 v{c1}, {hx(f2u(C1))}, v{c1}
                    v_mul_f32 v{c1+1}, {hx(f2u(C2))}, v{c1+1}
                    """)
                side = merge(side, spread(c, 8, 1, 8))
            if st == 7 and ks in (1, 2):
                side = spread([WAIT(f"wd{ks-1}")] + wd_reads(ks - 1), 8, 0, 4)
            if st == 7 and ks == 3:
                z = [f"v_mov_b32 v{FR[0]+j}, 0" for j in range(24) if j % 4]
                z += [f"v_cvt_pk_bf16_f32 v{FR[0]+4*rt}, -v{vMS+2*rt}, -v{vMS+2*rt}" for rt in range(2)]
                cs = lines(f"""
                v_cvt_pk_bf16_f32 v6, v{vCS}, v{vCS}
                v_and_b32 v6, 0xffff0000, v6
                v_sub_f32 v6, v{vCS}, v6
                v_cvt_pk_bf16_f32 v{FR[0]+8}, v{vCS}, v6
                """) + [DS(f"ds_write2st64_b32 v{vCA}, v{FR[0]+8}, v{FR[0]+8} offset0:0 offset1:4")]
                side = merge(spread(z, 8, 0, 5), spread(cs, 8, 3, 5), spread([WAIT("wd2")] + wd_reads(2), 8, 5, 8))
            if st == 7 and ks == int(OPT.get("pkv", 1)):
                side[0] = [VM(LD_KV, "p_kv")] + side[0]
            cs_m = f"v_mfma_f32_16x16x32_bf16 {vr(vCS,4)}, {vr(vSEL,4)}, {vr(FR[p]+8,4)}, {'0' if st == 0 and ks == 0 else vr(vCS,4)}"
            if "nocs" not in OPT:
                a.put(cs_m)
            dd = [[] for _ in range(8)]
            cnt = dma_plan[st * 4 + ks]
            for j in range(cnt):
                dd[8 - cnt + j] = queue.pop(0)
            dd[7] = dd[7] + post
            a.weave(g1_mfmas(p, first=(st == 0 and ks == 0)), merge(spread(nxt, 8, 0, 5) if nxt else [[]], side, dd))
    a.put([stamp(3), stamp(12, True), WAIT("allds", "p_kv"), lambda e: poll(e, LD_KV, "1"), "s_barrier"])
    a.put([DS(f"ds_read_b32 v{FR[0]+8+4*t}, v{vCA} offset:{256*t}", "csr") for t in range(1, 4)])
    cd = conv_dma()
    a.put(conv_zero_addr() + [WAIT("csr")])
    a.weave(g1_mfmas(0), [conv_zero(FR[0] + 1) + cd[0]] + cd[1:4] + cd[8:12])
    a.put(stamp(4))
    plan = OPT.get("gplan", "0123----")
    extra = {"c": cd[4:8], "-": [[], [], [], []]}
    extra.update({str(j): [[], cd[4 + j], [], []] for j in range(4)})
    for n in range(8):
        rt, t = n >> 2, n & 3
        c1, acc, T = vGC + 4 * rt, ACC1 + n * 16, 88 + 12 * (t & 1)
        ex = extra[plan[n]]
        E = range(0, 8, 2)
        a.put([f"v_pk_mul_f32 {vr(T+j,2)}, {vr(acc+j,2)}, {vr(acc+j,2)}" for j in E])
        a.put([f"v_pk_fma_f32 {vr(T+j,2)}, {vr(T+j,2)}, {vr(c1,2)}, {vr(c1,2)} op_sel:[0,1,0] op_sel_hi:[1,1,0]" for j in E])
        a.put([f"v_pk_mul_f32 {vr(T+j,2)}, {vr(T+j,2)}, {vr(acc+j,2)}" for j in E] + ex[0])
        a.put([f"v_exp_f32 v{T+j}, v{T+j}" for j in range(8)] + ex[1])
        a.put([f"v_pk_mul_f32 {vr(acc+j,2)}, {vr(acc+j,2)}, {vr(acc+8+j,2)}" for j in E])
        a.put([f"v_pk_fma_f32 {vr(T+j,2)}, {vr(T+j,2)}, {vr(c1+2,2)}, {vr(c1+2,2)} op_sel_hi:[1,0,0]" for j in E] + ex[2])
        a.put([f"v_rcp_f32 v{T+j}, v{T+j}" for j in range(8)] + ex[3])
        a.put([f"v_pk_mul_f32 {vr(acc+j,2)}, {vr(acc+j,2)}, {vr(T+j,2)}" for j in E])
        a.put([f"v_cvt_pk_bf16_f32 v{acc+8+j}, v{acc+2*j}, v{acc+2*j+1}" for j in range(4)])
        a.put(VM(f"buffer_store_dwordx4 {vr(acc+8,4)}, v{vL16}, {srd(rWS)}, s{sHS+n} offen {SC}", "h_st"))
        a.put(stamp([5, 6, 7, 8, 9, 12, 13, 11][n], "ge"))
        if n == 6:
            a.put([WAIT("cv_dma", "cv_zero"), "s_barrier"] + conv_reads(0) + [stamp(10, "ge")])
    a.put(stamp(5))


def service_role(a):
    TAPB = 8 * KVT
    a.put(lines(f"""
    s_sub_u32 s{sFS}, s2, 224
    s_lshl_b32 s6, s{sFS}, 16
    s_lshr_b32 s7, s{sW}, 1
    s_and_b32 s4, s{sW}, 1
    v_lshlrev_b32 v8, 10, v6
    v_lshl_add_u32 v8, v7, 4, v8
    v_add_u32 v8, s6, v8
    v_subrev_u32 v12, 8192, v8
    s_mul_i32 s5, s4, 3
    s_add_u32 s5, s5, 5
    s_cmp_eq_u32 s{sFS}, 0
    s_cselect_b32 s5, 8, s5
    v_cmp_le_u32 vcc, s5, v6
    v_add_u32 v9, {8192 - KVP}, v8
    v_bfrev_b32 v29, 1
    v_cndmask_b32 v12, v29, v12, vcc
    v_add_u32 v10, {2*(8192 - KVP)}, v8
    s_mul_i32 s{sXM}, s{sW}, {VB}
    s_lshl_b32 s{sXK}, s7, 7
    s_mov_b32 s{rW+2}, {X_BYTES}
    s_lshl_b32 s5, s{sW}, 10
    v_add_u32 v13, s5, v{vL16}
    s_add_u32 m0, s5, {TAPB}
    s_cmp_eq_u32 s4, 0
    s_waitcnt lgkmcnt(0)
    s_cselect_b32 s{rW}, s{pKV}, s{pKV+2}
    s_cselect_b32 s{rW+1}, s{pKV+1}, s{pKV+3}
    """))
    a.put(stamp(0))
    nt = OPT.get("kvpol", "nt").replace("none", "")

    def tile_dma(tag):
        r = [[f"s_mov_b32 m0, s{sXM}", f"s_add_u32 s{sWM}, s{sXK}, {3*8192}",
              VM(f"buffer_load_dwordx4 v12, {srd(rW)}, s{sXK} offen lds")]]
        for j in range(8):
            q, pre = j % 3, []
            so = sXK if j < 3 else sWM
            if q == 0:
                pre = [f"s_add_u32 m0, s{sXM}, {(j+1)*KVP}", f"s_add_u32 s{sWM}, s{sWM}, {3*8192}" if j == 6 else "s_nop 0"]
            r.append(pre + [VM(f"buffer_load_dwordx4 v{8+q}, {srd(rW)}, s{so} offen offset:{q*KVP} {nt} lds", tag)])
        r[-1] += [f"s_add_u32 s{sXM}, s{sXM}, {2*KVT}", f"s_add_u32 s{sXK}, s{sXK}, 256"]
        return r

    if "x_nold" in OPT:
        a("v_mov_b32 v8, v29\nv_mov_b32 v9, v29\nv_mov_b32 v10, v29\nv_mov_b32 v12, v29")
    d0, n0 = tile_dma("kv0"), 5
    a.put(stats_loads() + [VM(f"global_load_lds_dwordx4 v13, s[{pSH}:{pSH+1}]")] + d0[:n0])
    a.put(lines(f"""
    s_lshl_b32 s5, s{sW}, 3
    v_add_u32 v11, s5, v6
    v_lshlrev_b32 v14, 5, v11
    v_add_u32 v14, {TAPB}, v14
    v_sub_u32 v13, 7, v7
    v_mul_u32_u24 v13, {KVP}, v13
    v_lshl_add_u32 v13, v6, 3, v13
    s_mul_i32 s5, s7, {KVT}
    s_lshl_b32 s4, s4, 6
    s_add_u32 s5, s5, s4
    v_add_u32 v13, s5, v13
    v_mul_u32_u24 v15, {4*KVP_COPY}, v11
    v_lshl_add_u32 v15, v7, 4, v15
    s_lshl_b32 s5, s{sFS}, 7
    s_sub_u32 s{sHS}, {WS_KV + 4096 - 128}, s5
    s_lshl_b32 s4, s{sW}, 12
    s_add_u32 s4, s4, s5
    s_add_u32 s{sF1}, s4, {FL_K}
    """))
    a.put(setup_common(0))
    d01 = d0[n0:] + tile_dma("kv1")
    a.weave(d01, spread(stats_compute(), len(d01), 0, len(d01) - 1))
    a.put(stamp(2))
    RAW, TR, TP, UNP, U, OUT = 64, 16, 32, 128, 172, 192

    def tile_reads():
        r = [DS(f"ds_read_b128 {vr(TR+4*h,4)}, v14 offset:{16*h}") for h in range(2)]
        for jj in range(19):
            rho, base = (5 + jj, KB) if jj < 11 else (jj - 3, VB)
            r.append(DS(f"ds_read_b64 {vr(RAW+2*jj,2)}, v13 offset:{base + (rho >> 3) * KVP + (rho & 7) * 128}"))
        return r + [f"v_add_u32 v13, {2*KVT}, v13", "v_add_u32 v14, 1024, v14"]

    def pair(h):
        r = []
        for t in range(4):
            for ch in range(2):
                src = TR + 4 * h + 2 * ch + (t >> 1)
                r.append(f"v_and_b32 v{TP+2*t+ch}, s83, v{src}" if t & 1 else f"v_lshlrev_b32 v{TP+2*t+ch}, 16, v{src}")
        for j in range(19):
            r += [f"v_lshlrev_b32 v{UNP+2*j}, 16, v{RAW+2*j+h}", f"v_and_b32 v{UNP+2*j+1}, s83, v{RAW+2*j+h}"]
        m = []
        for jj in range(8):
            u = vr(U + 2 * jj, 2)
            m.append(f"v_pk_mul_f32 {u}, {vr(UNP+2*jj,2)}, {vr(TP+6,2)}")
            m += [f"v_pk_fma_f32 {u}, {vr(UNP+2*(jj+3-t),2)}, {vr(TP+2*t,2)}, {u}" for t in (2, 1, 0)]
            m.append(f"v_pk_mul_f32 {u}, {u}, {vr(UNP+2*(11+jj),2)}")
        st = []
        for ch in range(2):
            o = OUT + 8 * h + 4 * ch
            m += [f"v_cvt_pk_bf16_f32 v{o+e}, v{U+2*(7-2*e)+ch}, v{U+2*(6-2*e)+ch}" for e in range(4)]
            st.append([VM(f"buffer_store_dwordx4 {vr(o,4)}, v15, {srd(rWS)}, s{sHS} offen {SC}"),
                       f"s_add_u32 s{sHS}, s{sHS}, {KVP_COPY if 2*h+ch < 3 else 125*KVP_COPY}"])
        return r, m, st

    def mix(alu, mem):
        g = spread(alu, len(mem) + 1)
        a.put(g[0])
        a.weave(mem, g[1:])

    (u0, m0_, st0), (u1, m1_, st1) = pair(0), pair(1)
    a.put(lines(f"""
    s_lshl_b32 s4, s{sW}, 5
    s_add_u32 s4, s4, s{sFS}
    s_mul_i32 s4, s4, {KVP_COPY}
    s_add_u32 s4, s4, {WS_KV + 4096}
    v_and_b32 v24, 3, v6
    v_mul_u32_u24 v24, {128*KVP_COPY}, v24
    v_lshl_add_u32 v24, v7, 4, v24
    v_mov_b32 v40, 0
    v_mov_b32 v41, 0
    v_mov_b32 v42, 0
    v_mov_b32 v43, 0
    """) + [VM(f"buffer_store_dwordx4 v[40:43], v24, {srd(rWS)}, s4 offen {SC}")])
    a.put(["s_mov_b32 s83, 0xffff0000", WAIT("kv0"), "s_barrier"] + tile_reads())
    for it in range(4):
        dm = tile_dma(f"kv{it+2}") if it < 2 else []
        a.put(WAIT("allds"))
        mix(u0 + m0_, (st1 if it else []) + dm[:5])
        mix(u1, st0 + dm[5:6])
        if it < 3:
            a.put([WAIT(f"kv{it+1}"), "s_barrier"] + tile_reads())
        if it == 0:
            a.put(init_signal())
        mix(m1_, dm[6:])
    a.put(st1)
    a.put(stamp(3))
    su = setup_common(1)
    a.put(su[:110] + ["v_mov_b32 v12, 1", WAIT("allvm"), VM(f"buffer_store_dword v12, v{vM0}, {srd(rWS)}, s{sF1} offen {SC}"), stamp(1)])
    a.put([VM(LD_INIT, "p_init")] + su[110:] + [WAIT("p_init"), lambda e: poll(e, LD_INIT, "0x80"), "s_barrier", stamp(4)])
    cd = conv_dma()
    a.put(cd[8:12] + [wd_dma(g) for g in range(4)] + [VM(LD_KV, "p_kv")] + [wd_dma(g) for g in range(4, 6)])
    a.put([WAIT("p_kv"), lambda e: poll(e, LD_KV, "1"), "s_barrier"])
    a.put(cd[:8] + conv_zero_addr() + ["v_mov_b32 v12, 0"] + conv_zero(12))
    a.put([wd_reads(g) for g in range(3)])
    a.put([WAIT("allvm", "allds"), "s_barrier"] + conv_reads(0))
    a.put(stamp(5))


HR, NH = 192, 16


def h_load(n):
    st, ks = divmod(n, 28)
    pre = []
    if ks and ks % 2 == 0:
        pre = [f"s_cmp_eq_u32 s{sHL+st}, s{sHE+st}", f"s_cselect_b32 s7, s80, s81", f"s_add_u32 s{sHL+st}, s{sHL+st}, s7"]
    if n == 0:
        pre = [f"s_mov_b32 s80, {hx(-13*2048)}", "s_mov_b32 s81, 2048"]
    return pre + [VM(f"buffer_load_dwordx4 {vr(HR + 4*(n % NH), 4)}, v{vL16}, {srd(rWS)}, s{sHL+st} offen offset:{(ks%2)*1024} {SC}", f"h{n}")]


def conv(a):
    for m in range(4):
        p = m & 1
        ms = []
        for aa in range(8):
            for b in range(8 - aa):
                acc = vr(CACC + 4 * (aa + b), 4)
                c = "0" if (m == 0 and aa == 0) else acc
                ms.append(f"v_mfma_f32_16x16x32_bf16 {acc}, {rg(CUF[p], 4*b, 4)}, {rg(CHF[p], 4*aa, 4)}, {c}")
        if m == 0:
            a.put(WAIT("cf0", "wd5"))
            fl = merge(spread(wd_reads(3) + wd_reads(4) + wd_reads(5) + conv_reads(1), 36, 0, 32),
                       spread(wd_dma(6) + wd_dma(7), 36, 0, 24))
        elif m == 1:
            a.put([WAIT("allds", "h_st"), "v_mov_b32 v4, 1", VM(f"buffer_store_dword v4, v{vM0}, {srd(rWS)}, s{sF1} offen {SC}"), stamp(6)])
            fl = merge(spread(conv_reads(2), 36, 0, 30), spread(wd_dma(8) + wd_dma(9) + wd_dma(10), 36, 0, 36))
        elif m == 2:
            a.put(WAIT("allds", "wd7"))
            fl = merge(spread(wd_reads(6) + wd_reads(7) + conv_reads(3), 36, 0, 30), spread(wd_dma(11), 36, 0, 10),
                       spread([WAIT("wr7")] + wd_dma(12) + wd_dma(13), 36, 18, 36))
            fl[int(OPT.get("php", 17))] += [VM(LD_H, "p_h")]
        else:
            a.put([WAIT("allds", "p_h"), lambda e: poll(e, LD_H, "1"), stamp(7)])
            fl = spread([h_load(n) for n in range(NH - 1)], 36, 0, 36)
            fl = merge(fl, spread([WAIT("wd8")] + wd_reads(8) +
                                  [DS(f"ds_read_b64 {vr(96+2*j,2)}, v{vDT} offset:{(3-j)*512}", "dt") for j in range(4)], 36, 0, 20))
        a.weave(ms, fl)
    odd, join = a.label("odd"), a.label("join")
    a.put([stamp(8), f"v_and_b32 v{vDV}, 0xffff0000, v{vDV}", WAIT("dt")])
    for j in range(4):
        for r in range(4):
            src = 96 + 2 * j + (1 - (r >> 1))
            a(f"v_lshlrev_b32 v{8+4*j+r}, 16, v{src}" if r & 1 else f"v_and_b32 v{8+4*j+r}, 0xffff0000, v{src}")
    a(f"s_cmp_eq_u32 s{sMH}, 0\ns_cbranch_scc0 {odd}")
    n0 = a.nds
    dv = f"v[{vDV-1}:{vDV}]"
    for half, end in ((0, f"s_branch {join}\n{odd}:"), (1, f"{join}:")):
        a.nds = n0
        a.put([DS(f"ds_write_b128 v{vRW}, {vr(CACC+16*(1-half)+4*j,4)} offset:{j*1024}") for j in range(4)])
        a.put([f"v_pk_fma_f32 {vr(8+j,2)}, {vr(8+j,2)}, {dv}, {vr(CACC+16*half+j,2)} op_sel:[0,1,0] op_sel_hi:[1,1,1]" for j in range(0, 16, 2)])
        a(end)
    a.put([WAIT("allds"), "s_barrier"])
    a.put([DS(f"ds_read_b128 {vr(96+4*j,4)}, v{vRR} offset:{j*1024}", f"rr{j}") for j in range(4)])
    for j in range(4):
        a.put([WAIT(f"rr{j}"),
               f"v_pk_add_f32 {vr(8+4*j,2)}, {vr(8+4*j,2)}, {vr(96+4*j,2)}",
               f"v_pk_add_f32 {vr(10+4*j,2)}, {vr(10+4*j,2)}, {vr(98+4*j,2)}",
               f"v_cvt_pk_bf16_f32 v{24+2*j}, v{8+4*j}, v{9+4*j}",
               f"v_cvt_pk_bf16_f32 v{25+2*j}, v{10+4*j}, v{11+4*j}",
               VM(f"buffer_store_dwordx2 {vr(24+2*j,2)}, v{vL8}, {srd(rWS)}, s{sYS} offen offset:{j*512} {SC}", "y_st")])
    a.put(stamp(9))


ACC2 = 128
XR, SR, XF, YV, PB = 32, 40, 8, 96, 64


def part_writes(p):
    return [DS(f"ds_write_b128 v{vPW+rq}, {vr(ACC2 + (p*2+u)*16 + 4*rq, 4)} offset:{p*SLOT + u*128}", f"pw{p}")
            for u in range(2) for rq in range(4)]


def part_reads(p):
    pre = [f"v_add_u32 v{vPR+e}, {SLOT}, v{vPR+e}" for e in range(2)] if p else []
    return pre, [DS(f"ds_read_b128 {vr(PB + 8*w + 4*e, 4)}, v{vPR+e} offset:{w*WDW}", f"pr{p}") for w in range(4) for e in range(2)]


XN = 24


def gate_first():
    b, r = PB, []
    for o in (8, 16, 24):
        r += [f"v_add_f32 v{b+j}, v{b+j}, v{b+o+j}" for j in range(8)]
    r += [f"v_mul_f32 v{b+8+j}, {hx(f2u(-1.4426950408889634))}, v{b+j}" for j in range(8)]
    r += [f"v_exp_f32 v{b+8+j}, v{b+8+j}" for j in range(8)]
    r += [f"v_mul_f32 v{XN+j}, v{XN+j}, v{b+j}" for j in range(8)]
    r += [f"v_add_f32 v{b+8+j}, 1.0, v{b+8+j}" for j in range(8)]
    r += [f"v_rcp_f32 v{b+8+j}, v{b+8+j}" for j in range(8)]
    r += [f"v_mul_f32 v{XN+j}, v{XN+j}, v{b+8+j}" for j in range(8)]
    return r


def out_store(p, src):
    return [f"v_cvt_pk_bf16_f32 v{44+j}, v{src+2*j}, v{src+2*j+1}" for j in range(4)] + \
        [VM(f"buffer_store_dwordx4 {vr(44,4)}, v{vXO}, {srd(rOUT)}, s{sXO+p} offen {OPT.get('outpol', '')}")]


def finalize_last():
    b, r, E = PB, [], range(0, 8, 2)
    for j in E:
        r += [f"v_pk_add_f32 {vr(b+j,2)}, {vr(b+j,2)}, {vr(b+8+j,2)}", f"v_pk_add_f32 {vr(b+16+j,2)}, {vr(b+16+j,2)}, {vr(b+24+j,2)}"]
    r += [f"v_pk_add_f32 {vr(b+j,2)}, {vr(b+j,2)}, {vr(b+16+j,2)}" for j in E]
    r += [f"v_pk_mul_f32 {vr(b+8+j,2)}, {vr(b+j,2)}, v[4:5] op_sel_hi:[1,0]" for j in E]
    r += [f"v_exp_f32 v{b+8+j}, v{b+8+j}" for j in range(8)]
    r += [f"v_pk_mul_f32 {vr(b+j,2)}, {vr(b+j,2)}, {vr(YV+8+j,2)}" for j in E]
    r += [f"v_pk_add_f32 {vr(b+8+j,2)}, {vr(b+8+j,2)}, 1.0 op_sel_hi:[1,0]" for j in E]
    r += [f"v_rcp_f32 v{b+8+j}, v{b+8+j}" for j in range(8)]
    r += [f"v_pk_fma_f32 {vr(b+j,2)}, {vr(b+j,2)}, {vr(b+8+j,2)}, {vr(XF+8+j,2)}" for j in E]
    return r + out_store(1, b)


def gemm2(a):
    side = [[] for _ in range(112)]

    def place(items, n0, n1):
        for g, l in enumerate(spread(items, 112, 2 * n0, 2 * n1)):
            side[g] += l

    place(sum((wd_reads(g) for g in range(9, 14)), []), 0, 10)
    place([VM(f"buffer_load_dwordx4 {vr(XR+4*p,4)}, v{vXO}, {srd(rX)}, s{sXO+p} offen") for p in range(2)] +
          [VM(f"buffer_load_dwordx2 {vr(SR+2*p,2)}, v{vSO}, {srd(rWS)}, s{sSO+p} offen {SC}", "xs") for p in range(2)], 0, 4)
    NF = int(OPT.get("nf", 10))
    place([[WAIT("y_st"), "v_mov_b32 v4, 1", VM(f"buffer_store_dword v4, v{vM0}, {srd(rWS)}, s{sF2} offen {SC}")]], NF, NF + 1)
    NY = int(OPT.get("ny", 30))
    place([VM(LD_Y, "p_y")], NY, NY + 1)
    place([stamp(12)], int(OPT.get("s12", 28)), 56)
    place([stamp(13)], int(OPT.get("s13", 42)), 56)
    xs = [WAIT("xs")]
    for p in range(2):
        xs.append(f"v_rcp_f32 v{SR+2*p+1}, v{SR+2*p+1}")
        for j in range(4):
            xs += [f"v_lshlrev_b32 v{XF+8*p+2*j}, 16, v{XR+4*p+j}", f"v_and_b32 v{XF+8*p+2*j+1}, 0xffff0000, v{XR+4*p+j}"]
        xs.append(f"v_mul_f32 v{SR+2*p}, v{SR+2*p}, v{SR+2*p+1}")
    xs += [f"v_fma_f32 v{XN+8*p+j}, v{XF+8*p+j}, v{SR+2*p+1}, -v{SR+2*p}" for p in range(2) for j in range(8)]
    xs += [f"v_mov_b32 v{YV+j}, 0" for j in range(16)] + [f"v_mov_b32 v4, {hx(f2u(-1.4426950408889634))}"]
    place(xs, 18, 28)
    place(part_writes(0), 30, 34)
    pre1, rd1 = part_reads(1)
    place([[WAIT("pw0"), "s_barrier"]] + part_reads(0)[1], 35, 37)
    place([WAIT("pr0")] + pre1 + gate_first(), 38, 50)
    place([[WAIT("p_y"), lambda e: poll(e, LD_Y, "1"), f"s_mov_b32 m0, s{sYM}", f"s_add_u32 s4, s{sYD}, {8*KVP_COPY - YP}",
            VM(f"buffer_load_dwordx4 v{vYD}, {srd(rWS)}, s{sYD} offen {SC} lds")],
           VM(f"buffer_load_dwordx4 v{vYD}, {srd(rWS)}, s4 offen offset:{YP} {SC} lds", "y_dma")], NY + 10, NY + 11)
    place([[WAIT("y_dma"), "s_barrier"]] +
          [DS(f"ds_read_u16_d16_hi v{YV+8*p+j}, v{vYG+p} offset:{j*128}", "yg") for p in range(2) for j in range(8)], 50, 52)
    place([WAIT("yg")] + [f"v_fma_f32 v{XN+j}, v{XN+j}, v{YV+j}, v{XF+j}" for j in range(8)] + out_store(0, XN) +
          [f"v_mul_f32 v{YV+8+j}, v{YV+8+j}, v{XN+8+j}" for j in range(8)], 53, 56)
    a.put(WAIT("wd13"))
    for n in range(56):
        st, ks = divmod(n, 28)
        w = [f"h{n}"] + ([f"wr{ks // 2}"] if st == 0 and ks >= 18 and ks % 2 == 0 else [])
        a.put(WAIT(*w))
        ms = []
        for u in range(2):
            acc = vr(ACC2 + (st * 2 + u) * 16, 16)
            ms.append(f"v_mfma_f32_32x32x16_bf16 {acc}, {ar(ks*8+u*4,4)}, {vr(HR + 4*(n % NH), 4)}, {'0' if ks == 0 else acc}")
        nxt = h_load(n + NH - 1) if n + NH - 1 < 56 else []
        a.weave(ms, [nxt + side[2 * n], side[2 * n + 1]])
    a.put([stamp(10), "s_nop 9"] + part_writes(1) + [WAIT("pw1"), "s_barrier"] + rd1 + [WAIT("pr1")] + finalize_last())


def build():
    a = Em()
    entry(a)
    a(f"s_cmp_ge_u32 s{sIDX}, 28\ns_cbranch_scc1 L_service")
    snap = (a.nvm, a.nds)
    gemm_role(a)
    a("L_join:")
    conv(a)
    gemm2(a)
    if STAMP:
        a.put([stamp(11), WAIT("allvm"), stamp(15)])
        a(f"""
        s_add_u32 s{rWS}, s{rWS}, {WS_TS}
        s_addc_u32 s{rWS+1}, s{rWS+1}, 0
        s_lshl_b32 s4, s2, 3
        s_add_u32 s4, s4, s{sW}
        s_lshl_b32 s4, s4, 7
        v_lshlrev_b32 v4, 2, v{vLANE}
        s_mov_b64 exec, 0xffffffff
        buffer_store_dword v{vST}, v4, {srd(rWS)}, s4 offen
        """)
    if "diag" in OPT:
        k = int(OPT["diag"])
        a(f"""
        v_readlane_b32 s4, v{vST}, 30
        v_readlane_b32 s5, v{vST}, {16 + k}
        s_nop 3
        s_cmp_eq_u32 s5, 0
        s_cselect_b32 s5, s4, s5
        s_cmp_eq_u32 s2, {OPT.get("diagwg", 40)}
        s_cselect_b32 s5, s5, s4
        s_add_u32 s5, s5, 4000
        L_diag:
        s_memrealtime s[94:95]
        s_waitcnt lgkmcnt(0)
        s_sub_u32 s6, s94, s5
        s_cmp_lt_i32 s6, 0
        s_cbranch_scc1 L_diag
        """)
    a("L_exit:\ns_endpgm\nL_service:")
    a.nvm, a.nds = snap
    service_role(a)
    a("s_branch L_join")
    for t in a.tail:
        a(t)
    a("L_end:\ns_endpgm")
    hdr = open("cdna_kernels/" + NAME + ".s.ref").read().split("; Override launch")[0]
    t = hdr + f"; @launch grid=(256,1,1) block=(256,1,1) lds={LDS_BYTES}\n" + HEAD + kernel_text(KERNEL, a.text())
    t += '.section .rodata,"a"\n' + descriptor(KERNEL, vgpr=512, accum=256)
    return t


if __name__ == "__main__":
    open(sys.argv[1], "w").write(build())
```

```python
import sys
from common import (NAME, S, D, F, X_BYTES, W_BYTES, WS_H, WS_KV, WS_Y, WS_ST, WS_CS, WS_FL, WS_TS, LDS_BYTES, SLOT, KVP_COPY,
                    f2u, hx, vr, ar, spread, merge)
from asmlib import HEAD, kernel_text, descriptor
from emit import Em, VM, DS, WAIT, lines

OPT = dict(x[2:].split("=") if "=" in x else (x[2:], "1") for x in sys.argv if x.startswith("--"))
STAMP = "stamp" in OPT
KERNEL = NAME + "_kernel"
WS_BYTES = 16 << 20
SC = "sc1"

rX, rW, rWS, rWD, rSK, rOUT, rDBG, rV = 8, 12, 16, 20, 24, 28, 32, 36
pSD, pSH, pKV = 98, 42, 80
sXM, sWM, sXK, sWK, sHS = 44, 45, 46, 47, 48
sF1, sF2, sPH, sPY, sPK = 56, 57, 58, 59, 60
sDM, sDK = 61, 62
sUM, sHM, sKVO, sSKO, sYS = 63, 64, 65, 66, 67
sYD, sYM, sXO, sSO, sHL, sG1S, sMH, sSPIN = 68, 69, 70, 72, 74, 76, 77, 78
sRB, sFS, sT2, sCT = 84, 85, 86, 87
sDE, sHE = 88, 82
sCS, sSP, sK32 = 36, 41, 3
sXCD, sIDX, sW = 90, 91, 92
srd = lambda r: f"s[{r}:{r+3}]"

vLANE, vL16, vST = 1, 2, 3
vXD, vWD, vXA, vWA, vCS, vSEL, vMS, vGC = 8, 16, 20, 24, 28, 32, 36, 40
vCA, vG1S, vDS = 43, 47, 44
vXB, vWB = [36, 37, 38, 39], [40, 41, 42, 46]
vDD, vDA, vUA, vHA, vZU, vZH, vRW, vRR, vDT, vL8, vM0, vDV = 48, 52, 54, 55, 56, 57, 58, 59, 60, 61, 62, 63
vYD, vXO, vSO, vYG, vPW, vPR, vFH, vFY, vFK, vFD, vPOLL = 112, 113, 114, 115, 117, 121, 123, 124, 125, 126, 127
FR = [64, 88]
ACC1 = 128

US, HS = 4640, 4464
CH_LDS = 4 * US + HS + 4224 + 16
CONV_BASE = 2 * SLOT + 16
YB, YP = 155520, 1040
CSB = YB
WDW = 12288
KB, KVP = 0, 1056
VB = 9 * KVP
KVT = 18 * KVP
FL_H, FL_Y, FL_K = WS_FL, WS_FL + 131072, WS_FL + 262144

C1 = -2.0 * 0.7978845608028654 * 1.4426950408889634
C2 = C1 * 0.044715


def stamp(n, g1=False):
    mode = "g1" if "g1st" in OPT else ("ge" if "gest" in OPT else ("sv" if "svst" in OPT else False))
    g1 = "g1" if g1 is True else g1
    keep = (0, 1, 2, 15) if mode == "g1" else (0, 1, 2, 3, 4, 15)
    if not STAMP or (mode != g1 and (g1 or n not in keep)):
        return None
    return (f"v_writelane_b32 v{vST}, s100, 14\nv_writelane_b32 v{vST}, s94, 30" if n == 0 else "") + f"""
    s_memrealtime s[94:95]
    s_memtime s[96:97]
    s_waitcnt lgkmcnt(0)
    v_writelane_b32 v{vST}, s96, {n}
    v_writelane_b32 v{vST}, s94, {16 + n}
    """


def poll(a, load, want):
    if "x_nokvpoll" in OPT and load == LD_KV:
        return
    slow, back = a.label("slow"), a.label("back")
    a(f"v_cmp_gt_u32 vcc, {want}, v{vPOLL}\ns_cbranch_vccnz {slow}\n{back}:")
    a.tail.append(f"""
    {slow}:
    s_mov_b32 s{sSPIN}, 0x10000
    {slow}_l:
    {load}
    s_sub_u32 s{sSPIN}, s{sSPIN}, 1
    s_cmp_eq_u32 s{sSPIN}, 0
    s_waitcnt vmcnt(0)
    s_cbranch_scc1 {back}
    v_cmp_gt_u32 vcc, {want}, v{vPOLL}
    s_cbranch_vccnz {slow}_l
    s_branch {back}
    """)


LD_INIT = f"buffer_load_dword v{vPOLL}, v{vFD}, {srd(rDBG)}, 0 offen {SC}"
LD_KV = f"buffer_load_dword v{vPOLL}, v{vFK}, {srd(rWS)}, s{sPK if 'x_nokvpoll' not in OPT else sSO} offen {SC}"
LD_H = f"buffer_load_dword v{vPOLL}, v{vFH}, {srd(rWS)}, s{sPH} offen {SC}"
LD_Y = f"buffer_load_dword v{vPOLL}, v{vFY}, {srd(rWS)}, s{sPY} offen {SC}"


def publish(sf):
    if "vflag" not in OPT:
        return ["s_mov_b32 s79, 1", f"s_atomic_or s79, s[{rWS}:{rWS+1}], s{sf}"]
    return ["v_mov_b32 v4, 1", VM(f"buffer_store_dword v4, v{vM0}, {srd(rWS)}, s{sf} offen {SC}")]


def entry(a):
    if STAMP:
        a("s_memrealtime s[94:95]\ns_memtime s[100:101]")
    a(f"""
    s_load_dwordx2 s[{rX}:{rX+1}], s[0:1], 0
    s_load_dwordx4 s[36:39], s[0:1], 56
    s_load_dwordx2 s[{rWS}:{rWS+1}], s[0:1], 96
    s_load_dwordx4 s[{pKV}:{pKV+3}], s[0:1], 8
    s_getpc_b64 s[4:5]
    L_pc:
    s_cmp_ge_u32 s2, 256
    s_cbranch_scc1 L_exit
    s_lshr_b32 s{sIDX}, s2, 3
    v_lshrrev_b32 v4, 4, v0
    s_and_b32 s6, s{sIDX}, 15
    s_lshl_b32 s6, s6, 11
    v_lshl_add_u32 v4, v4, 7, s6
    v_min_u32 v4, L_end-L_pc-4, v4
    v_mov_b32 v5, s5
    v_add_co_u32 v4, vcc, s4, v4
    v_lshrrev_b32 v6, 6, v0
    v_and_b32 v{vLANE}, 63, v0
    v_addc_co_u32 v5, vcc, 0, v5, vcc
    """)
    if "nocodepf" not in OPT:
        a.put(VM(f"global_load_dword v{vPOLL}, v[4:5], off"))
    a(f"""
    v_readfirstlane_b32 s{sW}, v6
    s_load_dwordx2 s[{rWD}:{rWD+1}], s[0:1], 72
    s_load_dwordx2 s[{rSK}:{rSK+1}], s[0:1], 32
    s_load_dwordx2 s[{rOUT}:{rOUT+1}], s[0:1], 80
    s_load_dwordx2 s[{rDBG}:{rDBG+1}], s[0:1], 88
    s_load_dwordx2 s[{pSD}:{pSD+1}], s[0:1], 40
    s_load_dwordx2 s[{pSH}:{pSH+1}], s[0:1], 24
    s_and_b32 s{sXCD}, s2, 7
    v_lshlrev_b32 v{vL16}, 4, v{vLANE}
    s_mov_b32 s{rX+2}, {X_BYTES}
    s_mov_b32 s{rX+3}, 0x20000
    s_mov_b32 s{rW+3}, 0x20000
    s_and_b32 s4, s{sXCD}, 1
    s_lshr_b32 s5, s{sXCD}, 1
    s_lshl_b32 s{sRB}, s4, 2
    s_add_u32 s{sT2}, s{sRB}, s5
    s_lshl_b32 s6, s{sT2}, 5
    s_add_u32 s6, s6, s{sIDX}
    s_lshl_b32 s6, s6, 2
    s_add_u32 s6, s6, s{sW}
    s_lshl_b32 s79, s6, 11
    v_lshrrev_b32 v4, 5, v{vLANE}
    v_and_b32 v5, 31, v{vLANE}
    v_lshlrev_b32 v96, 10, v4
    v_lshl_add_u32 v96, v5, 4, v96
    v_lshrrev_b32 v6, 3, v{vLANE}
    v_and_b32 v7, 7, v{vLANE}
    """)
    if STAMP:
        a(f"v_mov_b32 v{vST}, 0")


def stats_loads():
    return [VM(f"buffer_load_dwordx4 v[64:67], v96, {srd(rX)}, s79 offen"),
            VM(f"buffer_load_dwordx4 v[68:71], v96, {srd(rX)}, s79 offen offset:512", "stats_ld")]


def reduce32(v, t):
    r = []
    for ctl in ("quad_perm:[1,0,3,2]", "quad_perm:[2,3,0,1]", "row_half_mirror", "row_mirror"):
        r += ["s_nop 1", f"v_add_f32_dpp v{v}, v{v}, v{v} {ctl} row_mask:0xf bank_mask:0xf"]
    return r + [f"v_mov_b32 v{t}, v{v}", "s_nop 1", f"v_permlane16_swap_b32 v{t}, v{v}", "s_nop 0",
                f"v_add_f32 v{v}, v{t}, v{v}"]


def rnd(v):
    return [f"v_cvt_pk_bf16_f32 v{v}, v{v}, v{v}", f"v_and_b32 v{v}, 0xffff0000, v{v}"]


def stats_compute(vf1=vM0):
    r = [WAIT("stats_ld")]
    for j in range(8):
        r += [f"v_lshlrev_b32 v{72+2*j}, 16, v{64+j}", f"v_and_b32 v{73+2*j}, 0xffff0000, v{64+j}"]
    r.append("v_pk_add_f32 v[88:89], v[72:73], v[74:75]")
    r += [f"v_pk_add_f32 v[88:89], v[88:89], v[{72+2*j}:{73+2*j}]" for j in range(2, 8)]
    r += ["v_add_f32 v88, v88, v89"] + reduce32(88, 89) + [f"v_mul_f32 v88, {hx(f2u(1.0/512))}, v88"]
    r += [f"v_pk_add_f32 v[{72+2*j}:{73+2*j}], v[{72+2*j}:{73+2*j}], v[88:89] op_sel_hi:[1,0] neg_lo:[0,1] neg_hi:[0,1]"
          for j in range(8)]
    r.append("v_pk_mul_f32 v[90:91], v[72:73], v[72:73]")
    r += [f"v_pk_fma_f32 v[90:91], v[{72+2*j}:{73+2*j}], v[{72+2*j}:{73+2*j}], v[90:91]" for j in range(1, 8)]
    r += ["v_add_f32 v89, v90, v91"] + reduce32(89, 90) + [f"v_mul_f32 v89, {hx(f2u(1.0/512))}, v89"]
    r += rnd(88) + rnd(89) + [f"v_add_f32 v89, {hx(f2u(1e-5))}, v89"] + rnd(89) + ["v_sqrt_f32 v89, v89"]
    r += lines(f"""
    v_cmp_eq_u32 vcc, 0, v5
    s_lshr_b32 s79, s79, 7
    s_add_u32 s79, s79, {WS_ST}
    v_lshlrev_b32 v90, 3, v4
    v_cndmask_b32 v90, -1, v90, vcc
    v_mov_b32 v91, 0
    """) + rnd(89)
    r += [VM(f"buffer_store_dwordx2 v[88:89], v90, {srd(rWS)}, s79 offen {SC}"),
          VM(f"buffer_store_dword v91, v{vf1}, {srd(rWS)}, s{sF1} offen {SC}"),
          VM(f"buffer_store_dword v91, v{vM0}, {srd(rWS)}, s{sF2} offen {SC}", "init_st")]
    return r


def init_signal():
    return lines(f"""
    s_and_b32 s4, s2, 1
    s_lshl_b32 s4, s4, 7
    s_cmp_eq_u32 s{sW}, 0
    s_cselect_b32 s4, s4, 0x1000
    v_mov_b32 v4, 1
    v_add_u32 v5, s4, v{vM0}
    """) + [VM(f"buffer_atomic_add v4, v5, {srd(rDBG)}, 0 offen {SC}")]


def setup_common(part=None):
    r = setup_all()
    cut = r.index(f"s_add_u32 s{sF2}, s6, {FL_Y}") + 1
    if part == 0:
        return r[:cut]
    if part == 1:
        redo = r.index(f"s_lshr_b32 s4, s{sW}, 1")
        return [f"v_lshrrev_b32 v4, 5, v{vLANE}", f"v_and_b32 v5, 31, v{vLANE}"] + r[redo:]
    return r


def setup_all():
    r = []
    for q, n in ((rWS, WS_BYTES), (rWD, W_BYTES), (rSK, X_BYTES), (rOUT, X_BYTES), (rDBG, 256)):
        r += [f"s_mov_b32 s{q+2}, {n}", f"s_mov_b32 s{q+3}, 0x20000"]
    r += lines(f"""
    v_cmp_eq_u32 vcc, 0, v{vLANE}
    s_lshl_b32 s{sT2}, s{sT2}, 2
    s_lshr_b32 s4, s{sIDX}, 3
    v_bfrev_b32 v{vM0}, 1
    v_cndmask_b32 v{vM0}, v{vM0}, 0, vcc
    s_add_u32 s{sT2}, s{sT2}, s4
    s_and_b32 s{sCT}, s{sIDX}, 7
    s_lshr_b32 s4, s4, 1
    s_and_b32 s5, s{sXCD}, 1
    s_lshl_b32 s5, s5, 1
    s_add_u32 s4, s4, s5
    s_lshl_b32 s4, s4, 2
    s_add_u32 s4, s4, s{sW}
    s_lshl_b32 s4, s4, 10
    s_add_u32 s{sPK}, s4, {FL_K}
    s_lshr_b32 s4, s{sW}, 1
    s_and_b32 s{sMH}, s{sW}, 1
    s_lshl_b32 s5, s{sXCD}, 5
    s_add_u32 s5, s5, s{sIDX}
    s_lshl_b32 s5, s5, 1
    s_add_u32 s5, s5, s4
    s_lshl_b32 s6, s{sMH}, 9
    s_add_u32 s6, s6, s5
    s_lshl_b32 s6, s6, 7
    s_add_u32 s{sF2}, s6, {FL_Y}
    s_lshl_b32 s{sSKO}, s5, 12
    s_lshl_b32 s6, s{sMH}, 11
    s_mul_i32 s{sYS}, s5, {KVP_COPY}
    s_add_u32 s{sKVO}, s{sYS}, {WS_KV}
    s_add_u32 s89, s{sKVO}, 2
    s_add_u32 s{sYS}, s{sYS}, s6
    s_add_u32 s{sYS}, s{sYS}, {WS_Y}
    s_lshl_b32 s5, s5, 1
    v_mov_b32 v97, s5
    s_mul_i32 s4, s4, {CH_LDS}
    s_add_u32 s4, s4, {CONV_BASE}
    s_mul_i32 s5, s{sMH}, {2*US + 4}
    s_sub_u32 s{sUM}, s4, s5
    s_mul_i32 s5, s{sMH}, {HS + 8}
    s_add_u32 s{sHM}, s4, s5
    s_add_u32 s{sHM}, s{sHM}, {4*US}
    v_lshl_add_u32 v{vZU}, v{vLANE}, 2, s{sUM}
    v_min_u32 v{vZH}, 29, v{vLANE}
    v_lshl_add_u32 v{vZH}, v{vZH}, 2, s{sHM}
    v_lshlrev_b32 v{vL8}, 3, v{vLANE}
    s_sub_u32 s5, s4, s6
    s_add_u32 s5, s5, {3*US + 4088 - 3*512}
    v_sub_u32 v{vDT}, s5, v{vL8}
    s_lshl_b32 s5, s{sMH}, 8
    s_add_u32 s4, s4, s5
    v_lshrrev_b32 v98, 4, v{vLANE}
    v_and_b32 v{vFK}, 3, v{vLANE}
    v_bfe_u32 v99, v{vLANE}, 2, 2
    v_mul_u32_u24 v{vUA}, {US}, v{vFK}
    v_lshlrev_b32 v100, 7, v99
    v_sub_u32 v{vUA}, v{vUA}, v100
    v_lshl_add_u32 v{vUA}, v98, 4, v{vUA}
    s_add_u32 s5, s4, {248*16 - 7*512}
    v_add_u32 v{vUA}, s5, v{vUA}
    v_and_b32 v{vFD}, 1, v{vLANE}
    v_mul_u32_u24 v{vHA}, {HS + 16}, v{vFD}
    v_bfe_u32 v101, v{vLANE}, 1, 3
    v_add_u32 v101, v101, v98
    v_lshl_add_u32 v{vHA}, v101, 4, v{vHA}
    s_add_u32 s5, s4, {4*US}
    v_add_u32 v{vHA}, s5, v{vHA}
    v_lshlrev_b32 v{vFD}, 7, v4
    s_mul_i32 s{sDM}, s{sW}, {WDW}
    s_add_u32 s5, s{sDM}, {SLOT + 8192}
    v_add_u32 v{vRW}, s5, v{vL16}
    s_xor_b32 s5, s{sW}, 1
    s_mul_i32 s5, s5, {WDW}
    s_add_u32 s5, s5, {SLOT + 8192}
    v_add_u32 v{vRR}, s5, v{vL16}
    v_and_b32 v101, 1, v98
    v_lshlrev_b32 v102, 2, v101
    v_xor_b32 v102, v7, v102
    v_lshlrev_b32 v102, 4, v102
    v_lshl_add_u32 v{vDD}, v6, 10, v102
    v_add_u32 v{vDD+1}, {8192-1024}, v{vDD}
    v_add_u32 v{vDD+2}, {2*(8192-1024)}, v{vDD}
    v_add_u32 v{vDD+3}, {3*(8192-1024)}, v{vDD}
    s_bfe_u32 s6, s{sT2}, 0x10001
    s_mul_i32 s6, s6, 3
    s_xor_b32 s7, s{sCT}, 3
    s_min_u32 s7, s7, {0 if "rot4" in OPT else 1}
    s_sub_u32 s7, 1, s7
    s_mul_i32 s6, s6, s7
    s_and_b32 s93, s{sT2}, 1
    s_mul_i32 s93, s93, 7
    {"s_mul_i32 s93, s93, s7" if "rot1" in OPT else ""}
    s_add_u32 s6, s6, s93
    s_min_u32 s7, s{sXCD}, {int(OPT.get("xrot", 6))}
    s_add_u32 s93, s6, s7
    s_sub_u32 s7, s93, 14
    s_min_u32 s93, s93, s7
    s_mul_i32 s{sDK}, s{sW}, {448*1024}
    s_lshl_b32 s5, s{sCT}, 7
    s_add_u32 s{sDK}, s{sDK}, s5
    s_add_u32 s{sDE}, s{sDK}, {13*32768}
    s_mov_b32 s{sK32}, 32768
    s_lshl_b32 s6, s93, 15
    s_add_u32 s{sDK}, s{sDK}, s6
    v_lshl_add_u32 v{vDA}, v4, 9, v100
    v_lshl_add_u32 v{vDA}, v101, 5, v{vDA}
    v_lshl_add_u32 v{vDA}, v{vFK}, 3, v{vDA}
    v_and_b32 v102, 1, v6
    v_lshl_add_u32 v{vDA}, v102, 6, v{vDA}
    s_lshl_b32 s{sSP}, s{sW}, 12
    s_add_u32 s{sSP}, s{sSP}, {3*SLOT}
    v_add_u32 v{vDS}, s{sSP}, v{vDA}
    v_xor_b32 v{vDS+1}, 64, v{vDS}
    v_add_u32 v{vDA}, s{sDM}, v{vDA}
    v_xor_b32 v{vDA+1}, 64, v{vDA}
    v_lshlrev_b32 v{vFK}, 7, v6
    s_and_b32 s6, s{sCT}, 1
    s_lshl_b32 s7, s{sT2}, 1
    s_add_u32 s7, s7, s6
    s_lshl_b32 s{sXO}, s7, 15
    s_add_u32 s{sXO}, s{sXO}, s5
    s_xor_b32 s{sXO+1}, s{sXO}, 0x8000
    s_lshl_b32 s{sSO}, s7, 8
    s_add_u32 s{sSO}, s{sSO}, {WS_ST}
    s_xor_b32 s{sSO+1}, s{sSO}, 0x100
    s_mul_i32 s4, s{sW}, {28*1024}
    s_mul_i32 s{sHL}, s7, {112*1024}
    s_add_u32 s{sHL}, s{sHL}, s4
    s_xor_b32 s7, s7, 1
    s_mul_i32 s{sHL+1}, s7, {112*1024}
    s_add_u32 s{sHL+1}, s{sHL+1}, s4
    s_add_u32 s{sHE}, s{sHL}, {13*2048}
    s_add_u32 s{sHE+1}, s{sHL+1}, {13*2048}
    s_lshl_b32 s4, s93, 11
    s_add_u32 s{sHL}, s{sHL}, s4
    s_add_u32 s{sHL+1}, s{sHL+1}, s4
    s_lshl_b32 s4, s{sW}, 3
    v_add_u32 v102, s4, v6
    v_lshlrev_b32 v{vSO}, 3, v102
    v_lshlrev_b32 v103, 4, v7
    v_lshl_add_u32 v{vXO}, v102, 10, v103
    v_mul_u32_u24 v{vYD}, {KVP_COPY}, v6
    v_add_u32 v{vYD}, v{vYD}, v103
    s_lshl_b32 s4, s{sCT}, 2
    s_add_u32 s4, s4, s{sW}
    s_mul_i32 s{sYD}, s4, {16*KVP_COPY}
    s_lshl_b32 s7, s{sT2}, 7
    s_add_u32 s{sYD}, s{sYD}, s7
    s_add_u32 s{sYD}, s{sYD}, {WS_Y}
    s_mul_i32 s{sPH}, s{sW}, {7*128}
    s_lshl_b32 s7, s7, 5
    s_add_u32 s{sPH}, s{sPH}, s7
    s_add_u32 s{sPH}, s{sPH}, {FL_H}
    s_lshl_b32 s4, s4, 11
    s_lshr_b32 s7, s{sT2}, 4
    s_lshl_b32 s7, s7, 16
    s_add_u32 s4, s4, s7
    s_add_u32 s{sPY}, s4, {FL_Y}
    s_mul_i32 s{sYM}, s{sW}, {2*YP}
    s_add_u32 s{sYM}, s{sYM}, {YB}
    v_mul_u32_u24 v103, {YP}, v7
    v_lshl_add_u32 v103, v102, 1, v103
    s_lshl_b32 s6, s6, 6
    s_add_u32 s4, s6, {YB}
    v_add_u32 v{vYG}, s4, v103
    s_sub_u32 s4, {YB + 64}, s6
    v_add_u32 v{vYG+1}, s4, v103
    v_xor_b32 v103, v4, v7
    v_lshlrev_b32 v103, 4, v103
    v_lshl_add_u32 v103, v5, 8, v103
    v_add_u32 v{vPW}, s{sDM}, v103
    v_xor_b32 v{vPW+1}, 32, v{vPW}
    v_xor_b32 v{vPW+2}, 64, v{vPW}
    v_xor_b32 v{vPW+3}, 96, v{vPW}
    v_lshlrev_b32 v103, 1, v7
    v_xor_b32 v103, v103, v6
    v_lshlrev_b32 v103, 4, v103
    v_lshl_add_u32 v{vPR}, v102, 8, v103
    v_xor_b32 v{vPR+1}, 16, v{vPR}
    v_min_u32 v{vFH}, 6, v6
    v_lshlrev_b32 v{vFH}, 7, v{vFH}
    v_lshrrev_b32 v{vFY}, 2, v{vLANE}
    v_lshlrev_b32 v{vFY}, 7, v{vFY}
    """)
    r.append(VM(f"global_load_short_d16_hi v{vDV}, v97, s[{pSD}:{pSD+1}]"))
    return r


SPARE = 3 * SLOT
NPRE = int(OPT.get("npre", 4))
WD_SLOT = {g: ("S" if g < NPRE else (g - NPRE) % 6) for g in range(14)}


def wd_off(slot):
    return 0 if slot == "S" else (slot // 3) * SLOT + (slot % 3) * 4096


def wd_dma(g, slot=None):
    slot = WD_SLOT[g] if slot is None else slot
    r = []
    for j in range(4):
        it = [VM(f"buffer_load_dwordx4 v{vDD+j}, {srd(rWD)}, s{sDK} offen offset:{j*1024} lds", f"wd{g}" if j == 3 else None)]
        if j == 0:
            it = [f"s_mov_b32 m0, s{sSP}" if slot == "S" else f"s_add_u32 m0, s{sDM}, {wd_off(slot)}",
                  f"s_cmp_eq_u32 s{sDK}, s{sDE}"] + it + [f"s_cselect_b32 s7, {hx(-13*32768)}, s{sK32}"]
        if j == 3:
            it += [f"s_add_u32 s{sDK}, s{sDK}, s7"]
        r.append(it)
    return r


def wd_reads(g, slot=None):
    slot = WD_SLOT[g] if slot is None else slot
    va = vDS if slot == "S" else vDA
    r = []
    for k in range(2):
        for u in range(2):
            for e in range(2):
                last = k == 1 and u == 1 and e == 1
                r.append(DS(f"ds_read_b64_tr_b16 {ar((2*g+k)*8 + u*4 + 2*e, 2)}, v{va+u} offset:{wd_off(slot) + k*2048 + e*1024}",
                            f"wr{g}" if last else None))
    return r


def conv_dma():
    r = []
    for m0, rs, so, sc in ((f"s{sUM}, {3*US}", rWS, sKVO, SC), (f"s{sUM}, {2*US}", rWS, 89, OPT.get("mispol", SC).replace("none", "")), (f"s{sHM}, 120", rSK, sSKO, "")):
        for j in range(4):
            it = [VM(f"buffer_load_dwordx4 v{vL16}, {srd(rs)}, s{so} offen offset:{j*1024} {sc} lds", "cv_dma")]
            if j == 0:
                it = [f"s_add_u32 m0, {m0}", "s_nop 0"] + it
            r.append(it)
    return r


def conv_zero(z):
    return [DS(f"ds_write2st64_b32 v{vZU}, v{z}, v{z} offset0:0 offset1:1".replace(f"v{vZU}", "v4")),
            DS(f"ds_write2st64_b32 v5, v{z}, v{z} offset0:0 offset1:1"),
            DS(f"ds_write_b32 v{vZH}, v{z}", "cv_zero")]


def conv_zero_addr():
    return [f"v_add_u32 v4, {3*US + 4096}, v{vZU}", f"v_add_u32 v5, {2*US + 4096}, v{vZU}"]


CUF = [("v", 128), ("a", 160)]
CHF = [("v", 160), ("a", 192)]
CACC = 64
rg = lambda kb, o, n: (vr if kb[0] == "v" else ar)(kb[1] + o, n)


def conv_reads(m):
    p = m & 1
    u = [DS(f"ds_read_b128 {rg(CUF[p], 4*j, 4)}, v{vUA} offset:{64*m + 512*(7-j)}", f"cu{j}") for j in range(8)]
    h = [DS(f"ds_read_b128 {rg(CHF[p], 4*j, 4)}, v{vHA} offset:{64*m + 512*j}", f"cf{m}" if j == 7 else f"ch{j}") for j in range(8)]
    return h[:1] + u + h[1:]


NHEAD = int(OPT.get("nhead", 5))


def g1_dma_setup():
    r = lines(f"""
    s_and_b32 s6, s{sIDX}, 3
    s_add_u32 s{sRB}, s{sRB}, s6
    s_mul_i32 s{sFS}, s5, 7
    s_lshr_b32 s6, s{sIDX}, 2
    s_add_u32 s{sFS}, s{sFS}, s6
    v_lshrrev_b32 v98, 4, v{vLANE}
    s_lshr_b32 s4, s{sW}, 1
    s_and_b32 s6, s{sW}, 1
    v_and_b32 v99, 1, v98
    s_lshl_b32 s7, s4, 2
    v_lshl_or_b32 v99, v99, 1, s7
    v_xor_b32 v99, v7, v99
    v_mul_u32_u24 v100, {F*2}, v6
    v_lshl_add_u32 v99, v99, 4, v100
    s_mul_i32 s6, s6, {32*F*2}
    s_lshl_b32 s7, s{sFS}, 7
    s_add_u32 s6, s6, s7
    v_add_u32 v{vWD}, s6, v99
    v_add_u32 v{vWD+1}, {8*F*2 - 1024}, v{vWD}
    v_add_u32 v{vWD+2}, {2*(8*F*2 - 1024)}, v{vWD}
    v_add_u32 v{vWD+3}, {3*(8*F*2 - 1024)}, v{vWD}
    s_lshl_b32 s{sG1S}, s{sRB}, 2
    s_add_u32 s{sG1S}, s{sG1S}, s{sW}
    s_lshl_b32 s7, s{sG1S}, 16
    v_xor_b32 v99, v7, v98
    v_lshlrev_b32 v99, 4, v99
    v_lshl_add_u32 v99, v6, 10, v99
    v_add_u32 v{vXD}, s7, v99
    v_xor_b32 v99, 64, v{vXD}
    """)
    for j in range(1, 8):
        r.append(f"v_add_u32 v{vXD+j}, {j*8192 - (j%4)*1024}, v{99 if j & 1 else vXD}")
    rot = f"s_lshl_b32 s{sXK}, s{sRB}, 7" if "norot" not in OPT else f"s_mov_b32 s{sXK}, 0"
    r += lines(f"""
    s_lshl_b32 s{sXM}, s{sW}, 13
    s_lshl_b32 s{sWM}, s{sW}, 12
    s_add_u32 s{sWM}, s{sWM}, 32768
    {rot}
    s_mov_b32 s{rW+2}, {W_BYTES}
    s_cmp_eq_u32 s4, 0
    s_waitcnt lgkmcnt(0)
    s_cselect_b32 s{rW}, s36, s38
    s_cselect_b32 s{rW+1}, s37, s39
    """)
    return r


def g1_setup():
    r = lines(f"""
    v_bfe_u32 v98, v{vLANE}, 1, 3
    v_xor_b32 v98, v4, v98
    v_lshlrev_b32 v98, 4, v98
    v_lshl_add_u32 v98, v5, 7, v98
    s_lshl_b32 s4, s{sW}, 13
    v_add_u32 v{vXB[0]}, s4, v98
    v_xor_b32 v{vXB[1]}, 32, v{vXB[0]}
    v_xor_b32 v{vXB[2]}, 64, v{vXB[0]}
    v_xor_b32 v{vXB[3]}, 96, v{vXB[0]}
    v_add_u32 v{vXA}, {2*SLOT}, v{vXB[0]}
    v_add_u32 v{vXA+1}, {2*SLOT}, v{vXB[1]}
    v_add_u32 v{vXA+2}, {2*SLOT}, v{vXB[2]}
    v_add_u32 v{vXA+3}, {2*SLOT}, v{vXB[3]}
    v_bfe_u32 v98, v{vLANE}, 4, 1
    v_and_b32 v99, 3, v6
    v_lshlrev_b32 v98, 13, v98
    v_lshl_add_u32 v98, v4, 10, v98
    v_bfe_u32 v100, v{vLANE}, 2, 2
    v_lshl_add_u32 v98, v100, 7, v98
    v_and_b32 v101, 3, v{vLANE}
    v_lshl_add_u32 v98, v101, 3, v98
    v_add_u32 v98, 32768, v98
    s_lshl_b32 s4, s{sG1S}, 5
    s_add_u32 s4, s4, s{sFS}
    s_lshl_b32 s4, s4, 7
    s_add_u32 s{sF1}, s4, {FL_H}
    s_lshl_b32 s5, s{sFS}, 2
    s_mul_i32 s4, s{sG1S}, 224
    s_add_u32 s4, s4, s5
    s_lshl_b32 s6, s{sFS}, 12
    s_add_u32 s6, s6, {WS_CS}
    """)
    for t in range(4):
        r += lines(f"""
        s_add_u32 s5, s{sW}, {t}
        s_and_b32 s5, s5, 3
        v_xor_b32 v101, s5, v99
        v_lshl_add_u32 v{vWB[t]}, v101, 5, v98
        v_add_u32 v{vWA+t}, {2*SLOT}, v{vWB[t]}
        s_lshl_b32 s{sCS+t}, s5, 10
        {f"s_add_u32 s{sCS}, s{sCS}, s6" if t == 0 else ""}
        s_add_u32 s5, s5, s4
        s_lshl_b32 s{sHS+t}, s5, 10
        s_add_u32 s{sHS+4+t}, s{sHS+t}, {112*1024}
        """)
    r += lines(f"""
    v_lshrrev_b32 v101, 4, v{vLANE}
    v_cmp_eq_u32 vcc, v100, v101
    s_lshl_b32 s{sG1S}, s{sG1S}, 9
    s_add_u32 s{sG1S}, s{sG1S}, {WS_ST}
    v_mov_b32 v{vSEL}, 0x3f803f80
    v_cndmask_b32 v{vSEL}, 0, v{vSEL}, vcc
    v_mov_b32 v{vSEL+1}, v{vSEL}
    v_mov_b32 v{vSEL+2}, v{vSEL}
    v_mov_b32 v{vSEL+3}, v{vSEL}
    v_lshlrev_b32 v{vG1S}, 3, v5
    v_lshlrev_b32 v{vCA}, 31, v4
    v_lshl_add_u32 v{vCA}, v5, 4, v{vCA}
    s_lshr_b32 s4, s{sRB}, 2
    s_lshl_b32 s4, s4, 9
    s_and_b32 s5, s{sRB}, 3
    s_lshl_b32 s5, s5, 2
    s_add_u32 s4, s4, s5
    s_add_u32 s{sCS+4}, s{sCS}, s4
    """)
    return r


def g1_reads(p, st, ks):
    slot = (st + 1) % 3
    xa, wa, o = (vXA + ks, [vWA + t for t in range(4)], 0) if slot == 2 else (vXB[ks], vWB, slot * SLOT)
    r = [DS(f"ds_read_b128 {vr(FR[p], 4)}, v{xa} offset:{o}")]
    for t in range(4):
        for e in range(2):
            r.append(DS(f"ds_read_b64_tr_b16 {vr(FR[p]+8+4*t+2*e, 2)}, v{wa[t]} offset:{o + ks*2048 + e*512}"))
    r.append(DS(f"ds_read_b128 {vr(FR[p]+4, 4)}, v{xa} offset:{o + 4096}", "g1f"))
    return r


def g1_mfmas(p, first=False):
    m = []
    for rt in range(2):
        for t in range(4):
            acc = vr(ACC1 + (rt * 4 + t) * 16, 16)
            m.append(f"v_mfma_f32_32x32x16_bf16 {acc}, {vr(FR[p]+8+4*t, 4)}, {vr(FR[p]+4*rt, 4)}, {'0' if first else acc}")
    return m


def g1_dmas(st):
    slot = ((st + 1) % 3) * SLOT
    d = []
    for j in range(4):
        pre = [f"s_add_u32 m0, s{sWM}, {slot}", f"s_mul_i32 s{sWK}, s{sXK}, {F}"] if j == 0 else []
        post = [f"s_add_u32 m0, s{sXM}, {slot}"] if j == 3 else []
        d.append(pre + [VM(f"buffer_load_dwordx4 v{vWD+j}, {srd(rW)}, s{sWK} offen offset:{j*1024} lds", f"w{st}")] + post)
    for j in range(8):
        post = [f"s_add_u32 m0, s{sXM}, {slot + 4096}"] if j == 3 else []
        if j == 7:
            post = [f"s_add_u32 s{sXK}, s{sXK}, 128", f"s_and_b32 s{sXK}, s{sXK}, 1023"]
        d.append([VM(f"buffer_load_dwordx4 v{vXD+j}, {srd(rX)}, s{sXK} offen offset:{(j%4)*1024} lds", f"st{st}")] + post)
    return d


def colsum():
    T = 128
    r = [WAIT("w0"), "s_barrier"]
    r += [DS(f"ds_read_b64_tr_b16 {vr(T+4*ks+2*e, 2)}, v{vWB[0]} offset:{SLOT + ks*2048 + e*512}", "csr") for ks in range(4) for e in range(2)]
    m = [WAIT("csr")]
    m += [f"v_mfma_f32_16x16x32_bf16 {vr(vCS,4)}, {vr(vSEL,4)}, {vr(T+4*ks,4)}, {'0' if ks == 0 else vr(vCS,4)}" for ks in range(4)]
    f = lines(f"""
    v_permlane32_swap_b32 v{vCS}, v{vCS+1}
    s_nop 0
    v_add_f32 v{vCS}, v{vCS}, v{vCS+1}
    v_cvt_pk_bf16_f32 v{vCS+1}, v{vCS}, v{vCS}
    v_and_b32 v{vCS+1}, 0xffff0000, v{vCS+1}
    v_sub_f32 v{vCS+1}, v{vCS}, v{vCS+1}
    v_cvt_pk_bf16_f32 v{vCS+1}, v{vCS}, v{vCS+1}
    """) + [VM(f"buffer_store_dword v{vCS+1}, v{vCA}, {srd(rWS)}, s{sCS+4} offen {SC}")]
    return r, m, f


def gemm_role(a):
    a.put(g1_dma_setup())
    a.put(stamp(0))
    d0, d1 = g1_dmas(0), g1_dmas(1)
    n_first = int(OPT.get("nfirst", 5))
    n_late = int(OPT.get("nlate", 4))
    a.put(stats_loads() + [x + ["s_nop 0"] if isinstance(x[-1], str) else x for x in d0[:n_first]])
    su = g1_setup() + setup_common()
    cut = int(OPT.get("sucut", 190))
    a.put(su[:cut])
    a.put(stamp(1))
    rest = d0[n_first:] + d1[:12 - n_late]
    sc, (c_r, c_m, c_f) = stats_compute(), colsum()
    fill = su[cut:] + sc[:50] + [c_r] + sc[50:66] + [c_m] + sc[66:-3] + c_f + sc[-3:]
    a.weave(rest, spread(fill, len(rest), 0, len(rest) - 1))
    late = d1[12 - n_late:]
    a.put([WAIT("st0"), "s_barrier", stamp(2)])
    a.put(g1_reads(0, 0, 0))
    dma_plan = [3] * 32
    pre0 = 6 - NPRE
    for st in range(pre0, 6):
        dma_plan[4 * st:4 * st + 4] = [4, 4, 4, 4]
    dma_plan[24:32] = [int(c) for c in OPT.get("wdplan", "33334440")]
    assert sum(dma_plan[24:28]) <= 12 and sum(dma_plan[24:32]) == 24 and dma_plan[31] == 0
    queue = []
    cd = conv_dma()
    CF, CSL = 224, YB
    for st in range(8):
        if st < 6:
            queue += g1_dmas(st + 2) + (wd_dma(st - pre0) if st >= pre0 else [])
        else:
            queue += sum((wd_dma(NPRE + 3 * (st - 6) + j) for j in range(3)), [])
        for ks in range(4):
            p = ks & 1
            side = [[] for _ in range(8)]
            nxt, post = [], []
            if ks < 3:
                a.put(WAIT("g1f"))
                nxt = g1_reads(p ^ 1, st, ks + 1)
            elif st < 7:
                a.put([WAIT(f"st{st+1}", "allds"), "s_barrier", stamp([3, 4, 5, 6, 7, 8, 9][st], True)])
                nxt = g1_reads(p ^ 1, st + 1, 0)
            else:
                a.put([WAIT("allds", "p_kv", "csf"), lambda e: poll(e, LD_KV, "1"), "s_barrier"])
            if st == 0 and ks == 0 and late:
                side = spread(late, 8, 0, 5)
            if (st, ks) == (1, 0):
                sig = init_signal()
                side = spread(sig[:-1], 8, 0, 3)
                side[4] = [sig[-1]]
            if (st, ks) == (int(OPT.get("tst", pre0)), 3) and "notouch" not in OPT:
                side = spread(lines(f"""
                v_lshrrev_b32 v4, 2, v{vLANE}
                v_lshlrev_b32 v4, 7, v4
                s_lshl_b32 s5, s{sMH}, 11
                s_add_u32 s5, s5, s{sSKO}
                """), 8, 5, 7)
                post = [VM(f"buffer_load_dword v7, v4, {srd(rSK)}, s5 offen")]
            if (st, ks) == (5, 3):
                side[3] = side[3] + [VM(LD_INIT, "p_init")]
            if pre0 < st <= 6 and ks == 2:
                side = spread([WAIT(f"wd{st-1-pre0}")] + wd_reads(st - 1 - pre0), 8, 4, 7)
            if (st, ks) == (6, 3):
                side[4] = [WAIT("p_init"), lambda e: poll(e, LD_INIT, "0x80")]
            if (st, ks) == (7, 0):
                side = spread([VM(f"buffer_load_dwordx2 {vr(vMS+2*rt,2)}, v{vG1S}, {srd(rWS)}, s{sG1S} offen offset:{256*rt} {SC}", "g1st") for rt in range(2)] +
                              [[f"s_lshl_b32 s4, s{sW}, 10", f"s_add_u32 m0, s4, {CSL}", f"v_add_u32 v{vDS}, {CSL}, v{vL16}",
                                VM(f"buffer_load_dwordx4 v{vL16}, {srd(rWS)}, s{sCS} offen {SC} lds", "csf")]], 8, 0, 3)
            if st == 7 and ks in (1, 2):
                side = spread([WAIT(f"wd{NPRE+ks-1}")] + wd_reads(NPRE + ks - 1), 8, 0, 4)
            if (st, ks) == (7, 2):
                side = merge(side, spread([f"v_add_u32 v{vGC+t}, s{sCS+t}, v{vDS}" for t in range(1, 3)] +
                                          [f"v_add_u32 v{vGC}, s4, v{vDS}", f"v_add_u32 v{vDS}, s{sCS+3}, v{vDS}"], 8, 5, 7))
            if (st, ks) == (7, 3):
                c = [WAIT("g1st")]
                for rt in range(2):
                    b = vCS + 4 * rt
                    c += [f"v_cvt_pk_bf16_f32 v{b}, -v{vMS+2*rt}, -v{vMS+2*rt}"] + [f"v_mov_b32 v{b+j}, v{b}" for j in range(1, 4)]
                cr = [DS(f"ds_read_b128 {ar(CF+4*t,4)}, v{[vGC, vGC+1, vGC+2, vDS][t]}") for t in range(4)]
                side = merge(spread(cd[:4], 8), spread(cr + [WAIT(f"wd{NPRE+2}")] + wd_reads(NPRE + 2), 8, 0, 5), spread(c, 8, 4, 7))
            if (st, ks) == (7, int(OPT.get("pkv", 1))):
                side[0] = [VM(LD_KV, "p_kv")] + side[0]
            dd = [[] for _ in range(8)]
            cnt = dma_plan[st * 4 + ks]
            for j in range(cnt):
                dd[8 - cnt + j] = queue.pop(0)
            dd[7] = dd[7] + post
            a.weave(g1_mfmas(p, first=(st == 0 and ks == 0)), merge(spread(nxt, 8, 0, 5) if nxt else [[]], side, dd))
    a.put([stamp(3), stamp(12, True), WAIT("allds")])
    c = conv_zero_addr() + ["v_mov_b32 v6, 0"]
    for rt in range(2):
        den, c1 = vMS + 2 * rt + 1, vGC + 4 * rt
        c += lines(f"""
        v_rcp_f32 v{c1}, v{den}
        v_mul_f32 v{c1+2}, v{den}, v{den}
        v_mul_f32 v{c1+1}, v{c1}, v{c1}
        v_mul_f32 v{c1+1}, v{c1+1}, v{c1}
        v_mul_f32 v{c1}, {hx(f2u(C1))}, v{c1}
        v_mul_f32 v{c1+1}, {hx(f2u(C2))}, v{c1+1}
        """)
    ms = []
    for n in range(8):
        acc = vr(ACC1 + n * 16, 16)
        ms.append(f"v_mfma_f32_32x32x16_bf16 {acc}, {ar(CF+4*(n&3),4)}, {vr(vCS+4*(n>>2),4)}, {acc}")
    a.weave(ms, merge(spread(cd[8:12], 8), spread(conv_zero(6), 8, 5, 6), spread(c, 8, 0, 5)))
    a.put(stamp(4))
    plan = OPT.get("gplan", "ab------")
    extra = {"c": cd[4:8], "-": [[], [], [], []]}
    extra.update({str(j): [[], cd[4 + j], [], []] for j in range(4)})
    extra.update({"a": [cd[4], [], cd[5], []], "b": [cd[6], [], cd[7], []]})
    for n in range(8):
        rt, t = n >> 2, n & 3
        c1, acc, T = vGC + 4 * rt, ACC1 + n * 16, 88 + 12 * (t & 1)
        ex = extra[plan[n]]
        if n == 7:
            ex = [[], [], [], [WAIT("cv_dma", "cv_zero"), "s_barrier"] + conv_reads(0)[:NHEAD]]
        E = range(0, 8, 2)
        a.put([f"v_pk_mul_f32 {vr(T+j,2)}, {vr(acc+j,2)}, {vr(acc+j,2)}" for j in E])
        a.put([f"v_pk_fma_f32 {vr(T+j,2)}, {vr(T+j,2)}, {vr(c1,2)}, {vr(c1,2)} op_sel:[0,1,0] op_sel_hi:[1,1,0]" for j in E])
        a.put([f"v_pk_mul_f32 {vr(T+j,2)}, {vr(T+j,2)}, {vr(acc+j,2)}" for j in E] + ex[0])
        a.put([f"v_exp_f32 v{T+j}, v{T+j}" for j in range(8)] + ex[1])
        a.put([f"v_pk_mul_f32 {vr(acc+j,2)}, {vr(acc+j,2)}, {vr(acc+8+j,2)}" for j in E])
        a.put([f"v_pk_fma_f32 {vr(T+j,2)}, {vr(T+j,2)}, {vr(c1+2,2)}, {vr(c1+2,2)} op_sel_hi:[1,0,0]" for j in E] + ex[2])
        a.put([f"v_rcp_f32 v{T+j}, v{T+j}" for j in range(8)] + ex[3])
        a.put([f"v_pk_mul_f32 {vr(acc+j,2)}, {vr(acc+j,2)}, {vr(T+j,2)}" for j in E])
        a.put([f"v_cvt_pk_bf16_f32 v{acc+8+j}, v{acc+2*j}, v{acc+2*j+1}" for j in range(4)])
        a.put(VM(f"buffer_store_dwordx4 {vr(acc+8,4)}, v{vL16}, {srd(rWS)}, s{sHS+n} offen {SC}", "h_st"))
        a.put(stamp([5, 6, 7, 8, 9, 12, 13, 11][n], "ge"))

    a.put(stamp(5))


def service_role(a):
    TAPB = 8 * KVT
    a.put(lines(f"""
    s_sub_u32 s{sFS}, s2, 224
    s_lshl_b32 s6, s{sFS}, 16
    s_lshr_b32 s7, s{sW}, 1
    s_and_b32 s4, s{sW}, 1
    v_lshlrev_b32 v8, 10, v6
    v_lshl_add_u32 v8, v7, 4, v8
    v_add_u32 v8, s6, v8
    v_subrev_u32 v12, 8192, v8
    s_mul_i32 s5, s4, 3
    s_add_u32 s5, s5, 5
    s_cmp_eq_u32 s{sFS}, 0
    s_cselect_b32 s5, 8, s5
    v_cmp_le_u32 vcc, s5, v6
    v_add_u32 v9, {8192 - KVP}, v8
    v_bfrev_b32 v29, 1
    v_cndmask_b32 v12, v29, v12, vcc
    v_add_u32 v10, {2*(8192 - KVP)}, v8
    s_mul_i32 s{sXM}, s{sW}, {VB}
    s_lshl_b32 s{sXK}, s7, 7
    s_mov_b32 s{rW+2}, {X_BYTES}
    s_lshl_b32 s5, s{sW}, 10
    v_add_u32 v13, s5, v{vL16}
    s_add_u32 m0, s5, {TAPB}
    s_cmp_eq_u32 s4, 0
    s_waitcnt lgkmcnt(0)
    s_cselect_b32 s{rW}, s{pKV}, s{pKV+2}
    s_cselect_b32 s{rW+1}, s{pKV+1}, s{pKV+3}
    """))
    a.put(stamp(0))
    nt = OPT.get("kvpol", "nt").replace("none", "")

    def tile_dma(tag):
        r = [[f"s_mov_b32 m0, s{sXM}", f"s_add_u32 s{sWM}, s{sXK}, {3*8192}",
              VM(f"buffer_load_dwordx4 v12, {srd(rW)}, s{sXK} offen lds")]]
        for j in range(8):
            q, pre = j % 3, []
            so = sXK if j < 3 else sWM
            if q == 0:
                pre = [f"s_add_u32 m0, s{sXM}, {(j+1)*KVP}", f"s_add_u32 s{sWM}, s{sWM}, {3*8192}" if j == 6 else "s_nop 0"]
            r.append(pre + [VM(f"buffer_load_dwordx4 v{8+q}, {srd(rW)}, s{so} offen offset:{q*KVP} {nt} lds", tag)])
        r[-1] += [f"s_add_u32 s{sXM}, s{sXM}, {2*KVT}", f"s_add_u32 s{sXK}, s{sXK}, 256"]
        return r

    if "x_nold" in OPT:
        a("v_mov_b32 v8, v29\nv_mov_b32 v9, v29\nv_mov_b32 v10, v29\nv_mov_b32 v12, v29")
    d0, n0 = tile_dma("kv0"), 5
    a.put(stats_loads() + [VM(f"global_load_lds_dwordx4 v13, s[{pSH}:{pSH+1}]")] + d0[:n0])
    a.put(lines(f"""
    s_lshl_b32 s5, s{sW}, 3
    v_add_u32 v11, s5, v6
    v_lshlrev_b32 v14, 5, v11
    v_add_u32 v14, {TAPB}, v14
    v_sub_u32 v13, 7, v7
    v_mul_u32_u24 v13, {KVP}, v13
    v_lshl_add_u32 v13, v6, 3, v13
    s_mul_i32 s5, s7, {KVT}
    s_lshl_b32 s4, s4, 6
    s_add_u32 s5, s5, s4
    v_add_u32 v13, s5, v13
    v_mul_u32_u24 v15, {4*KVP_COPY}, v11
    v_lshl_add_u32 v15, v7, 4, v15
    s_lshl_b32 s5, s{sFS}, 7
    s_sub_u32 s{sHS}, {WS_KV + 4096 - 128}, s5
    s_lshl_b32 s4, s{sW}, 12
    s_add_u32 s4, s4, s5
    s_add_u32 s{sF1}, s4, {FL_K}
    """))
    a.put(setup_common(0))
    d01 = d0[n0:] + tile_dma("kv1")
    a.weave(d01, spread(stats_compute(), len(d01), 0, int(OPT.get("svs", 6))))
    a.put(stamp(2))
    RAW, TR, TP, UNP, U, OUT = 64, 16, 32, 128, 172, 192

    def tile_reads():
        r = [DS(f"ds_read_b128 {vr(TR+4*h,4)}, v14 offset:{16*h}") for h in range(2)]
        for jj in range(19):
            rho, base = (5 + jj, KB) if jj < 11 else (jj - 3, VB)
            r.append(DS(f"ds_read_b64 {vr(RAW+2*jj,2)}, v13 offset:{base + (rho >> 3) * KVP + (rho & 7) * 128}"))
        return r + [f"v_add_u32 v13, {2*KVT}, v13", "v_add_u32 v14, 1024, v14"]

    def pair(h):
        r = []
        for j in range(10):
            for ch in range(2):
                r.append(f"v_perm_b32 v{UNP+2*j+ch}, v{RAW+2*j+h}, v{RAW+2*(j+1)+h}, s{80+ch}")
        for j in range(11, 19):
            r += [f"v_lshlrev_b32 v{UNP+2*j}, 16, v{RAW+2*j+h}", f"v_and_b32 v{UNP+2*j+1}, s83, v{RAW+2*j+h}"]
        if h:
            r += [f"v_pk_mov_b32 {vr(TP+2*ch,2)}, {vr(TR+4+2*ch,2)}, {vr(TR+4+2*ch,2)} op_sel:[0,1]" for ch in range(2)]
        tp = TP if h else TR
        m = [f"v_dot2_f32_bf16 v{U+2*jj+ch}, v{UNP+2*jj+ch}, v{tp+2*ch+1}, 0" for jj in range(8) for ch in range(2)]
        m += [f"v_dot2_f32_bf16 v{U+2*jj+ch}, v{UNP+2*(jj+2)+ch}, v{tp+2*ch}, v{U+2*jj+ch}" for jj in range(8) for ch in range(2)]
        m += [f"v_pk_mul_f32 {vr(U+2*jj,2)}, {vr(U+2*jj,2)}, {vr(UNP+2*(11+jj),2)}" for jj in range(8)]
        st = []
        for ch in range(2):
            o = OUT + 8 * h + 4 * ch
            m += [f"v_cvt_pk_bf16_f32 v{o+e}, v{U+2*(7-2*e)+ch}, v{U+2*(6-2*e)+ch}" for e in range(4)]
            st.append([VM(f"buffer_store_dwordx4 {vr(o,4)}, v15, {srd(rWS)}, s{sHS} offen {SC}"),
                       f"s_add_u32 s{sHS}, s{sHS}, {KVP_COPY if 2*h+ch < 3 else 125*KVP_COPY}"])
        return r, m, st

    def mix(alu, mem):
        g = spread(alu, len(mem) + 1)
        a.put(g[0])
        a.weave(mem, g[1:])

    (u0, m0_, st0), (u1, m1_, st1) = pair(0), pair(1)
    pad = lines(f"""
    s_lshl_b32 s4, s{sW}, 5
    s_add_u32 s4, s4, s{sFS}
    s_mul_i32 s4, s4, {KVP_COPY}
    s_add_u32 s{sHS+1}, s4, {WS_KV + 4096}
    v_and_b32 v24, 3, v6
    v_mul_u32_u24 v24, {128*KVP_COPY}, v24
    v_lshl_add_u32 v24, v7, 4, v24
    v_mov_b32 v40, 0
    v_mov_b32 v41, 0
    v_mov_b32 v42, 0
    v_mov_b32 v43, 0
    s_mov_b32 s83, 0xffff0000
    s_mov_b32 s80, 0x05040100
    s_mov_b32 s81, 0x07060302
    """)
    a.put([WAIT("kv0"), "s_barrier"] + tile_reads() + pad)
    for it in range(4):
        dm = tile_dma(f"kv{it+2}") if it < 2 else []
        if it == 2:
            dm = [[VM(f"buffer_store_dwordx4 v[40:43], v24, {srd(rWS)}, s{sHS+1} offen {SC}")]]
        a.put([WAIT("allds"), stamp([5, 7, 9, 13][it], "sv")])
        mix(u0 + m0_, (st1 if it else []) + dm[:5])
        mix(u1, st0 + dm[5:6])
        a.put(stamp([6, 8, 12, 10][it], "sv"))
        if it < 3:
            a.put([WAIT(f"kv{it+1}"), "s_barrier"] + tile_reads())
        if it == 0:
            a.put(init_signal())
        mix(m1_, dm[6:])
    a.put(st1)
    a.put(stamp(3))
    su = setup_common(1)
    a.put(su[:110] + [WAIT("allvm"), stamp(1)] + publish(sF1))
    a.put([VM(LD_INIT, "p_init")] + su[110:] + [WAIT("p_init"), lambda e: poll(e, LD_INIT, "0x80"), "s_barrier", stamp(4)])
    cd = conv_dma()
    a.put(cd[8:12] + [wd_dma(g, g) for g in range(6)])
    for g in range(6):
        a.put([WAIT(f"wd{g}")] + wd_reads(g, g))
    G = NPRE + 3
    a.put([WAIT("allds"), VM(LD_KV, "p_kv")] + [wd_dma(g, g - 6) for g in range(6, G)] + [wd_dma(g) for g in range(G, G + 3)])
    a.put([WAIT("p_kv"), lambda e: poll(e, LD_KV, "1"), "s_barrier"])
    a.put(cd[:8] + conv_zero_addr() + ["v_mov_b32 v12, 0"] + conv_zero(12))
    for g in range(6, G):
        a.put([WAIT(f"wd{g}")] + wd_reads(g, g - 6))
    a.put([WAIT("allvm", "allds"), "s_barrier"] + conv_reads(0)[:NHEAD])
    a.put(stamp(5))


HR, NH = 192, 16


def h_load(n):
    st, ks = divmod(n, 28)
    pre = []
    if ks and ks % 2 == 0:
        pre = [f"s_cmp_eq_u32 s{sHL+st}, s{sHE+st}", f"s_cselect_b32 s7, s80, s81", f"s_add_u32 s{sHL+st}, s{sHL+st}, s7"]
    if n == 0:
        pre = [f"s_mov_b32 s80, {hx(-13*2048)}", "s_mov_b32 s81, 2048"]
    return pre + [VM(f"buffer_load_dwordx4 {vr(HR + 4*(n % NH), 4)}, v{vL16}, {srd(rWS)}, s{sHL+st} offen offset:{(ks%2)*1024} {SC}", f"h{n}")]


def conv(a):
    for m in range(4):
        p = m & 1
        ms = []
        for aa in range(8):
            for b in range(8 - aa):
                acc = vr(CACC + 4 * (aa + b), 4)
                c = "0" if (m == 0 and aa == 0) else acc
                ms.append(f"v_mfma_f32_16x16x32_bf16 {acc}, {rg(CUF[p], 4*b, 4)}, {rg(CHF[p], 4*aa, 4)}, {c}")
        G = NPRE + 3
        if m == 0:
            rest = conv_reads(0)[NHEAD:]
            fl = merge(spread(rest + conv_reads(1), 36, 0, len(rest) + 16), spread(wd_dma(G + 3) + wd_dma(G + 4), 36, 12, 36))
            need = {b: f"cu{b}" for b in (0, 2, 4, 5, 6, 7)}
            need.update({8: "ch1", 15: "cf0"})
            need[0], need[2] = "cu1", "cu3"
            ms = [[WAIT(need[i]), x] if i in need else x for i, x in enumerate(ms)]
        elif m == 1:
            a.put([WAIT("allds", "h_st"), stamp(6)] + publish(sF1))
            fl = merge(spread(wd_reads(G) + conv_reads(2), 36, 0, 30), spread(wd_dma(G + 5), 36, 0, 12),
                       spread([WAIT(f"wr{G}")] + wd_dma(G + 6), 36, 16, 36))
            fl[31] += [DS(f"ds_read_b32 v0, v{vRW}")]
        elif m == 2:
            a.put(WAIT("cf2"))
            fl = spread(wd_reads(G + 1) + wd_reads(G + 2) + conv_reads(3), 36, 0, 33)
            if G + 7 < 14:
                fl = merge(fl, spread([WAIT(f"wr{G+1}")] + wd_dma(G + 7), 36, 11, 17))
            fl[int(OPT.get("php", 17))] += [VM(LD_H, "p_h")]
        else:
            a.put([WAIT("allds", "p_h"), lambda e: poll(e, LD_H, "1"), stamp(7)])
            fl = spread([h_load(n) for n in range(NH - 1)], 36, 0, 36)
            fl = merge(fl, spread([DS(f"ds_read_b64 {vr(96+2*j,2)}, v{vDT} offset:{(3-j)*512}", "dt") for j in range(4)], 36, 0, 20))
        a.weave(ms, fl)
    odd, join = a.label("odd"), a.label("join")
    a.put([stamp(8), f"v_and_b32 v{vDV}, 0xffff0000, v{vDV}", WAIT("dt")])
    for j in range(4):
        for r in range(4):
            src = 96 + 2 * j + (1 - (r >> 1))
            a(f"v_lshlrev_b32 v{8+4*j+r}, 16, v{src}" if r & 1 else f"v_and_b32 v{8+4*j+r}, 0xffff0000, v{src}")
    a(f"s_cmp_eq_u32 s{sMH}, 0\ns_cbranch_scc0 {odd}")
    n0 = a.nds
    dv = f"v[{vDV-1}:{vDV}]"
    for half, end in ((0, f"s_branch {join}\n{odd}:"), (1, f"{join}:")):
        a.nds = n0
        a.put([DS(f"ds_write_b128 v{vRW}, {vr(CACC+16*(1-half)+4*j,4)} offset:{j*1024}") for j in range(4)])
        a.put([f"v_pk_fma_f32 {vr(8+j,2)}, {vr(8+j,2)}, {dv}, {vr(CACC+16*half+j,2)} op_sel:[0,1,0] op_sel_hi:[1,1,1]" for j in range(0, 16, 2)])
        a(end)
    a.put([WAIT("allds"), "s_barrier"])
    a.put([DS(f"ds_read_b128 {vr(96+4*j,4)}, v{vRR} offset:{j*1024}", f"rr{j}") for j in range(4)])
    for j in range(4):
        a.put([WAIT(f"rr{j}"),
               f"v_pk_add_f32 {vr(8+4*j,2)}, {vr(8+4*j,2)}, {vr(96+4*j,2)}",
               f"v_pk_add_f32 {vr(10+4*j,2)}, {vr(10+4*j,2)}, {vr(98+4*j,2)}",
               f"v_cvt_pk_bf16_f32 v{24+2*j}, v{8+4*j}, v{9+4*j}",
               f"v_cvt_pk_bf16_f32 v{25+2*j}, v{10+4*j}, v{11+4*j}",
               VM(f"buffer_store_dwordx2 {vr(24+2*j,2)}, v{vL8}, {srd(rWS)}, s{sYS} offen offset:{j*512} {SC}", "y_st")])
    a.put(stamp(9))


ACC2 = 128
XR, SR, XF, YV, PB = 32, 40, 8, 96, 64


def part_writes(p):
    return [DS(f"ds_write_b128 v{vPW+rq}, {vr(ACC2 + (p*2+u)*16 + 4*rq, 4)} offset:{p*SLOT + u*128}", f"pw{p}")
            for u in range(2) for rq in range(4)]


def part_reads(p):
    pre = [f"v_add_u32 v{vPR+e}, {SLOT}, v{vPR+e}" for e in range(2)] if p else []
    return pre, [DS(f"ds_read_b128 {vr(PB + 8*w + 4*e, 4)}, v{vPR+e} offset:{w*WDW}", f"pr{p}") for w in range(4) for e in range(2)]


XN = 24


def gate_first():
    b, r = PB, []
    for o in (8, 16, 24):
        r += [f"v_add_f32 v{b+j}, v{b+j}, v{b+o+j}" for j in range(8)]
    r += [f"v_mul_f32 v{b+8+j}, {hx(f2u(-1.4426950408889634))}, v{b+j}" for j in range(8)]
    r += [f"v_exp_f32 v{b+8+j}, v{b+8+j}" for j in range(8)]
    r += [f"v_mul_f32 v{XN+j}, v{XN+j}, v{b+j}" for j in range(8)]
    r += [f"v_add_f32 v{b+8+j}, 1.0, v{b+8+j}" for j in range(8)]
    r += [f"v_rcp_f32 v{b+8+j}, v{b+8+j}" for j in range(8)]
    r += [f"v_mul_f32 v{XN+j}, v{XN+j}, v{b+8+j}" for j in range(8)]
    return r


def out_store(p, src):
    return [f"v_cvt_pk_bf16_f32 v{44+j}, v{src+2*j}, v{src+2*j+1}" for j in range(4)] + \
        [VM(f"buffer_store_dwordx4 {vr(44,4)}, v{vXO}, {srd(rOUT)}, s{sXO+p} offen {OPT.get('outpol', '')}")]


def finalize_last():
    b, r, E = PB, [], range(0, 8, 2)
    for j in E:
        r += [f"v_pk_add_f32 {vr(b+j,2)}, {vr(b+j,2)}, {vr(b+8+j,2)}", f"v_pk_add_f32 {vr(b+16+j,2)}, {vr(b+16+j,2)}, {vr(b+24+j,2)}"]
    r += [f"v_pk_add_f32 {vr(b+j,2)}, {vr(b+j,2)}, {vr(b+16+j,2)}" for j in E]
    r += [f"v_pk_mul_f32 {vr(b+8+j,2)}, {vr(b+j,2)}, v[4:5] op_sel_hi:[1,0]" for j in E]
    r += [f"v_exp_f32 v{b+8+j}, v{b+8+j}" for j in range(8)]
    r += [f"v_pk_mul_f32 {vr(b+j,2)}, {vr(b+j,2)}, {vr(YV+8+j,2)}" for j in E]
    r += [f"v_pk_add_f32 {vr(b+8+j,2)}, {vr(b+8+j,2)}, 1.0 op_sel_hi:[1,0]" for j in E]
    r += [f"v_rcp_f32 v{b+8+j}, v{b+8+j}" for j in range(8)]
    r += [f"v_pk_fma_f32 {vr(b+j,2)}, {vr(b+j,2)}, {vr(b+8+j,2)}, {vr(XF+8+j,2)}" for j in E]
    return r + out_store(1, b)


def gemm2(a):
    side = [[] for _ in range(112)]

    def place(items, n0, n1):
        for g, l in enumerate(spread(items, 112, 2 * n0, 2 * n1)):
            side[g] += l

    place(sum((wd_reads(g) for g in range(NPRE + 6, 14)), []) + [DS(f"ds_read_b32 v0, v{vRW}")], 0, 10)
    place([VM(f"buffer_load_dwordx4 {vr(XR+4*p,4)}, v{vXO}, {srd(rX)}, s{sXO+p} offen") for p in range(2)] +
          [VM(f"buffer_load_dwordx2 {vr(SR+2*p,2)}, v{vSO}, {srd(rWS)}, s{sSO+p} offen {SC}", "xs") for p in range(2)], 0, 4)
    NF = int(OPT.get("nf", 10))
    place([[WAIT("y_st")] + publish(sF2)], NF, NF + 1)
    NY = int(OPT.get("ny", 30))
    place([VM(LD_Y, "p_y")], NY, NY + 1)
    place([stamp(12)], int(OPT.get("s12", 28)), 56)
    place([stamp(13)], int(OPT.get("s13", 42)), 56)
    xs = [WAIT("xs")]
    for p in range(2):
        xs.append(f"v_rcp_f32 v{SR+2*p+1}, v{SR+2*p+1}")
        for j in range(4):
            xs += [f"v_lshlrev_b32 v{XF+8*p+2*j}, 16, v{XR+4*p+j}", f"v_and_b32 v{XF+8*p+2*j+1}, 0xffff0000, v{XR+4*p+j}"]
        xs.append(f"v_mul_f32 v{SR+2*p}, v{SR+2*p}, v{SR+2*p+1}")
    xs += [f"v_fma_f32 v{XN+8*p+j}, v{XF+8*p+j}, v{SR+2*p+1}, -v{SR+2*p}" for p in range(2) for j in range(8)]
    xs += [f"v_mov_b32 v{YV+j}, 0" for j in range(16)] + [f"v_mov_b32 v4, {hx(f2u(-1.4426950408889634))}"]
    place(xs, 18, 28)
    place(part_writes(0), 30, 34)
    pre1, rd1 = part_reads(1)
    place([[WAIT("pw0"), "s_barrier"]] + part_reads(0)[1], 35, 37)
    place([WAIT("pr0")] + pre1 + gate_first(), 38, 50)
    place([[WAIT("p_y"), lambda e: poll(e, LD_Y, "1"), f"s_mov_b32 m0, s{sYM}", f"s_add_u32 s4, s{sYD}, {8*KVP_COPY - YP}",
            VM(f"buffer_load_dwordx4 v{vYD}, {srd(rWS)}, s{sYD} offen {SC} lds")],
           VM(f"buffer_load_dwordx4 v{vYD}, {srd(rWS)}, s4 offen offset:{YP} {SC} lds", "y_dma")], NY + 10, NY + 11)
    place([[WAIT("y_dma"), "s_barrier"]] +
          [DS(f"ds_read_u16_d16_hi v{YV+8*p+j}, v{vYG+p} offset:{j*128}", "yg") for p in range(2) for j in range(8)], 50, 52)
    place([WAIT("yg")] + [f"v_fma_f32 v{XN+j}, v{XN+j}, v{YV+j}, v{XF+j}" for j in range(8)] + out_store(0, XN) +
          [f"v_mul_f32 v{YV+8+j}, v{YV+8+j}, v{XN+8+j}" for j in range(8)], 53, 56)
    a.put(WAIT("wd13"))
    for n in range(56):
        st, ks = divmod(n, 28)
        w = [f"h{n}"] + ([f"wr{ks // 2}"] if st == 0 and ks >= 2 * (NPRE + 6) and ks % 2 == 0 else [])
        a.put(WAIT(*w))
        ms = []
        for u in range(2):
            acc = vr(ACC2 + (st * 2 + u) * 16, 16)
            ms.append(f"v_mfma_f32_32x32x16_bf16 {acc}, {ar(ks*8+u*4,4)}, {vr(HR + 4*(n % NH), 4)}, {'0' if ks == 0 else acc}")
        nxt = h_load(n + NH - 1) if n + NH - 1 < 56 else []
        a.weave(ms, [nxt + side[2 * n], side[2 * n + 1]])
    a.put([stamp(10), "s_nop 9"] + part_writes(1) + [WAIT("pw1"), "s_barrier"] + rd1 + [WAIT("pr1")] + finalize_last())


def build():
    a = Em()
    entry(a)
    a(f"s_cmp_ge_u32 s{sIDX}, 28\ns_cbranch_scc1 L_service")
    snap = (a.nvm, a.nds)
    gemm_role(a)
    a("L_join:")
    conv(a)
    gemm2(a)
    if STAMP:
        a.put([stamp(11), WAIT("allvm"), stamp(15)])
        a(f"""
        s_add_u32 s{rWS}, s{rWS}, {WS_TS}
        s_addc_u32 s{rWS+1}, s{rWS+1}, 0
        s_lshl_b32 s4, s2, 3
        s_add_u32 s4, s4, s{sW}
        s_lshl_b32 s4, s4, 7
        v_lshlrev_b32 v4, 2, v{vLANE}
        s_mov_b64 exec, 0xffffffff
        buffer_store_dword v{vST}, v4, {srd(rWS)}, s4 offen
        """)
    if "diag" in OPT:
        k = int(OPT["diag"])
        a(f"""
        v_readlane_b32 s4, v{vST}, 30
        v_readlane_b32 s5, v{vST}, {16 + k}
        s_nop 3
        s_cmp_eq_u32 s5, 0
        s_cselect_b32 s5, s4, s5
        s_cmp_eq_u32 s2, {OPT.get("diagwg", 40)}
        s_cselect_b32 s5, s5, s4
        s_add_u32 s5, s5, 4000
        L_diag:
        s_memrealtime s[94:95]
        s_waitcnt lgkmcnt(0)
        s_sub_u32 s6, s94, s5
        s_cmp_lt_i32 s6, 0
        s_cbranch_scc1 L_diag
        """)
    a("L_exit:\ns_endpgm\nL_service:")
    a.nvm, a.nds = snap
    service_role(a)
    a("s_branch L_join")
    for t in a.tail:
        a(t)
    a("L_end:\ns_endpgm")
    hdr = open("cdna_kernels/" + NAME + ".s.ref").read().split("; Override launch")[0]
    t = hdr + f"; @launch grid=(256,1,1) block=(256,1,1) lds={LDS_BYTES}\n" + HEAD + kernel_text(KERNEL, a.text())
    t += '.section .rodata,"a"\n' + descriptor(KERNEL, vgpr=512, accum=256)
    return t


if __name__ == "__main__":
    open(sys.argv[1], "w").write(build())
```

```python
from asmlib import Asm


class Em(Asm):
    def __init__(self):
        super().__init__()
        self.nvm = 0
        self.nds = 0
        self.tags = {}
        self.tail = []

    def put(self, it):
        if it is None:
            return
        if isinstance(it, str):
            for ln in it.split("\n"):
                s = ln.strip()
                assert not s.startswith(("buffer_", "global_", "ds_")), s
            self(it)
        elif isinstance(it, list) or type(it).__name__ == "ATOM":
            for x in it:
                self.put(x)
        elif callable(it):
            it(self)
        elif it[0] == "vm":
            assert it[3] is None or it[3] in self.tags, it
            self(it[1])
            self.nvm += 1
            if it[2]:
                self.tags[it[2]] = ("vm", self.nvm)
        elif it[0] == "ds":
            self(it[1])
            self.nds += 1
            if it[2]:
                self.tags[it[2]] = ("ds", self.nds)
        elif it[0] == "wait":
            vm, ds = None, None
            for t in it[1]:
                if t == "allds":
                    ds = 0
                elif t == "allvm":
                    vm = 0
                else:
                    kind, n = self.tags[t]
                    if kind == "vm":
                        c = min(63, self.nvm - n)
                        vm = c if vm is None else min(vm, c)
                    else:
                        c = min(15, self.nds - n)
                        ds = c if ds is None else min(ds, c)
            s = "s_waitcnt"
            if vm is not None:
                s += f" vmcnt({vm})"
            if ds is not None:
                s += f" lgkmcnt({ds})"
            self(s)
        else:
            raise ValueError(it)

    def weave(self, anchors, fillers):
        for i, m in enumerate(anchors):
            self.put(m)
            if i < len(fillers):
                self.put(fillers[i])


def VM(text, tag=None, after=None):
    return ("vm", text, tag, after)


def DS(text, tag=None):
    return ("ds", text, tag)


def WAIT(*tags):
    return ("wait", list(tags))


def lines(s):
    return [x.strip() for x in s.strip().split("\n") if x.strip()]


def _kind(it):
    if isinstance(it, tuple) and it[0] in ("vm", "ds"):
        return "mem"
    return "alu"


def _cost(it):
    if isinstance(it, list):
        return sum(_cost(x) for x in it)
    if it is None:
        return 0
    if callable(it):
        return 8
    if isinstance(it, str) and it.strip().startswith(("v_exp", "v_rcp", "v_sqrt")):
        return 8
    if isinstance(it, tuple) and it[0] == "ds" and it[1].startswith("ds_write_b128"):
        return 20
    return 4


def flat(items):
    r = []
    for x in items:
        if isinstance(x, list):
            r += flat(x)
        elif x is not None:
            r.append(x)
    return r


class ATOM(tuple):
    pass


class CHAIN(list):
    pass


def _isvm(it):
    if isinstance(it, ATOM):
        it = it[0]
    return isinstance(it, tuple) and it[0] == "vm"


def _timed(items, g0, g1):
    items = flat(items)
    n = len(items)
    vm = [i for i, it in enumerate(items) if _isvm(it)]
    if len(vm) <= 1:
        return [(g0 + i * (g1 - g0) / max(n, 1), it) for i, it in enumerate(items)]
    dt, t, prev = (g1 - g0) / len(vm), [0] * n, -1
    for k, i in enumerate(vm + [n]):
        lo, hi = g0 + (k - 0.5) * dt, g0 + (k + 0.5) * dt
        for j in range(prev + 1, min(i + 1, n)):
            t[j] = max(g0, lo + (hi - lo) * (j - prev) / (i - prev)) if i < n else lo
        prev = i
    return list(zip(t, items))


def schedule(ngaps, streams, budget, maxmem):
    qs = []
    for st in streams:
        qs.append(sum((_timed(*seg) for seg in st), []) if isinstance(st, CHAIN) else _timed(*st))
    out = []
    for g in range(ngaps):
        gap, used, nmem, alu_seen = [], 0, 0, False
        while True:
            cand = []
            for q in qs:
                if not q or q[0][0] >= g + 1:
                    continue
                it = q[0][1]
                real = list(it) if isinstance(it, ATOM) else it
                mem = _kind(real[0] if isinstance(real, list) else real) == "mem"
                if mem and (alu_seen or nmem >= maxmem):
                    continue
                if used and used + _cost(real) > (budget[g] if isinstance(budget, list) else budget):
                    continue
                cand.append((0 if mem else 1, q[0][0], q, real, mem))
            if not cand:
                break
            cand.sort(key=lambda c: (c[0], c[1]))
            _, _, q, real, mem = cand[0]
            q.pop(0)
            gap.append(real)
            used += _cost(real)
            nmem += mem
            alu_seen |= (not mem) or isinstance(real, list)
        out.append(gap)
    rest = [(t, i, k, it) for i, q in enumerate(qs) for k, (t, it) in enumerate(q)]
    prev = None
    for _, _, _, it in rest:
        real = list(it) if isinstance(it, ATOM) else it
        if isinstance(prev, str) and " m0," in prev:
            out[-1].append("s_nop 0")
        out[-1].append(real)
        prev = real
    if rest and len(out[-1]) > len(rest):
        k = len(out[-1]) - len(rest) - 1
        head = out[-1][max(k, 0)]
        if isinstance(head, str) and " m0," in head:
            out[-1].insert(k + 1, "s_nop 0")
    return out, len(rest)
```

```python
import sys
from common import (NAME, S, D, F, X_BYTES, W_BYTES, WS_H, WS_KV, WS_Y, WS_ST, WS_CS, WS_FL, WS_TS, LDS_BYTES, SLOT, KVP_COPY,
                    f2u, hx, vr, ar, spread, merge)
from asmlib import HEAD, kernel_text, descriptor
from emit import Em, VM, DS, WAIT, lines, schedule, ATOM, CHAIN, flat

OPT = dict(x[2:].split("=") if "=" in x else (x[2:], "1") for x in sys.argv if x.startswith("--"))
STAMP = "stamp" in OPT
KERNEL = NAME + "_kernel"
WS_BYTES = 16 << 20
SC = "sc1"

rX, rW, rWS, rWD, rSK, rOUT, rDBG, rV = 8, 12, 16, 20, 24, 28, 32, 36
pSD, pSH, pKV = 98, 42, 80
sXM, sWM, sXK, sWK, sHS = 44, 45, 46, 47, 48
sF1, sF2, sPH, sPY, sPK = 56, 57, 58, 59, 60
sDM = 61
sUM, sHM, sKVO, sSKO, sYS = 63, 64, 65, 66, 67
sYD, sYM, sXO, sSO, sHL, sG1S, sMH, sSPIN = 68, 69, 70, 72, 74, 76, 77, 78
sRB, sFS, sT2, sCT = 84, 85, 86, 87
GT = [62, 0, 1, 3, 39, 40, 50, 51, 52, 53, 54, 55, 80, 81]
sCS, sSP = 36, 41
sXCD, sIDX, sW = 90, 91, 92
srd = lambda r: f"s[{r}:{r+3}]"

vLANE, vL16, vST = 1, 2, 3
vXD, vWD, vXA, vXB, vWA, vWB = 8, 16, 20, 22, 24, 28
vHO, vCA, vG1S, vCL, vDS = 32, 33, 34, 35, 36
vMS, vGC, vI2, vBM = 40, 8, 16, 64
vDD, vDA, vUA, vHA, vZU, vZH, vRW, vRR, vDT, vL8, vM0, vDV = 48, 52, 54, 55, 56, 57, 58, 59, 60, 61, 62, 63
vYD, vXO, vSO, vYG, vPW, vPR, vFH, vFY, vFK, vFD, vPOLL = 112, 113, 114, 115, 117, 121, 123, 124, 125, 126, 127
FR = [("v", 64), ("a", 160)]
ACC1 = 128
rg = lambda kb, o, n: (vr if kb[0] == "v" else ar)(kb[1] + o, n)

US, HS = 4640, 4464
CH_LDS = 4 * US + HS + 4224 + 16
CONV_BASE = 2 * SLOT + 16
YB, YP = 155520, 1040
CSB = YB
WDW = 12288
KB, KVP = 0, 1056
VB = 9 * KVP
KVT = 18 * KVP
FL_H, FL_Y, FL_K = WS_FL, WS_FL + 131072, WS_FL + 262144

C1 = -2.0 * 0.7978845608028654 * 1.4426950408889634
C2 = C1 * 0.044715


def stamp(n, g1=False):
    mode = "g1" if "g1st" in OPT else ("ge" if "gest" in OPT else ("sv" if "svst" in OPT else ("g7" if "g7st" in OPT else False)))
    g1 = "g1" if g1 is True else g1
    keep = (0, 1, 2, 15) if mode == "g1" else (0, 1, 2, 3, 4, 15)
    if not STAMP or (mode != g1 and (g1 or n not in keep)):
        return None
    return (f"v_writelane_b32 v{vST}, s100, 14\nv_writelane_b32 v{vST}, s94, 30" if n == 0 else "") + f"""
    s_memrealtime s[94:95]
    s_memtime s[96:97]
    s_waitcnt lgkmcnt(0)
    v_writelane_b32 v{vST}, s96, {n}
    v_writelane_b32 v{vST}, s94, {16 + n}
    """


def poll(a, load, want):
    if "x_nokvpoll" in OPT and load == LD_KV:
        return
    if "x_noypoll" in OPT and load == LD_Y:
        return
    if "x_nohpoll" in OPT and load == LD_H:
        return
    slow, back = a.label("slow"), a.label("back")
    a(f"v_cmp_gt_u32 vcc, {want}, v{vPOLL}\ns_cbranch_vccnz {slow}\n{back}:")
    a.tail.append(f"""
    {slow}:
    s_mov_b32 s{sSPIN}, 0x10000
    {slow}_l:
    {load}
    s_sub_u32 s{sSPIN}, s{sSPIN}, 1
    s_cmp_eq_u32 s{sSPIN}, 0
    s_waitcnt vmcnt(0)
    s_cbranch_scc1 {back}
    v_cmp_gt_u32 vcc, {want}, v{vPOLL}
    s_cbranch_vccnz {slow}_l
    s_branch {back}
    """)


LD_INIT = f"buffer_load_dword v{vPOLL}, v{vFD}, {srd(rDBG)}, 0 offen {SC}"
LD_KV = f"buffer_load_dword v{vPOLL}, v{vFK}, {srd(rWS)}, s{sPK if 'x_nokvpoll' not in OPT else sSO} offen {SC}"
LD_H = f"buffer_load_dword v{vPOLL}, v{vFH}, {srd(rWS)}, s{sPH} offen {SC}"
LD_Y = f"buffer_load_dword v{vPOLL}, v{vFY}, {srd(rWS)}, s{sPY} offen {SC}"


def publish(sf):
    if "vflag" not in OPT:
        return ["s_mov_b32 s79, 1", f"s_atomic_or s79, s[{rWS}:{rWS+1}], s{sf}"]
    return ["v_mov_b32 v4, 1", VM(f"buffer_store_dword v4, v{vM0}, {srd(rWS)}, s{sf} offen {SC}")]


def entry(a):
    if STAMP:
        a("s_memrealtime s[94:95]\ns_memtime s[100:101]")
    a(f"""
    s_load_dwordx2 s[{rX}:{rX+1}], s[0:1], 0
    s_load_dwordx4 s[36:39], s[0:1], 56
    s_load_dwordx2 s[{rWS}:{rWS+1}], s[0:1], 96
    s_load_dwordx4 s[{pKV}:{pKV+3}], s[0:1], 8
    s_getpc_b64 s[4:5]
    L_pc:
    s_cmp_ge_u32 s2, 256
    s_cbranch_scc1 L_exit
    s_lshr_b32 s{sIDX}, s2, 3
    v_lshrrev_b32 v4, 4, v0
    s_and_b32 s6, s{sIDX}, 15
    s_lshl_b32 s6, s6, 11
    v_lshl_add_u32 v4, v4, 7, s6
    v_min_u32 v4, L_end-L_pc-4, v4
    v_mov_b32 v5, s5
    v_add_co_u32 v4, vcc, s4, v4
    v_lshrrev_b32 v6, 6, v0
    v_and_b32 v{vLANE}, 63, v0
    v_addc_co_u32 v5, vcc, 0, v5, vcc
    """)
    if "nocodepf" not in OPT:
        a.put(VM(f"global_load_dword v{vPOLL}, v[4:5], off"))
    a(f"""
    v_readfirstlane_b32 s{sW}, v6
    s_load_dwordx2 s[{rWD}:{rWD+1}], s[0:1], 72
    s_load_dwordx2 s[{rSK}:{rSK+1}], s[0:1], 32
    s_load_dwordx2 s[{rOUT}:{rOUT+1}], s[0:1], 80
    s_load_dwordx2 s[{rDBG}:{rDBG+1}], s[0:1], 88
    s_load_dwordx2 s[{pSD}:{pSD+1}], s[0:1], 40
    s_load_dwordx2 s[{pSH}:{pSH+1}], s[0:1], 24
    s_and_b32 s{sXCD}, s2, 7
    v_lshlrev_b32 v{vL16}, 4, v{vLANE}
    s_mov_b32 s{rX+2}, {X_BYTES}
    s_mov_b32 s{rX+3}, 0x20000
    s_mov_b32 s{rW+3}, 0x20000
    s_and_b32 s4, s{sXCD}, 1
    s_lshr_b32 s5, s{sXCD}, 1
    s_lshl_b32 s{sRB}, s4, 2
    s_add_u32 s{sT2}, s{sRB}, s5
    s_lshl_b32 s6, s{sT2}, 5
    s_add_u32 s6, s6, s{sIDX}
    s_lshl_b32 s6, s6, 2
    s_add_u32 s6, s6, s{sW}
    s_lshl_b32 s79, s6, 11
    v_lshrrev_b32 v4, 5, v{vLANE}
    v_and_b32 v5, 31, v{vLANE}
    v_lshlrev_b32 v96, 10, v4
    v_lshl_add_u32 v96, v5, 4, v96
    v_lshrrev_b32 v6, 3, v{vLANE}
    v_and_b32 v7, 7, v{vLANE}
    """)
    if STAMP:
        a(f"v_mov_b32 v{vST}, 0")


def stats_loads():
    return [VM(f"buffer_load_dwordx4 v[64:67], v96, {srd(rX)}, s79 offen"),
            VM(f"buffer_load_dwordx4 v[68:71], v96, {srd(rX)}, s79 offen offset:512", "stats_ld")]


def reduce32(v, t):
    r = []
    for ctl in ("quad_perm:[1,0,3,2]", "quad_perm:[2,3,0,1]", "row_half_mirror", "row_mirror"):
        r += ["s_nop 1", f"v_add_f32_dpp v{v}, v{v}, v{v} {ctl} row_mask:0xf bank_mask:0xf"]
    return r + [f"v_mov_b32 v{t}, v{v}", "s_nop 1", f"v_permlane16_swap_b32 v{t}, v{v}", "s_nop 0",
                f"v_add_f32 v{v}, v{t}, v{v}"]


def rnd(v):
    return [f"v_cvt_pk_bf16_f32 v{v}, v{v}, v{v}", f"v_and_b32 v{v}, 0xffff0000, v{v}"]


def stats_compute(vf1=vM0):
    r = [WAIT("stats_ld")]
    for j in range(8):
        r += [f"v_lshlrev_b32 v{72+2*j}, 16, v{64+j}", f"v_and_b32 v{73+2*j}, 0xffff0000, v{64+j}"]
    r.append("v_pk_add_f32 v[88:89], v[72:73], v[74:75]")
    r += [f"v_pk_add_f32 v[88:89], v[88:89], v[{72+2*j}:{73+2*j}]" for j in range(2, 8)]
    r += ["v_add_f32 v88, v88, v89"] + reduce32(88, 89) + [f"v_mul_f32 v88, {hx(f2u(1.0/512))}, v88"]
    r += [f"v_pk_add_f32 v[{72+2*j}:{73+2*j}], v[{72+2*j}:{73+2*j}], v[88:89] op_sel_hi:[1,0] neg_lo:[0,1] neg_hi:[0,1]"
          for j in range(8)]
    r.append("v_pk_mul_f32 v[90:91], v[72:73], v[72:73]")
    r += [f"v_pk_fma_f32 v[90:91], v[{72+2*j}:{73+2*j}], v[{72+2*j}:{73+2*j}], v[90:91]" for j in range(1, 8)]
    r += ["v_add_f32 v89, v90, v91"] + reduce32(89, 90) + [f"v_mul_f32 v89, {hx(f2u(1.0/512))}, v89"]
    r += rnd(88) + rnd(89) + [f"v_add_f32 v89, {hx(f2u(1e-5))}, v89"] + rnd(89) + ["v_sqrt_f32 v89, v89"]
    r += lines(f"""
    v_cmp_eq_u32 vcc, 0, v5
    s_lshr_b32 s79, s79, 7
    s_add_u32 s79, s79, {WS_ST}
    v_lshlrev_b32 v90, 3, v4
    v_cndmask_b32 v90, -1, v90, vcc
    v_mov_b32 v91, 0
    """) + rnd(89)
    r += [VM(f"buffer_store_dwordx2 v[88:89], v90, {srd(rWS)}, s79 offen {SC}"),
          VM(f"buffer_store_dword v91, v{vf1}, {srd(rWS)}, s{sF1} offen {SC}"),
          VM(f"buffer_store_dword v91, v{vM0}, {srd(rWS)}, s{sF2} offen {SC}", "init_st")]
    return r


def init_signal():
    return lines(f"""
    s_and_b32 s4, s2, 1
    s_lshl_b32 s4, s4, 7
    """) + [ATOM((f"s_cmp_eq_u32 s{sW}, 0", "s_cselect_b32 s4, s4, 0x1000"))] + lines(f"""
    v_mov_b32 v4, 1
    v_add_u32 v5, s4, v{vM0}
    """) + [VM(f"buffer_atomic_add v4, v5, {srd(rDBG)}, 0 offen {SC}")]


def setup_common(part=None):
    r = setup_all()
    cut = r.index(f"s_add_u32 s{sF2}, s6, {FL_Y}") + 1
    if part == 0:
        return r[:cut]
    if part == 1:
        redo = r.index(f"s_lshr_b32 s4, s{sW}, 1")
        return [f"v_lshrrev_b32 v4, 5, v{vLANE}", f"v_and_b32 v5, 31, v{vLANE}"] + r[redo:]
    return r


def setup_all():
    r = []
    for q, n in ((rWS, WS_BYTES), (rWD, W_BYTES), (rSK, X_BYTES), (rOUT, X_BYTES), (rDBG, 256)):
        r += [f"s_mov_b32 s{q+2}, {n}", f"s_mov_b32 s{q+3}, 0x20000"]
    table = "\n".join(f"s_add_u32 s6, s{GT[0]}, {g*32768}\ns_sub_u32 s7, s6, {14*32768}\ns_min_u32 s{GT[g]}, s6, s7" for g in range(1, 14))
    r += lines(f"""
    v_cmp_eq_u32 vcc, 0, v{vLANE}
    s_lshl_b32 s{sT2}, s{sT2}, 2
    s_lshr_b32 s4, s{sIDX}, 3
    v_bfrev_b32 v{vM0}, 1
    v_cndmask_b32 v{vM0}, v{vM0}, 0, vcc
    s_add_u32 s{sT2}, s{sT2}, s4
    s_and_b32 s{sCT}, s{sIDX}, 7
    s_lshr_b32 s4, s4, 1
    s_and_b32 s5, s{sXCD}, 1
    s_lshl_b32 s5, s5, 1
    s_add_u32 s4, s4, s5
    s_lshl_b32 s4, s4, 2
    s_add_u32 s4, s4, s{sW}
    s_lshl_b32 s4, s4, 10
    s_add_u32 s{sPK}, s4, {FL_K}
    s_lshr_b32 s4, s{sW}, 1
    s_and_b32 s{sMH}, s{sW}, 1
    s_lshl_b32 s5, s{sXCD}, 5
    s_add_u32 s5, s5, s{sIDX}
    s_lshl_b32 s5, s5, 1
    s_add_u32 s5, s5, s4
    s_lshl_b32 s6, s{sMH}, 9
    s_add_u32 s6, s6, s5
    s_lshl_b32 s6, s6, 7
    s_add_u32 s{sF2}, s6, {FL_Y}
    s_lshl_b32 s{sSKO}, s5, 12
    s_lshl_b32 s6, s{sMH}, 11
    s_mul_i32 s{sYS}, s5, {KVP_COPY}
    s_add_u32 s{sKVO}, s{sYS}, {WS_KV}
    s_add_u32 s89, s{sKVO}, 2
    s_add_u32 s{sYS}, s{sYS}, s6
    s_add_u32 s{sYS}, s{sYS}, {WS_Y}
    s_lshl_b32 s5, s5, 1
    v_mov_b32 v97, s5
    s_mul_i32 s4, s4, {CH_LDS}
    s_add_u32 s4, s4, {CONV_BASE}
    s_mul_i32 s5, s{sMH}, {2*US + 4}
    s_sub_u32 s{sUM}, s4, s5
    s_mul_i32 s5, s{sMH}, {HS + 8}
    s_add_u32 s{sHM}, s4, s5
    s_add_u32 s{sHM}, s{sHM}, {4*US}
    v_lshl_add_u32 v{vZU}, v{vLANE}, 2, s{sUM}
    v_min_u32 v{vZH}, 29, v{vLANE}
    v_lshl_add_u32 v{vZH}, v{vZH}, 2, s{sHM}
    v_lshlrev_b32 v{vL8}, 3, v{vLANE}
    s_sub_u32 s5, s4, s6
    s_add_u32 s5, s5, {3*US + 4088 - 3*512}
    v_sub_u32 v{vDT}, s5, v{vL8}
    s_lshl_b32 s5, s{sMH}, 8
    s_add_u32 s4, s4, s5
    v_lshrrev_b32 v98, 4, v{vLANE}
    v_and_b32 v{vFK}, 3, v{vLANE}
    v_bfe_u32 v99, v{vLANE}, 2, 2
    v_mul_u32_u24 v{vUA}, {US}, v{vFK}
    v_lshlrev_b32 v100, 7, v99
    v_sub_u32 v{vUA}, v{vUA}, v100
    v_lshl_add_u32 v{vUA}, v98, 4, v{vUA}
    s_add_u32 s5, s4, {248*16 - 7*512}
    v_add_u32 v{vUA}, s5, v{vUA}
    v_and_b32 v{vFD}, 1, v{vLANE}
    v_mul_u32_u24 v{vHA}, {HS + 16}, v{vFD}
    v_bfe_u32 v101, v{vLANE}, 1, 3
    v_add_u32 v101, v101, v98
    v_lshl_add_u32 v{vHA}, v101, 4, v{vHA}
    s_add_u32 s5, s4, {4*US}
    v_add_u32 v{vHA}, s5, v{vHA}
    v_lshlrev_b32 v{vFD}, 7, v4
    s_mul_i32 s{sDM}, s{sW}, {WDW}
    s_add_u32 s5, s{sDM}, {wd_off(RED_SLOT)}
    v_add_u32 v{vRW}, s5, v{vL16}
    s_xor_b32 s5, s{sW}, 1
    s_mul_i32 s5, s5, {WDW}
    s_add_u32 s5, s5, {wd_off(RED_SLOT)}
    v_add_u32 v{vRR}, s5, v{vL16}
    v_and_b32 v101, 1, v98
    v_lshlrev_b32 v102, 2, v101
    v_xor_b32 v102, v7, v102
    v_lshlrev_b32 v102, 4, v102
    v_lshl_add_u32 v{vDD}, v6, 10, v102
    s_mul_i32 s6, s{sW}, {448*1024}
    s_lshl_b32 s5, s{sCT}, 7
    s_add_u32 s6, s6, s5
    v_add_u32 v{vDD}, s6, v{vDD}
    v_add_u32 v{vDD+1}, {8192-1024}, v{vDD}
    v_add_u32 v{vDD+2}, {2*(8192-1024)}, v{vDD}
    v_add_u32 v{vDD+3}, {3*(8192-1024)}, v{vDD}
    s_bfe_u32 s6, s{sT2}, 0x10001
    s_mul_i32 s6, s6, 3
    s_xor_b32 s7, s{sCT}, 3
    s_min_u32 s7, s7, {0 if "rot4" in OPT else 1}
    s_sub_u32 s7, 1, s7
    s_mul_i32 s6, s6, s7
    s_and_b32 s93, s{sT2}, 1
    s_mul_i32 s93, s93, 7
    {"s_mul_i32 s93, s93, s7" if "rot1" in OPT else ""}
    s_add_u32 s6, s6, s93
    s_min_u32 s7, s{sXCD}, {int(OPT.get("xrot", 6))}
    s_add_u32 s93, s6, s7
    s_sub_u32 s7, s93, 14
    s_min_u32 s93, s93, s7
    s_lshl_b32 s{GT[0]}, s93, 15
    {table}
    v_lshl_add_u32 v{vDA}, v4, 9, v100
    v_lshl_add_u32 v{vDA}, v101, 5, v{vDA}
    v_lshl_add_u32 v{vDA}, v{vFK}, 3, v{vDA}
    v_and_b32 v102, 1, v6
    v_lshl_add_u32 v{vDA}, v102, 6, v{vDA}
    s_lshl_b32 s{sSP}, s{sW}, 12
    s_add_u32 s{sSP}, s{sSP}, {3*SLOT}
    v_add_u32 v{vDS}, s{sSP}, v{vDA}
    v_xor_b32 v{vDS+1}, 64, v{vDS}
    v_add_u32 v{vDA}, s{sDM}, v{vDA}
    v_xor_b32 v{vDA+1}, 64, v{vDA}
    v_lshlrev_b32 v{vFK}, 7, v6
    s_and_b32 s6, s{sCT}, {0 if 'nosto' in OPT else 1}
    s_lshl_b32 s7, s{sT2}, 1
    s_add_u32 s7, s7, s6
    s_lshl_b32 s{sXO}, s7, 15
    s_add_u32 s{sXO}, s{sXO}, s5
    s_xor_b32 s{sXO+1}, s{sXO}, 0x8000
    s_lshl_b32 s{sSO}, s7, 8
    s_add_u32 s{sSO}, s{sSO}, {WS_ST}
    s_xor_b32 s{sSO+1}, s{sSO}, 0x100
    s_mul_i32 s4, s{sW}, {28*1024}
    s_mul_i32 s{sHL}, s7, {112*1024}
    s_add_u32 s{sHL}, s{sHL}, s4
    s_xor_b32 s7, s7, 1
    s_mul_i32 s{sHL+1}, s7, {112*1024}
    s_add_u32 s{sHL+1}, s{sHL+1}, s4
    s_lshl_b32 s4, s{sW}, 3
    v_add_u32 v102, s4, v6
    v_lshlrev_b32 v{vSO}, 3, v102
    v_lshlrev_b32 v103, 4, v7
    v_lshl_add_u32 v{vXO}, v102, 10, v103
    v_mul_u32_u24 v{vYD}, {KVP_COPY}, v6
    v_add_u32 v{vYD}, v{vYD}, v103
    s_lshl_b32 s4, s{sCT}, 2
    s_add_u32 s4, s4, s{sW}
    s_mul_i32 s{sYD}, s4, {16*KVP_COPY}
    s_lshl_b32 s7, s{sT2}, 7
    s_add_u32 s{sYD}, s{sYD}, s7
    s_add_u32 s{sYD}, s{sYD}, {WS_Y}
    s_mul_i32 s{sPH}, s{sW}, {7*128}
    s_lshl_b32 s7, s7, 5
    s_add_u32 s{sPH}, s{sPH}, s7
    s_add_u32 s{sPH}, s{sPH}, {FL_H}
    s_lshl_b32 s4, s4, 11
    s_lshr_b32 s7, s{sT2}, 4
    s_lshl_b32 s7, s7, 16
    s_add_u32 s4, s4, s7
    s_add_u32 s{sPY}, s4, {FL_Y}
    s_mul_i32 s{sYM}, s{sW}, {2*YP}
    s_add_u32 s{sYM}, s{sYM}, {YB}
    v_mul_u32_u24 v103, {YP}, v7
    v_lshl_add_u32 v103, v102, 1, v103
    s_lshl_b32 s6, s6, 6
    s_add_u32 s4, s6, {YB}
    v_add_u32 v{vYG}, s4, v103
    s_sub_u32 s4, {YB + 64}, s6
    v_add_u32 v{vYG+1}, s4, v103
    v_xor_b32 v103, v4, v7
    v_lshlrev_b32 v103, 4, v103
    v_lshl_add_u32 v103, v5, 8, v103
    v_add_u32 v{vPW}, s{sDM}, v103
    v_xor_b32 v{vPW+1}, 32, v{vPW}
    v_xor_b32 v{vPW+2}, 64, v{vPW}
    v_xor_b32 v{vPW+3}, 96, v{vPW}
    v_lshlrev_b32 v103, 1, v7
    v_xor_b32 v103, v103, v6
    v_lshlrev_b32 v103, 4, v103
    v_lshl_add_u32 v{vPR}, v102, 8, v103
    v_add_u32 v{vPR}, {PART[0]}, v{vPR}
    v_xor_b32 v{vPR+1}, 16, v{vPR}
    v_min_u32 v{vFH}, 6, v6
    v_lshlrev_b32 v{vFH}, 7, v{vFH}
    v_lshrrev_b32 v{vFY}, 2, v{vLANE}
    v_lshlrev_b32 v{vFY}, 7, v{vFY}
    """)
    r.append(VM(f"global_load_short_d16_hi v{vDV}, v97, s[{pSD}:{pSD+1}]"))
    return r


SPARE = 3 * SLOT
NPRE = int(OPT.get("npre", 1))
NB = int(OPT.get("nb", 3))
GPLAN = OPT.get("gplan", "ab------")
NGE = GPLAN.count("w")
G_AG, G_G1 = NPRE + 3, NPRE + 3 + NB
G_LD = G_G1 + NGE
RED_SLOT = (8 - NPRE) % 6
PART = [SLOT, 0] if RED_SLOT < 3 else [0, SLOT]
WD_SLOT = {g: ("S" if g < NPRE else (g - NPRE) % 6) for g in range(14)}


def wd_off(slot):
    return 0 if slot == "S" else (slot // 3) * SLOT + (slot % 3) * 4096


def wd_dma(g, slot=None, pad=False):
    slot = WD_SLOT[g] if slot is None else slot
    r = []
    for j in range(4):
        it = [VM(f"buffer_load_dwordx4 v{vDD+j}, {srd(rWD)}, s{GT[g]} offen offset:{j*1024} lds", f"wd{g}" if j == 3 else None)]
        if j == 0:
            it = [f"s_mov_b32 m0, s{sSP}" if slot == "S" else f"s_add_u32 m0, s{sDM}, {wd_off(slot)}"] + ["s_nop 0"] * pad + it
        if j == 3:
            it = [ATOM((it[0], f"s_lshr_b32 s{GT[g]}, s{GT[g]}, 4"))]
        r.append(it)
    return r


def wd_reads(g, slot=None):
    slot = WD_SLOT[g] if slot is None else slot
    va = vDS if slot == "S" else vDA
    r = []
    for k in range(2):
        for u in range(2):
            for e in range(2):
                last = k == 1 and u == 1 and e == 1
                r.append(DS(f"ds_read_b64_tr_b16 {ar((2*g+k)*8 + u*4 + 2*e, 2)}, v{va+u} offset:{wd_off(slot) + k*1024 + e*2048}",
                            f"wr{g}" if last else None))
    return r


def conv_dma(pad=True):
    r = []
    for m0, rs, so, sc in ((f"s{sUM}, {3*US}", rWS, sKVO, SC), (f"s{sUM}, {2*US}", rWS, 89, OPT.get("mispol", SC).replace("none", "")), (f"s{sHM}, 120", rSK, sSKO, "")):
        for j in range(4):
            it = [VM(f"buffer_load_dwordx4 v{vL16}, {srd(rs)}, s{so} offen offset:{j*1024} {sc} lds", "cv_dma")]
            if j == 0:
                it = [f"s_add_u32 m0, {m0}"] + ["s_nop 0"] * pad + it
            r.append(it)
    return r


def conv_zero(z):
    return [DS(f"ds_write2st64_b32 v{vZU}, v{z}, v{z} offset0:0 offset1:1".replace(f"v{vZU}", "v4")),
            DS(f"ds_write2st64_b32 v5, v{z}, v{z} offset0:0 offset1:1"),
            DS(f"ds_write_b32 v{vZH}, v{z}", "cv_zero")]


def conv_zero_addr():
    return [f"v_add_u32 v4, {3*US + 4096}, v{vZU}", f"v_add_u32 v5, {2*US + 4096}, v{vZU}"]


CUF = [("v", 128), ("a", 160)]
CHF = [("v", 160), ("a", 192)]
CACC = 64


def conv_reads(m):
    p = m & 1
    u = [DS(f"ds_read_b128 {rg(CUF[p], 4*j, 4)}, v{vUA} offset:{64*m + 512*(7-j)}", f"cu{j}") for j in range(8)]
    h = [DS(f"ds_read_b128 {rg(CHF[p], 4*j, 4)}, v{vHA} offset:{64*m + 512*j}", f"cf{m}" if j == 7 else f"ch{j}") for j in range(8)]
    return h[:1] + u + h[1:]


NHEAD = int(OPT.get("nhead", 5))


def g1_dma_setup():
    r = lines(f"""
    s_and_b32 s6, s{sIDX}, 3
    s_add_u32 s{sRB}, s{sRB}, s6
    s_mul_i32 s{sFS}, s5, 7
    s_lshr_b32 s6, s{sIDX}, 2
    s_add_u32 s{sFS}, s{sFS}, s6
    v_lshrrev_b32 v98, 4, v{vLANE}
    s_lshr_b32 s4, s{sW}, 1
    s_and_b32 s6, s{sW}, 1
    v_and_b32 v99, 1, v98
    v_lshlrev_b32 v99, 1, v99
    v_xor_b32 v99, v7, v99
    v_mul_u32_u24 v100, {F*2}, v6
    v_lshl_add_u32 v99, v99, 4, v100
    s_mul_i32 s6, s6, {32*F*2}
    s_lshl_b32 s7, s{sFS}, 7
    s_add_u32 s6, s6, s7
    v_add_u32 v{vWD}, s6, v99
    v_xor_b32 v99, 64, v{vWD}
    v_add_u32 v{vWD+1}, {8*F*2 - 1024}, v99
    v_add_u32 v{vWD+2}, {2*(8*F*2 - 1024)}, v{vWD}
    v_add_u32 v{vWD+3}, {3*(8*F*2 - 1024)}, v99
    s_lshl_b32 s{sG1S}, s{sRB}, 2
    s_add_u32 s{sG1S}, s{sG1S}, s{sW}
    s_lshl_b32 s7, s{sG1S}, 16
    v_xor_b32 v99, v7, v98
    v_lshlrev_b32 v99, 4, v99
    v_lshl_add_u32 v99, v6, 10, v99
    v_add_u32 v{vXD}, s7, v99
    v_xor_b32 v99, 64, v{vXD}
    """)
    for j in range(1, 8):
        r.append(f"v_add_u32 v{vXD+j}, {j*8192 - (j%4)*1024}, v{99 if j & 1 else vXD}")
    xr = OPT.get("xr", "1")
    if xr == "1":
        rot = f"s_lshl_b32 s{sXK}, s{sRB}, 7"
    elif xr == "2":
        rot = f"s_lshl_b32 s6, s{sFS}, 2\ns_add_u32 s6, s6, s{sRB}\ns_and_b32 s6, s6, 7\ns_lshl_b32 s{sXK}, s6, 7"
    else:
        par = f"s_xor_b32 s7, s{sXCD}, s5" if xr == "4" else f"s_mov_b32 s7, s{sXCD}"
        rot = (f"s_add_u32 s6, s{sFS}, s{sRB}\ns_and_b32 s6, s6, 3\ns_lshl_b32 s6, s6, 1\n{par}\ns_and_b32 s7, s7, 1\n"
               f"s_add_u32 s6, s6, s7\ns_lshl_b32 s{sXK}, s6, 7")
    r += lines(f"""
    s_lshl_b32 s{sXM}, s{sW}, 13
    s_lshl_b32 s{sWM}, s{sW}, 12
    s_add_u32 s{sWM}, s{sWM}, 32768
    {rot}
    s_mov_b32 s{rW+2}, {W_BYTES}
    s_cmp_eq_u32 s4, 0
    s_waitcnt lgkmcnt(0)
    s_cselect_b32 s{rW}, s36, s38
    s_cselect_b32 s{rW+1}, s37, s39
    """)
    return r


def g1_setup():
    r = lines(f"""
    v_lshrrev_b32 v102, 4, v{vLANE}
    v_and_b32 v103, 15, v{vLANE}
    v_bfe_u32 v98, v{vLANE}, 1, 3
    v_xor_b32 v98, v102, v98
    v_lshlrev_b32 v98, 4, v98
    v_lshl_add_u32 v98, v103, 7, v98
    s_lshl_b32 s4, s{sW}, 13
    v_add_u32 v{vXB}, s4, v98
    v_xor_b32 v{vXB+1}, 64, v{vXB}
    v_add_u32 v{vXA}, {2*SLOT}, v{vXB}
    v_add_u32 v{vXA+1}, {2*SLOT}, v{vXB+1}
    v_and_b32 v99, 3, v6
    v_bfe_u32 v100, v{vLANE}, 2, 2
    v_lshlrev_b32 v98, 10, v102
    v_lshl_add_u32 v98, v100, 7, v98
    v_and_b32 v101, 3, v{vLANE}
    v_lshl_add_u32 v98, v101, 3, v98
    v_lshl_add_u32 v98, v99, 5, v98
    v_add_u32 v{vWB}, 32768, v98
    v_xor_b32 v{vWB+1}, 32, v{vWB}
    v_xor_b32 v{vWB+2}, 64, v{vWB}
    v_xor_b32 v{vWB+3}, 96, v{vWB}
    v_add_u32 v{vWA}, {2*SLOT}, v{vWB}
    v_add_u32 v{vWA+1}, {2*SLOT}, v{vWB+1}
    v_add_u32 v{vWA+2}, {2*SLOT}, v{vWB+2}
    v_add_u32 v{vWA+3}, {2*SLOT}, v{vWB+3}
    s_lshl_b32 s4, s{sW}, 5
    v_xor_b32 v{vCL}, s4, v{vWB}
    s_lshl_b32 s4, s{sG1S}, 5
    s_add_u32 s4, s4, s{sFS}
    s_lshl_b32 s4, s4, 7
    s_add_u32 s{sF1}, s4, {FL_H}
    s_lshl_b32 s5, s{sFS}, 2
    s_mul_i32 s4, s{sG1S}, 224
    s_add_u32 s4, s4, s5
    s_lshl_b32 s{sHS}, s4, 10
    s_add_u32 s{sHS+1}, s{sHS}, {112*1024}
    v_lshlrev_b32 v{vHO}, 4, v103
    v_lshl_add_u32 v{vHO}, v102, 9, v{vHO}
    s_lshl_b32 s{sG1S}, s{sG1S}, 9
    s_add_u32 s{sG1S}, s{sG1S}, {WS_ST}
    v_lshlrev_b32 v{vG1S}, 3, v103
    v_lshlrev_b32 v{vCA}, 31, v4
    v_lshl_add_u32 v{vCA}, v102, 11, v{vCA}
    v_add_u32 v{vCA}, v{vCA}, v{vG1S}
    s_lshl_b32 s6, s{sFS}, 12
    s_add_u32 s6, s6, {WS_CS}
    s_lshl_b32 s4, s{sW}, 10
    s_add_u32 s{sCS}, s6, s4
    s_add_u32 s{sCS+2}, s4, {YB}
    s_lshl_b32 s4, s{sW}, 9
    s_add_u32 s6, s6, s4
    s_lshr_b32 s4, s{sRB}, 1
    s_lshl_b32 s4, s4, 7
    s_and_b32 s5, s{sRB}, 1
    s_lshl_b32 s5, s5, 2
    s_add_u32 s4, s4, s5
    s_add_u32 s{sCS+1}, s6, s4
    """)
    return r


def g1_acc(j, t, mat):
    return ACC1 + (2 * j + (t >> 1)) * 16 + 8 * mat + 4 * (t & 1)


def g1_reads(step):
    st, k2, fr = step >> 1, step & 1, FR[step & 1]
    slot = (st + 1) % 3
    xa, wa, o = (vXA, vWA, 0) if slot == 2 else (vXB, vWB, slot * SLOT)
    x = [DS(f"ds_read_b128 {rg(fr, 4*j, 4)}, v{xa+k2} offset:{o + j*2048}") for j in range(4)]
    w = [DS(f"ds_read_b64_tr_b16 {rg(fr, 16 + 4*q + 2*e, 2)}, v{wa+(q>>1)} offset:{o + (q&1)*8192 + k2*4096 + e*512}", f"g1f{step}")
         for q in range(8) for e in range(2)]
    return w[:2] + x + w[2:]


def g1_mfmas(step):
    fr, m = FR[step & 1], []
    for q in range(8):
        for j in range(4):
            acc = vr(g1_acc(j, q >> 1, q & 1), 4)
            m.append(f"v_mfma_f32_16x16x32_bf16 {acc}, {rg(fr, 16 + 4*q, 4)}, {rg(fr, 4*j, 4)}, {'0' if step == 0 else acc}")
    return m


def g1_dmas(st):
    slot = ((st + 1) % 3) * SLOT
    d = []
    for j in range(4):
        pre = [f"s_add_u32 m0, s{sWM}, {slot}", f"s_mul_i32 s{sWK}, s{sXK}, {F}"] if j == 0 else []
        post = [f"s_add_u32 m0, s{sXM}, {slot}"] if j == 3 else []
        d.append(pre + [VM(f"buffer_load_dwordx4 v{vWD+j}, {srd(rW)}, s{sWK} offen offset:{j*1024} lds", f"w{st}" if j == 3 else None)] + post)
    for j in range(8):
        post = [f"s_add_u32 m0, s{sXM}, {slot + 4096}"] if j == 3 else []
        if j == 7:
            post = [f"s_add_u32 s{sXK}, s{sXK}, 128", f"s_and_b32 s{sXK}, s{sXK}, 1023"]
        d.append([VM(f"buffer_load_dwordx4 v{vXD+j}, {srd(rX)}, s{sXK} offen offset:{(j%4)*1024} lds", f"st{st}" if j == 7 else None)] + post)
    return d


def colsum():
    T, ONE, R = 128, 144, 148
    r = [f"v_mov_b32 v{ONE+j}, 0x3f803f80" for j in range(4)] + [WAIT("w0"), "s_barrier"]
    r += [DS(f"ds_read_b64_tr_b16 {vr(T+4*q+2*e, 2)}, v{vCL} offset:{SLOT + q*4096 + e*512}", "csr") for q in range(4) for e in range(2)]
    m = [WAIT("csr")]
    m += [f"v_mfma_f32_16x16x32_bf16 {vr(R+4*(q>>1),4)}, {vr(ONE,4)}, {vr(T+4*q,4)}, {vr(R+4*(q>>1),4) if q & 1 else '0'}" for q in range(4)]
    f = lines(f"""
    v_cmp_gt_u32 s[4:5], 16, v{vLANE}
    v_add_u32 v{vCL}, {YB}, v{vL8}
    s_nop 0
    v_cndmask_b32 v{R}, v{R+4}, v{R}, s[4:5]
    v_cvt_pk_bf16_f32 v{R+1}, v{R}, v{R}
    v_and_b32 v{R+1}, 0xffff0000, v{R+1}
    v_sub_f32 v{R+1}, v{R}, v{R+1}
    v_cvt_pk_bf16_f32 v{R+1}, v{R}, v{R+1}
    """) + [VM(f"buffer_store_dword v{R+1}, v{vCA}, {srd(rWS)}, s{sCS+1} offen {SC}")]
    return r, m, f


def gemm_role(a):
    a.put(g1_dma_setup())
    a.put(stamp(0))
    d0, d1 = g1_dmas(0), g1_dmas(1)
    n_first = int(OPT.get("nfirst", 5))
    n_late = int(OPT.get("nlate", 2))
    a.put(stats_loads() + [x + ["s_nop 0"] if isinstance(x[-1], str) else x for x in d0[:n_first]])
    su = g1_setup() + setup_common()
    cut = int(OPT.get("sucut", 190))
    a.put(su[:cut])
    a.put(stamp(1))
    rest = d0[n_first:] + d1[:12 - n_late]
    sc, (c_r, c_m, c_f) = stats_compute(), colsum()
    fill = su[cut:] + sc[:50] + [c_r] + sc[50:66] + [c_m] + sc[66:-3] + c_f + sc[-3:]
    a.weave(rest, spread(fill, len(rest), 0, len(rest) - 1))
    a.put([WAIT("st0"), "s_barrier", stamp(2)])
    a.put(g1_reads(0))

    cd = conv_dma(pad=False)
    CF = 224
    touch = [lines(f"""
    v_lshrrev_b32 v4, 2, v{vLANE}
    v_lshlrev_b32 v4, 7, v4
    s_lshl_b32 s5, s{sMH}, 11
    s_add_u32 s5, s5, s{sSKO}
    """) + [VM(f"buffer_load_dword v7, v4, {srd(rSK)}, s5 offen")]]
    handed = [[VM(f"buffer_load_dwordx2 {vr(vMS+2*j,2)}, v{vG1S}, {srd(rWS)}, s{sG1S} offen offset:{128*j} {SC}", "g1st") for j in range(4)] +
              [f"s_mov_b32 m0, s{sCS+2}", VM(f"buffer_load_dwordx4 v{vL16}, {srd(rWS)}, s{sCS} offen {SC} lds", "csf")]]
    queue = [(x, 0, None) for x in d1[12 - n_late:]]

    def push(items, earliest, g=None):
        queue.extend((x, earliest, g if i == len(items) - 1 else None) for i, x in enumerate(items))

    for k in range(2, 8):
        push(g1_dmas(k), max(0, 2 * k - 5))
        g = k - 7 + NPRE
        if 0 <= g < NPRE:
            w = wd_dma(g)
            if g:
                w[0] = [WAIT(f"wr{g-1}")] + w[0]
            push(w, 0, g)
        if g == 0 or (NPRE == 0 and k == 7):
            push(touch, 0)
    for g in range(NPRE, G_G1 + 1):
        if g == NPRE + int(OPT.get("hpos", 3)):
            push(handed, 13)
        if g < G_G1:
            push(wd_dma(g), 11 if g < NPRE + 3 else 13, g)
    push(cd[8:12], 15)
    push(cd[:4], 16)
    plan = [int(c, 16) for c in OPT.get("plan", "8866666666677777f")]
    lag = int(OPT.get("rlag", 8))
    for i, (_, _, g) in enumerate(list(queue)):
        if g is not None and g < NPRE + 3:
            for k in range(4):
                pos = min(i + lag, len(queue) - 4) + k
                it, e, g2 = queue[pos]
                queue[pos] = ([WAIT(f"wd{g}")] * (k == 0) + wd_reads(g)[2*k:2*k+2] + it, e, g2)

    def take(step):
        items = []
        while queue and len(items) < plan[step] and queue[0][1] <= step:
            items.append(queue.pop(0)[0])
        return items

    for step in range(16):
        st = step >> 1
        if step >= 11:
            a.put(stamp({11: 5, 12: 6, 13: 7, 14: 9, 15: 12}[step], "g7"))
        if step == 15:
            a.put([WAIT("g1f15", "csf"), stamp(13, "g7"), "s_barrier", stamp(10, "g7")])
        elif step & 1:
            wt = [f"st{st+1}", f"g1f{step}"] + ([f"wr{NPRE-1}"] if step == 13 and NPRE else [])
            a.put([WAIT(*wt), "s_barrier", stamp([3, 4, 5, 6, 7, 8, 9][st], True)])
        else:
            a.put(WAIT(f"g1f{step}"))
        if step == 13:
            a.put([WAIT("p_init"), lambda e: poll(e, LD_INIT, "0x80"), stamp(8, "g7")])
        if step == 13 and NPRE:
            assert f"wr{NPRE-1}" in a.tags
        streams = []
        if step < 15:
            dummy = [DS(f"ds_read_b32 v0, v{vL8}")] if 1 <= step <= 8 and "vinit" not in OPT else []
            streams.append((g1_reads(step + 1) + dummy, 0, 26))
        else:
            cr = [DS(f"ds_read_b64 {ar(CF+2*q,2)}, v{vCL} offset:{((q&1)*4 + (q>>1))*512}") for q in range(8)]
            streams.append((cr, 0, 26))
            c = [WAIT("g1st")]
            for j in range(4):
                c += [f"v_cvt_pk_bf16_f32 v{vBM+2*j}, -v{vMS+2*j}, -v{vMS+2*j}", f"v_mov_b32 v{vBM+2*j+1}, v{vBM+2*j}"]
            streams.append((c + conv_zero_addr() + ["v_mov_b32 v6, 0"], 8, 28))
        mine = take(step)
        streams.append((mine, 0, 31))
        if step == 2 and "vinit" in OPT:
            streams.append((init_signal(), 0, 16))
        if step == 1 and "vinit" not in OPT:
            skip = a.label("sig")
            streams.append((["s_and_b32 s4, s2, 1", "s_lshl_b32 s4, s4, 7", "s_mov_b32 s5, 1",
                             ATOM((f"s_cmp_lg_u32 s{sW}, 0", f"s_cbranch_scc1 {skip}", f"s_atomic_add s5, s[{rDBG}:{rDBG+1}], s4", f"{skip}:"))], 20, 29))
        if step == 11:
            streams.append(([VM(LD_INIT, "p_init")], 4, 5))
        pkv = int(OPT.get("pkv", 14 * 32 + 20))
        if step == pkv // 32:
            streams.append(([VM(LD_KV, "p_kv")], pkv % 32, pkv % 32 + 1))
        fl, over = schedule(32, streams, 8, 2 if len(flat(mine)) > 14 else 1)
        if over:
            print(f"step {step}: {over} left over", file=sys.stderr)
        a.weave(g1_mfmas(step), fl)
    a.put([stamp(11, "g7"), WAIT("allds", "p_kv"), lambda e: poll(e, LD_KV, "1"), "s_barrier", stamp(3), stamp(12, True)])
    c = []
    for j in range(4):
        den, c1 = vMS + 2 * j + 1, vGC + 2 * j
        c += lines(f"""
        v_rcp_f32 v{c1}, v{den}
        v_mul_f32 v{vI2+j}, v{den}, v{den}
        v_mul_f32 v{c1+1}, v{c1}, v{c1}
        v_mul_f32 v{c1+1}, v{c1+1}, v{c1}
        v_mul_f32 v{c1}, {hx(f2u(C1))}, v{c1}
        v_mul_f32 v{c1+1}, {hx(f2u(C2))}, v{c1+1}
        """)
    ms = []
    for j in range(4):
        for q in range(8):
            acc = vr(g1_acc(j, q >> 1, q & 1), 4)
            ms.append(f"v_mfma_f32_16x16x16_bf16 {acc}, {ar(CF+2*q,2)}, {vr(vBM+2*j,2)}, {acc}")
    last = take(16)
    fl, over = schedule(32, [(conv_zero(6), 0, 28), (last, 0, 31), (c, 0, 28)], 8, 2)
    assert not queue
    a.weave(ms, fl)
    a.put(stamp(4))
    cd = conv_dma()
    plan = GPLAN
    a.put(WAIT(f"wr{G_AG-1}"))
    extra = {"c": cd[4:8], "-": [[], [], [], []]}
    extra.update({str(j): [[], cd[4 + j], [], []] for j in range(4)})
    extra.update({"a": [cd[4], [], cd[5], []], "b": [cd[6], [], cd[7], []]})
    for n in range(8):
        jt, tp = n >> 1, n & 1
        c1, acc, T = vGC + 2 * jt, ACC1 + n * 16, 96 + 8 * tp
        i2, hi = vr(vI2 + (jt & 2), 2), jt & 1
        ex = wd_dma(G_G1 + plan[:n].count("w"), None, True) if plan[n] == "w" else extra[plan[n]]
        ex = [list(flat([list(y) if isinstance(y, ATOM) else y for y in x])) for x in ex]
        if n == 7:
            ex = [[], [], [], [WAIT("cv_dma", "allds"), "s_barrier"] + conv_reads(0)[:NHEAD]]
        E = range(0, 8, 2)
        a.put([f"v_pk_mul_f32 {vr(T+j,2)}, {vr(acc+j,2)}, {vr(acc+j,2)}" for j in E])
        a.put([f"v_pk_fma_f32 {vr(T+j,2)}, {vr(T+j,2)}, {vr(c1,2)}, {vr(c1,2)} op_sel:[0,1,0] op_sel_hi:[1,1,0]" for j in E])
        a.put([f"v_pk_mul_f32 {vr(T+j,2)}, {vr(T+j,2)}, {vr(acc+j,2)}" for j in E] + ex[0])
        a.put([f"v_exp_f32 v{T+j}, v{T+j}" for j in range(8)] + ex[1])
        a.put([f"v_pk_mul_f32 {vr(acc+j,2)}, {vr(acc+j,2)}, {vr(acc+8+j,2)}" for j in E])
        a.put([f"v_pk_fma_f32 {vr(T+j,2)}, {vr(T+j,2)}, {i2}, {i2} op_sel:[0,{hi},{hi}] op_sel_hi:[1,{hi},{hi}]" for j in E] + ex[2])
        a.put([f"v_rcp_f32 v{T+j}, v{T+j}" for j in range(8)] + ex[3])
        a.put([f"v_pk_mul_f32 {vr(acc+j,2)}, {vr(acc+j,2)}, {vr(T+j,2)}" for j in E])
        a.put([f"v_cvt_pk_bf16_f32 v{acc+8+j}, v{acc+2*j}, v{acc+2*j+1}" for j in range(4)])
        a.put(VM(f"buffer_store_dwordx4 {vr(acc+8,4)}, v{vHO}, {srd(rWS)}, s{sHS+(jt>>1)} offen offset:{tp*2048 + (jt&1)*256} {SC}", "h_st"))
        a.put(stamp([5, 6, 7, 8, 9, 12, 13, 11][n], "ge"))

    a.put(stamp(5))


def service_role(a):
    TAPB = 8 * KVT
    a.put(lines(f"""
    s_sub_u32 s{sFS}, s2, 224
    s_lshl_b32 s6, s{sFS}, 16
    s_lshr_b32 s7, s{sW}, 1
    s_and_b32 s4, s{sW}, 1
    v_lshlrev_b32 v8, 10, v6
    v_lshl_add_u32 v8, v7, 4, v8
    v_add_u32 v8, s6, v8
    v_subrev_u32 v12, 8192, v8
    s_mul_i32 s5, s4, 3
    s_add_u32 s5, s5, 5
    s_cmp_eq_u32 s{sFS}, 0
    s_cselect_b32 s5, 8, s5
    v_cmp_le_u32 vcc, s5, v6
    v_add_u32 v9, {8192 - KVP}, v8
    v_bfrev_b32 v29, 1
    v_cndmask_b32 v12, v29, v12, vcc
    v_add_u32 v10, {2*(8192 - KVP)}, v8
    s_mul_i32 s{sXM}, s{sW}, {VB}
    s_lshl_b32 s{sXK}, s7, 7
    s_mov_b32 s{rW+2}, {X_BYTES}
    s_lshl_b32 s5, s{sW}, 10
    v_add_u32 v13, s5, v{vL16}
    s_add_u32 m0, s5, {TAPB}
    s_cmp_eq_u32 s4, 0
    s_waitcnt lgkmcnt(0)
    s_cselect_b32 s{rW}, s{pKV}, s{pKV+2}
    s_cselect_b32 s{rW+1}, s{pKV+1}, s{pKV+3}
    """))
    a.put(stamp(0))
    nt = OPT.get("kvpol", "nt").replace("none", "")

    def tile_dma(tag):
        r = [[f"s_mov_b32 m0, s{sXM}", f"s_add_u32 s{sWM}, s{sXK}, {3*8192}",
              VM(f"buffer_load_dwordx4 v12, {srd(rW)}, s{sXK} offen lds")]]
        for j in range(8):
            q, pre = j % 3, []
            so = sXK if j < 3 else sWM
            if q == 0:
                pre = [f"s_add_u32 m0, s{sXM}, {(j+1)*KVP}", f"s_add_u32 s{sWM}, s{sWM}, {3*8192}" if j == 6 else "s_nop 0"]
            r.append(pre + [VM(f"buffer_load_dwordx4 v{8+q}, {srd(rW)}, s{so} offen offset:{q*KVP} {nt} lds", tag)])
        r[-1] += [f"s_add_u32 s{sXM}, s{sXM}, {2*KVT}", f"s_add_u32 s{sXK}, s{sXK}, 256"]
        return r

    if "x_nold" in OPT:
        a("v_mov_b32 v8, v29\nv_mov_b32 v9, v29\nv_mov_b32 v10, v29\nv_mov_b32 v12, v29")
    d0, n0 = tile_dma("kv0"), 5
    a.put(stats_loads() + [VM(f"global_load_lds_dwordx4 v13, s[{pSH}:{pSH+1}]")] + d0[:n0])
    a.put(lines(f"""
    s_lshl_b32 s5, s{sW}, 3
    v_add_u32 v11, s5, v6
    v_lshlrev_b32 v14, 5, v11
    v_add_u32 v14, {TAPB}, v14
    v_sub_u32 v13, 7, v7
    v_mul_u32_u24 v13, {KVP}, v13
    v_lshl_add_u32 v13, v6, 3, v13
    s_mul_i32 s5, s7, {KVT}
    s_lshl_b32 s4, s4, 6
    s_add_u32 s5, s5, s4
    v_add_u32 v13, s5, v13
    v_mul_u32_u24 v15, {4*KVP_COPY}, v11
    v_lshl_add_u32 v15, v7, 4, v15
    s_lshl_b32 s5, s{sFS}, 7
    s_sub_u32 s{sHS}, {WS_KV + 4096 - 128}, s5
    s_lshl_b32 s4, s{sW}, 12
    s_add_u32 s4, s4, s5
    s_add_u32 s{sF1}, s4, {FL_K}
    """))
    a.put(setup_common(0))
    d01 = d0[n0:] + tile_dma("kv1")
    a.weave(d01, spread(stats_compute(), len(d01), 0, int(OPT.get("svs", 6))))
    a.put(stamp(2))
    RAW, TR, TP, UNP, U, OUT = 64, 16, 32, 128, 172, 192

    def tile_reads():
        r = [DS(f"ds_read_b128 {vr(TR+4*h,4)}, v14 offset:{16*h}") for h in range(2)]
        for jj in range(19):
            rho, base = (5 + jj, KB) if jj < 11 else (jj - 3, VB)
            r.append(DS(f"ds_read_b64 {vr(RAW+2*jj,2)}, v13 offset:{base + (rho >> 3) * KVP + (rho & 7) * 128}"))
        return r + [f"v_add_u32 v13, {2*KVT}, v13", "v_add_u32 v14, 1024, v14"]

    def pair(h):
        r = []
        for j in range(10):
            for ch in range(2):
                r.append(f"v_perm_b32 v{UNP+2*j+ch}, v{RAW+2*j+h}, v{RAW+2*(j+1)+h}, s{80+ch}")
        for j in range(11, 19):
            r += [f"v_lshlrev_b32 v{UNP+2*j}, 16, v{RAW+2*j+h}", f"v_and_b32 v{UNP+2*j+1}, s83, v{RAW+2*j+h}"]
        if h:
            r += [f"v_pk_mov_b32 {vr(TP+2*ch,2)}, {vr(TR+4+2*ch,2)}, {vr(TR+4+2*ch,2)} op_sel:[0,1]" for ch in range(2)]
        tp = TP if h else TR
        m = [f"v_dot2_f32_bf16 v{U+2*jj+ch}, v{UNP+2*jj+ch}, v{tp+2*ch+1}, 0" for jj in range(8) for ch in range(2)]
        m += [f"v_dot2_f32_bf16 v{U+2*jj+ch}, v{UNP+2*(jj+2)+ch}, v{tp+2*ch}, v{U+2*jj+ch}" for jj in range(8) for ch in range(2)]
        m += [f"v_pk_mul_f32 {vr(U+2*jj,2)}, {vr(U+2*jj,2)}, {vr(UNP+2*(11+jj),2)}" for jj in range(8)]
        st = []
        for ch in range(2):
            o = OUT + 8 * h + 4 * ch
            m += [f"v_cvt_pk_bf16_f32 v{o+e}, v{U+2*(7-2*e)+ch}, v{U+2*(6-2*e)+ch}" for e in range(4)]
            st.append([VM(f"buffer_store_dwordx4 {vr(o,4)}, v15, {srd(rWS)}, s{sHS} offen {SC}"),
                       f"s_add_u32 s{sHS}, s{sHS}, {KVP_COPY if 2*h+ch < 3 else 125*KVP_COPY}"])
        return r, m, st

    def mix(alu, mem):
        g = spread(alu, len(mem) + 1)
        a.put(g[0])
        a.weave(mem, g[1:])

    (u0, m0_, st0), (u1, m1_, st1) = pair(0), pair(1)
    pad = lines(f"""
    s_lshl_b32 s4, s{sW}, 5
    s_add_u32 s4, s4, s{sFS}
    s_mul_i32 s4, s4, {KVP_COPY}
    s_add_u32 s{sHS+1}, s4, {WS_KV + 4096}
    v_and_b32 v24, 3, v6
    v_mul_u32_u24 v24, {128*KVP_COPY}, v24
    v_lshl_add_u32 v24, v7, 4, v24
    v_mov_b32 v40, 0
    v_mov_b32 v41, 0
    v_mov_b32 v42, 0
    v_mov_b32 v43, 0
    s_mov_b32 s83, 0xffff0000
    s_mov_b32 s80, 0x05040100
    s_mov_b32 s81, 0x07060302
    """)
    a.put([WAIT("kv0"), "s_barrier"] + tile_reads() + pad)
    for it in range(4):
        dm = tile_dma(f"kv{it+2}") if it < 2 else []
        if it == 2:
            dm = [[VM(f"buffer_store_dwordx4 v[40:43], v24, {srd(rWS)}, s{sHS+1} offen {SC}")]]
            if "svt" in OPT:
                a.put(lines(f"""
                s_lshl_b32 s4, s{sFS}, 2
                s_add_u32 s4, s4, s{sW}
                s_mul_i32 s4, s4, {112*128}
                v_min_u32 v27, 55, v{vLANE}
                v_lshlrev_b32 v27, 7, v27
                s_add_u32 s5, s4, {56*128}
                """))
                dm += [[VM(f"buffer_load_dword v25, v27, {srd(rWD)}, s4 offen")], [], [], [], [],
                       [VM(f"buffer_load_dword v26, v27, {srd(rWD)}, s5 offen")]]
        a.put([WAIT("allds"), stamp([5, 7, 9, 13][it], "sv")])
        mix(u0 + m0_, (st1 if it else []) + dm[:5])
        mix(u1, st0 + dm[5:6])
        a.put(stamp([6, 8, 12, 10][it], "sv"))
        if it < 3:
            a.put([WAIT(f"kv{it+1}"), "s_barrier"] + tile_reads())
        if it == 0:
            a.put(init_signal())
        mix(m1_, dm[6:])
    a.put(st1)
    a.put(stamp(3))
    su = setup_common(1)
    a.put(su[:110] + [WAIT("allvm"), stamp(1)] + publish(sF1))
    a.put([VM(LD_INIT, "p_init")] + su[110:] + [WAIT("p_init"), lambda e: poll(e, LD_INIT, "0x80"), "s_barrier", stamp(4)])
    cd = conv_dma()
    first = min(6, G_AG)
    a.put(cd[8:12] + [wd_dma(g, g, True) for g in range(first)])
    for g in range(first):
        a.put([WAIT(f"wd{g}")] + wd_reads(g, g))
    a.put([WAIT("allds"), VM(LD_KV, "p_kv")] + [wd_dma(g, g - 6, True) for g in range(6, G_AG)] + [wd_dma(g, None, True) for g in range(G_AG, min(G_LD, G_AG + 3))])
    a.put([WAIT("p_kv"), lambda e: poll(e, LD_KV, "1"), "s_barrier"])
    a.put(cd[:8] + conv_zero_addr() + ["v_mov_b32 v12, 0"] + conv_zero(12))
    for g in range(6, G_AG):
        a.put([WAIT(f"wd{g}")] + wd_reads(g, g - 6))
    a.put([WAIT("allds")] + [wd_dma(g, None, True) for g in range(G_AG + 3, G_LD)])
    a.put([WAIT("allvm", "allds"), "s_barrier"] + conv_reads(0)[:NHEAD])
    a.put(stamp(5))


HR, NH = 192, 16
HPOL = OPT.get("x_hpol", SC).replace("none", "")


def h_load(n):
    st, ks = divmod(n, 28)
    return [VM(f"buffer_load_dwordx4 {vr(HR + 4*(n % NH), 4)}, v{6+st}, {srd(rWS)}, s{GT[ks >> 1]} offen offset:{(ks%2)*1024} {HPOL}",
               f"h{n}", after=f"wd{ks >> 1}")]


def wd_conv_stream():
    items = [wd_dma(g) for g in range(G_LD, 14)]
    pos = {g: 4 * (g - G_LD) for g in range(G_LD, 14)}
    q = sum(items, [])
    pre = [[] for _ in range(len(q) + 1)]
    slot = 0
    for g in range(G_AG, 10):
        lo = pos[g] + 3 + 7 if g >= G_LD else 0
        assert g + 6 >= G_LD
        hi = pos[g + 6] - 1 if g + 6 < 14 else len(q)
        slot = min(max(slot, lo), max(hi - 1, 0))
        assert g < G_LD or slot > pos[g] + 3
        rd = wd_reads(g)
        pre[slot] += [WAIT(f"wd{g}")] + rd[:4]
        slot = min(slot + 1, max(hi, slot))
        pre[slot] += rd[4:]
        if g + 6 < 14:
            pre[pos[g + 6]].append(WAIT(f"wr{g}"))
        slot += 1
    return sum((pre[i] + (q[i] if i < len(q) else []) for i in range(len(q) + 1)), [])


def conv(a):
    ms = []
    for m in range(4):
        p = m & 1
        for aa in range(8):
            for b in range(8 - aa):
                acc = vr(CACC + 4 * (aa + b), 4)
                c = "0" if (m == 0 and aa == 0) else acc
                ms.append(f"v_mfma_f32_16x16x32_bf16 {acc}, {rg(CUF[p], 4*b, 4)}, {rg(CHF[p], 4*aa, 4)}, {c}")
    NP, NC = int(OPT.get("npub", 36)), int(OPT.get("nchk", 108))
    head = {0: [WAIT("cu1")], 2: [WAIT("cu3")], 8: [WAIT("ch1")], 15: [WAIT("cf0")]}
    head.update({b: [WAIT(f"cu{b}")] for b in (4, 5, 6, 7)})
    head.update({36 * m: [WAIT(f"cf{m}")] for m in (1, 2, 3)})
    head[NP] = head.get(NP, []) + [WAIT("h_st"), stamp(6)] + publish(sF1)
    head[NC] = head.get(NC, []) + [WAIT("p_h"), lambda e: poll(e, LD_H, "1"), stamp(7)]
    rest = conv_reads(0)[NHEAD:]
    dummy = [DS(f"ds_read_b32 v0, v{vL8}")]
    dterm = [DS(f"ds_read_b64 {vr(96+2*j,2)}, v{vDT} offset:{(3-j)*512}", "dt") for j in range(4)]
    unp = [WAIT("dt"), f"v_and_b32 v{vDV}, 0xffff0000, v{vDV}"]
    for j in range(4):
        for r in range(4):
            src = 96 + 2 * j + (1 - (r >> 1))
            unp.append(f"v_lshlrev_b32 v{8+4*j+r}, 16, v{src}" if r & 1 else f"v_and_b32 v{8+4*j+r}, 0xffff0000, v{src}")
    streams = [(rest + conv_reads(1), 0, len(rest) + 16), (conv_reads(2) + dummy, 36, 64), (conv_reads(3) + dummy, 72, 100),
               (wd_conv_stream(), int(OPT.get("wd0", 14)), int(OPT.get("wd1", 92))),
               ([VM(LD_H, "p_h")], NC - int(OPT.get("php", 19)), NC - int(OPT.get("php", 19)) + 1),
               CHAIN([([f"v_add_u32 v{6+p}, s{sHL+p}, v{vL16}" for p in range(2)], 28, 32), ([h_load(n) for n in range(NH - 1)], NC, 143)]), CHAIN([(dterm, 108, 113), (unp, 120, 140)])]
    fl, over = schedule(144, streams, 8, 2)
    if over:
        print(f"conv: {over} left over", file=sys.stderr)
    a.weave([head.get(i, []) + [x] for i, x in enumerate(ms)], fl)
    a.put(stamp(8))


ACC2 = 128
XR, SR, XF, YV, PB = 32, 40, 8, 96, 64


def part_writes(p):
    return [DS(f"ds_write_b128 v{vPW+rq}, {vr(ACC2 + (p*2+u)*16 + 4*rq, 4)} offset:{PART[p] + u*128}", f"pw{p}")
            for u in range(2) for rq in range(4)]


def part_reads(p):
    pre = [f"v_add_u32 v{vPR+e}, {hx(PART[1] - PART[0])}, v{vPR+e}" for e in range(2)] if p else []
    return pre, [DS(f"ds_read_b128 {vr(PB + 8*w + 4*e, 4)}, v{vPR+e} offset:{w*WDW}", f"pr{p}") for w in range(4) for e in range(2)]


XN = 24


def gate_first():
    b, r = PB, []
    for o in (8, 16, 24):
        r += [f"v_add_f32 v{b+j}, v{b+j}, v{b+o+j}" for j in range(8)]
    r += [f"v_mul_f32 v{b+8+j}, {hx(f2u(-1.4426950408889634))}, v{b+j}" for j in range(8)]
    r += [f"v_exp_f32 v{b+8+j}, v{b+8+j}" for j in range(8)]
    r += [f"v_mul_f32 v{XN+j}, v{XN+j}, v{b+j}" for j in range(8)]
    r += [f"v_add_f32 v{b+8+j}, 1.0, v{b+8+j}" for j in range(8)]
    r += [f"v_rcp_f32 v{b+8+j}, v{b+8+j}" for j in range(8)]
    r += [f"v_mul_f32 v{XN+j}, v{XN+j}, v{b+8+j}" for j in range(8)]
    return r


def out_store(p, src):
    return [f"v_cvt_pk_bf16_f32 v{44+j}, v{src+2*j}, v{src+2*j+1}" for j in range(4)] + \
        [VM(f"buffer_store_dwordx4 {vr(44,4)}, v{vXO}, {srd(rOUT)}, s{sXO+p} offen {OPT.get('outpol', '')}")]


def finalize_last():
    b, r, E = PB, [], range(0, 8, 2)
    for j in E:
        r += [f"v_pk_add_f32 {vr(b+j,2)}, {vr(b+j,2)}, {vr(b+8+j,2)}", f"v_pk_add_f32 {vr(b+16+j,2)}, {vr(b+16+j,2)}, {vr(b+24+j,2)}"]
    r += [f"v_pk_add_f32 {vr(b+j,2)}, {vr(b+j,2)}, {vr(b+16+j,2)}" for j in E]
    r += [f"v_pk_mul_f32 {vr(b+8+j,2)}, {vr(b+j,2)}, v[4:5] op_sel_hi:[1,0]" for j in E]
    r += [f"v_exp_f32 v{b+8+j}, v{b+8+j}" for j in range(8)]
    r += [f"v_pk_mul_f32 {vr(b+j,2)}, {vr(b+j,2)}, {vr(YV+8+j,2)}" for j in E]
    r += [f"v_pk_add_f32 {vr(b+8+j,2)}, {vr(b+8+j,2)}, 1.0 op_sel_hi:[1,0]" for j in E]
    r += [f"v_rcp_f32 v{b+8+j}, v{b+8+j}" for j in range(8)]
    r += [f"v_pk_fma_f32 {vr(b+j,2)}, {vr(b+j,2)}, {vr(b+8+j,2)}, {vr(XF+8+j,2)}" for j in E]
    return r + out_store(1, b)


def gemm2(a):
    NT = int(OPT.get("ntail", 6))
    order = [(n, u) for n in range(56 - NT) for u in range(2)] + [(n, u) for u in range(2) for n in range(56 - NT, 56)]
    ms = []
    for n, u in order:
        st, ks = divmod(n, 28)
        acc = vr(ACC2 + (st * 2 + u) * 16, 16)
        m = f"v_mfma_f32_32x32x16_bf16 {acc}, {ar(ks*8+u*4,4)}, {vr(HR + 4*(n % NH), 4)}, {'0' if ks == 0 else acc}"
        w = [f"h{n}"] + ([f"wr{ks // 2}"] if st == 0 and ks >= 18 and ks % 2 == 0 else [])
        ms.append([WAIT(*w), m] if u == 0 else [m])
    budget = [20 if g + 1 < 112 and len(ms[g + 1]) > 1 else 24 for g in range(112)]
    NSPLIT = 8

    def exchange(half):
        return [([WAIT("wr8")] + [DS(f"ds_write_b128 v{vRW}, {vr(CACC+16*(1-half)+4*j,4)} offset:{j*1024}", "rw") for j in range(4)], 0, NSPLIT),
                ([f"v_fma_f32 v{8+j}, v{8+j}, v{vDV}, v{CACC+16*half+j}" for j in range(16)], 2, NSPLIT)]

    hl = [(h_load(n + NH - 1), 2 * n, 2 * n + 1) for n in range(56 - NH + 1)]
    odd, join = a.label("odd"), a.label("join")
    a(f"s_cmp_eq_u32 s{sMH}, 0\ns_cbranch_scc0 {odd}")
    snap = (a.nvm, a.nds)
    for half, end in ((0, f"s_branch {join}\n{odd}:"), (1, f"{join}:")):
        a.nvm, a.nds = snap
        fl, over = schedule(NSPLIT, [CHAIN(hl[:NSPLIT // 2])] + exchange(half), budget, 3)
        a.weave(ms[:NSPLIT], fl)
        a(end)

    yfin = [ATOM((WAIT("rw"), "s_barrier"))] + [DS(f"ds_read_b128 {vr(96+4*j,4)}, v{vRR} offset:{j*1024}", "rr") for j in range(4)]
    yst = [WAIT("rr")]
    for j in range(4):
        yst += [f"v_add_f32 v{8+4*j+r}, v{8+4*j+r}, v{96+4*j+r}" for r in range(4)]
        yst += [f"v_cvt_pk_bf16_f32 v{24+2*j+k}, v{8+4*j+2*k}, v{9+4*j+2*k}" for k in range(2)]
        yst.append(VM(f"buffer_store_dwordx2 {vr(24+2*j,2)}, v{vL8}, {srd(rWS)}, s{sYS} offen offset:{j*512} {SC}", "y_st" if j == 3 else None))
    if "x_noyst" in OPT:
        yst = [x for x in yst if not (isinstance(x, tuple) and x[0] == "vm")] + [lambda e: e.tags.__setitem__("y_st", ("vm", e.nvm - 20))]
    xl = [VM(f"buffer_load_dwordx4 {vr(XR+4*p,4)}, v{vXO}, {srd(rX)}, s{sXO+p} offen") for p in range(2)]
    xl += [VM(f"buffer_load_dwordx2 {vr(SR+2*p,2)}, v{vSO}, {srd(rWS)}, s{sSO+p} offen {SC}", "xs" if p else None) for p in range(2)]
    xs = [WAIT("xs")]
    for p in range(2):
        xs.append(f"v_rcp_f32 v{SR+2*p+1}, v{SR+2*p+1}")
        for j in range(4):
            xs += [f"v_lshlrev_b32 v{XF+8*p+2*j}, 16, v{XR+4*p+j}", f"v_and_b32 v{XF+8*p+2*j+1}, 0xffff0000, v{XR+4*p+j}"]
        xs.append(f"v_mul_f32 v{SR+2*p}, v{SR+2*p}, v{SR+2*p+1}")
    xs += [f"v_fma_f32 v{XN+8*p+j}, v{XF+8*p+j}, v{SR+2*p+1}, -v{SR+2*p}" for p in range(2) for j in range(8)]
    xs += [f"v_mov_b32 v{YV+j}, 0" for j in range(16)] + [f"v_mov_b32 v4, {hx(f2u(-1.4426950408889634))}"]
    NF, NY = int(OPT.get("nf", 22)), int(OPT.get("ny", 32))
    LY = int(OPT.get("ly", 8))
    pre1, rd1 = part_reads(1)
    pw1 = part_writes(1)
    dummy = [DS(f"ds_read_b32 v0, v{vL8}", "dm")]
    yend = [ATOM((WAIT("y_dma"), "s_barrier"))]
    yend += [DS(f"ds_read_u16_d16_hi v{YV+8*p+j}, v{vYG+p} offset:{j*128}", f"yg{p}") for p in range(2) for j in range(8)]
    yend += [WAIT("yg0")] + [f"v_fma_f32 v{XN+j}, v{XN+j}, v{YV+j}, v{XF+j}" for j in range(8)] + out_store(0, XN)
    yend += [WAIT("yg1")] + [f"v_mul_f32 v{YV+8+j}, v{YV+8+j}, v{XN+8+j}" for j in range(8)]
    streams = [
        hl[NSPLIT // 2:],
        [(yfin, 9, 12), (yst, 14, 24), (xs, 40, 60), (part_writes(0) + dummy, 60, 69),
         ([ATOM((WAIT("pw0"), "s_barrier"))] + part_reads(0)[1], 71, 74),
         ([WAIT("pr0")] + pre1 + gate_first(), 76, 96), (yend, int(OPT.get("ye", 97)), 108)],
        [(xl, 8, 16), ([WAIT("wd13")] + sum((wd_reads(g) for g in range(10, 14)), []) + dummy, 22, 38)],
        [([ATOM([WAIT("y_st")] + publish(sF2))], 2 * NF, 2 * NF + 1), ([VM(LD_Y, "p_y")], 2 * NY, 2 * NY + 1),
         ([ATOM((WAIT("p_y"), lambda e: poll(e, LD_Y, "1"))), f"s_mov_b32 m0, s{sYM}", f"s_add_u32 s4, s{sYD}, {8*KVP_COPY - YP}",
           VM(f"buffer_load_dwordx4 v{vYD}, {srd(rWS)}, s{sYD} offen {SC} lds"),
           VM(f"buffer_load_dwordx4 v{vYD}, {srd(rWS)}, s4 offen offset:{YP} {SC} lds", "y_dma")], 2 * (NY + LY), 2 * (NY + LY) + 3)],
        [([stamp(9)], 24, 25), ([stamp(12)], 56, 57), ([stamp(13)], 84, 85)]]
    streams = [CHAIN((it, g0 - NSPLIT, g1 - NSPLIT) for it, g0, g1 in st) for st in streams]
    fl, over = schedule(112 - NSPLIT, streams, budget[NSPLIT:], 3)
    if over:
        print(f"gemm2: {over} left over", file=sys.stderr)
    early = 4 if NT >= 6 else 0
    if early:
        g_last = 112 - NT - 1 - NSPLIT
        dist = sum(len(flat(fl[g])) + 1 for g in range(g_last, g_last + NT - 3))
        fl[-3] = ([f"s_nop {11 - dist}"] if dist < 12 else []) + pw1[:1] + fl[-3]
        fl[-2] = pw1[1:2] + fl[-2]
        fl[-1] = pw1[2:4] + fl[-1]
    a.weave(ms[NSPLIT:], fl)
    a.put([stamp(10), "s_nop 9"] + pw1[early:] + [WAIT("pw1"), "s_barrier"] + rd1 + [WAIT("pr1")] + finalize_last())


def build():
    a = Em()
    entry(a)
    a(f"s_cmp_ge_u32 s{sIDX}, 28\ns_cbranch_scc1 L_service")
    snap = (a.nvm, a.nds)
    gemm_role(a)
    a("L_join:")
    conv(a)
    gemm2(a)
    if STAMP:
        a.put([stamp(11), WAIT("allvm"), stamp(15)])
        a(f"""
        s_add_u32 s{rWS}, s{rWS}, {WS_TS}
        s_addc_u32 s{rWS+1}, s{rWS+1}, 0
        s_lshl_b32 s4, s2, 2
        s_add_u32 s4, s4, s{sW}
        s_lshl_b32 s4, s4, 8
        s_getreg_b32 s5, hwreg(HW_REG_XCC_ID)
        s_getreg_b32 s6, hwreg(HW_REG_HW_ID)
        v_writelane_b32 v{vST}, s5, 32
        v_writelane_b32 v{vST}, s6, 33
        v_lshlrev_b32 v4, 2, v{vLANE}
        buffer_store_dword v{vST}, v4, {srd(rWS)}, s4 offen
        """)
    if "diag" in OPT:
        k = int(OPT["diag"])
        a(f"""
        v_readlane_b32 s4, v{vST}, 30
        v_readlane_b32 s5, v{vST}, {16 + k}
        s_nop 3
        s_cmp_eq_u32 s5, 0
        s_cselect_b32 s5, s4, s5
        s_cmp_eq_u32 s2, {OPT.get("diagwg", 40)}
        s_cselect_b32 s5, s5, s4
        s_add_u32 s5, s5, 4000
        L_diag:
        s_memrealtime s[94:95]
        s_waitcnt lgkmcnt(0)
        s_sub_u32 s6, s94, s5
        s_cmp_lt_i32 s6, 0
        s_cbranch_scc1 L_diag
        """)
    a("L_exit:\ns_endpgm\nL_service:")
    a.nvm, a.nds = snap
    service_role(a)
    a("s_branch L_join")
    for t in a.tail:
        a(t)
    a("L_end:\ns_endpgm")
    hdr = open("cdna_kernels/" + NAME + ".s.ref").read().split("; Override launch")[0]
    t = hdr + f"; @launch grid=(256,1,1) block=(256,1,1) lds={LDS_BYTES}\n" + HEAD + kernel_text(KERNEL, a.text())
    t += '.section .rodata,"a"\n' + descriptor(KERNEL, vgpr=512, accum=256)
    return t


if __name__ == "__main__":
    open(sys.argv[1], "w").write(build())
```

```python
import sys
from common import (NAME, S, D, F, X_BYTES, W_BYTES, WS_H, WS_KV, WS_Y, WS_ST, WS_CS, WS_FL, WS_TS, LDS_BYTES, SLOT, KVP_COPY,
                    f2u, hx, vr, ar, spread, merge)
from asmlib import HEAD, kernel_text, descriptor
from emit import Em, VM, DS, WAIT, lines, schedule, ATOM, CHAIN, flat

OPT = dict(x[2:].split("=") if "=" in x else (x[2:], "1") for x in sys.argv if x.startswith("--"))
STAMP = "stamp" in OPT
KERNEL = NAME + "_kernel"
WS_BYTES = 16 << 20
SC = "sc1"
SPLIT = "nosplit" not in OPT

rX, rW, rWS, rWD, rSK, rOUT, rDBG, rV = 8, 12, 16, 20, 24, 28, 32, 36
pSD, pSH, pKV = 98, 42, 80
sXM, sWM, sXK, sWK, sHS = 44, 45, 46, 47, 48
sF1, sF2, sPH, sPY, sPK = 56, 57, 58, 59, 60
sDM = 61
sUM, sHM, sKVO, sSKO, sYS = 63, 64, 65, 66, 67
sYD, sYM, sXO, sSO, sHL, sG1S, sMH, sSPIN = 68, 69, 70, 72, 74, 76, 77, 78
sRB, sFS, sT2, sCT = 84, 85, 86, 87
GT = [62, 0, 1, 3, 39, 40, 50, 51, 52, 53, 54, 55, 80, 81]
sCS, sEM, sSP = 36, 41, 88
sXCD, sIDX, sW = 90, 91, 92
srd = lambda r: f"s[{r}:{r+3}]"

vLANE, vL16, vST = 1, 2, 3
vXD, vWD, vXA, vXB, vWA, vWB = 8, 16, 20, 22, 24, 28
vHO, vCA, vG1S, vCL, vH0, vPS, vDS = 32, 33, 34, 35, 36, 37, 38
vMS, vGC, vI2, vBM = 40, 8, 16, 64
vDD, vDA, vUA, vHA, vZU, vZH, vRW, vRR, vDT, vL8, vM0, vDV = 48, 52, 54, 55, 56, 57, 58, 59, 60, 61, 62, 63
vYD, vXO, vSO, vYG, vPW, vPR, vFH, vFY, vFK, vFD, vPOLL = 112, 113, 114, 115, 117, 121, 123, 124, 125, 126, 127
FR = [("v", 64), ("a", 160)]
ACC1 = 128
rg = lambda kb, o, n: (vr if kb[0] == "v" else ar)(kb[1] + o, n)

US = 4640
CH_LDS = 4 * US + 4208 + 16
CONV_BASE = 2 * SLOT + 16
EB, ES = 3 * SLOT + 16, 4352
YB, YP = 3 * SLOT, 1040
CSL = 3 * SLOT + 12288
WDW = 12288
KB, KVP = 0, 1056
VB = 9 * KVP
KVT = 18 * KVP
FL_H, FL_Y, FL_K = WS_FL, WS_FL + 131072, WS_FL + 262144

C1 = -2.0 * 0.7978845608028654 * 1.4426950408889634
C2 = C1 * 0.044715


def stamp(n, g1=False):
    mode = "g1" if "g1st" in OPT else ("ge" if "gest" in OPT else ("sv" if "svst" in OPT else ("g7" if "g7st" in OPT else False)))
    g1 = "g1" if g1 is True else g1
    if "lite" in OPT and n not in (0, 15):
        return None
    keep = (0, 1, 2, 15) if mode == "g1" else (0, 1, 2, 3, 4, 15)
    if not STAMP or (mode != g1 and (g1 or n not in keep)):
        return None
    return (f"v_writelane_b32 v{vST}, s100, 14\nv_writelane_b32 v{vST}, s94, 30" if n == 0 else "") + f"""
    s_memrealtime s[94:95]
    s_memtime s[96:97]
    s_waitcnt lgkmcnt(0)
    v_writelane_b32 v{vST}, s96, {n}
    v_writelane_b32 v{vST}, s94, {16 + n}
    """


LD_INIT = f"buffer_load_dword v{vPOLL}, v{vFD}, {srd(rDBG)}, 0 offen {SC}"
LD_KV = f"buffer_load_dword v{vPOLL}, v{vFK}, {srd(rWS)}, s{sPK} offen {SC}"


def publish(sf, inc=1):
    r = 79 if inc == 1 else 82
    return [f"s_mov_b32 s{r}, {inc}", f"s_atomic_add s{r}, s[{rWS}:{rWS+1}], s{sf}"]


def peek(sp):
    return ["s_mov_b32 s83, 0", f"s_atomic_add s83, s[{rWS}:{rWS+1}], s{sp} glc"]


def check(sp, want, mask=None):
    def emit(a):
        slow, back = a.label("slow"), a.label("back")
        test = (f"s_and_b32 s83, s83, {mask}\n" if mask else "") + f"s_cmp_ge_u32 s83, {want}"
        a("s_waitcnt lgkmcnt(0)")
        if ("x_noypoll" in OPT and sp == sPY) or ("x_nohpoll" in OPT and sp == sPH):
            return
        a(f"{test}\ns_cbranch_scc0 {slow}\n{back}:")
        a.tail.append(f"""
        {slow}:
        s_mov_b32 s{sSPIN}, 0x10000
        {slow}_l:
        s_mov_b32 s83, 0
        s_atomic_add s83, s[{rWS}:{rWS+1}], s{sp} glc
        s_sub_u32 s{sSPIN}, s{sSPIN}, 1
        s_cmp_eq_u32 s{sSPIN}, 0
        s_waitcnt lgkmcnt(0)
        s_cbranch_scc1 {back}
        {test}
        s_cbranch_scc0 {slow}_l
        s_branch {back}
        """)
    return emit


KVR = [44, 45, 46, 47, 42, 43, 98, 99]
S_INIT = [f"s_load_dword s{82+j}, s[{rDBG}:{rDBG+1}], {128*j}" for j in range(2)]
S_KV = [f"s_load_dword s{KVR[j]}, s[{rWS}:{rWS+1}], s{sPK} offset:{128*j}" for j in range(8)]


def scheck(loads, regs, want):
    def emit(a):
        slow, back = a.label("slow"), a.label("back")
        test = "\n".join(f"s_min_u32 s{regs[0]}, s{regs[0]}, s{r}" for r in regs[1:]) + f"\ns_cmp_ge_u32 s{regs[0]}, {want}"
        a("s_waitcnt lgkmcnt(0)")
        if "x_nokvpoll" in OPT and loads is S_KV:
            return
        a(f"{test}\ns_cbranch_scc0 {slow}\n{back}:")
        a.tail.append(f"""
        {slow}:
        s_mov_b32 s{sSPIN}, 0x10000
        {slow}_l:
        {LD_KV if loads is S_KV else LD_INIT}
        s_sub_u32 s{sSPIN}, s{sSPIN}, 1
        s_cmp_eq_u32 s{sSPIN}, 0
        s_waitcnt vmcnt(0)
        s_cbranch_scc1 {back}
        v_cmp_gt_u32 vcc, {want}, v{vPOLL}
        s_cbranch_vccnz {slow}_l
        s_branch {back}
        """)
    return emit


def entry(a):
    if STAMP:
        a("s_memrealtime s[94:95]\ns_memtime s[100:101]")
    a(f"""
    s_load_dwordx2 s[{rX}:{rX+1}], s[0:1], 0
    s_load_dwordx4 s[36:39], s[0:1], 56
    s_load_dwordx2 s[{rWS}:{rWS+1}], s[0:1], 96
    s_load_dwordx4 s[{pKV}:{pKV+3}], s[0:1], 8
    s_getpc_b64 s[4:5]
    L_pc:
    s_cmp_ge_u32 s2, 256
    s_cbranch_scc1 L_exit
    s_lshr_b32 s{sIDX}, s2, 3
    v_lshrrev_b32 v4, 4, v0
    s_and_b32 s6, s{sIDX}, 15
    s_lshl_b32 s6, s6, 11
    v_lshl_add_u32 v4, v4, 7, s6
    v_min_u32 v4, L_end-L_pc-4, v4
    v_mov_b32 v5, s5
    v_add_co_u32 v4, vcc, s4, v4
    v_lshrrev_b32 v6, 6, v0
    v_and_b32 v{vLANE}, 63, v0
    v_addc_co_u32 v5, vcc, 0, v5, vcc
    """)
    if "nocodepf" not in OPT:
        a.put(VM(f"global_load_dword v{vPOLL}, v[4:5], off"))
    a(f"""
    v_readfirstlane_b32 s{sW}, v6
    s_load_dwordx2 s[{rWD}:{rWD+1}], s[0:1], 72
    s_load_dwordx2 s[{rSK}:{rSK+1}], s[0:1], 32
    s_load_dwordx2 s[{rOUT}:{rOUT+1}], s[0:1], 80
    s_load_dwordx2 s[{rDBG}:{rDBG+1}], s[0:1], 88
    s_load_dwordx2 s[{pSD}:{pSD+1}], s[0:1], 40
    s_load_dwordx2 s[{pSH}:{pSH+1}], s[0:1], 24
    s_and_b32 s{sXCD}, s2, 7
    v_lshlrev_b32 v{vL16}, 4, v{vLANE}
    s_mov_b32 s{rX+2}, {X_BYTES}
    s_mov_b32 s{rX+3}, 0x20000
    s_mov_b32 s{rW+3}, 0x20000
    s_and_b32 s4, s{sXCD}, 1
    s_lshr_b32 s5, s{sXCD}, 1
    s_lshl_b32 s{sRB}, s4, 2
    s_add_u32 s{sT2}, s{sRB}, s5
    s_lshl_b32 s6, s{sT2}, 5
    s_add_u32 s6, s6, s{sIDX}
    s_lshl_b32 s6, s6, 2
    s_add_u32 s6, s6, s{sW}
    s_lshl_b32 s79, s6, 11
    v_lshrrev_b32 v4, 5, v{vLANE}
    v_and_b32 v5, 31, v{vLANE}
    v_lshlrev_b32 v96, 10, v4
    v_lshl_add_u32 v96, v5, 4, v96
    v_lshrrev_b32 v6, 3, v{vLANE}
    v_and_b32 v7, 7, v{vLANE}
    """)
    if STAMP:
        a(f"v_mov_b32 v{vST}, 0")


def stats_loads():
    return [VM(f"buffer_load_dwordx4 v[64:67], v96, {srd(rX)}, s79 offen"),
            VM(f"buffer_load_dwordx4 v[68:71], v96, {srd(rX)}, s79 offen offset:512", "stats_ld")]


def reduce32(v, t):
    r = []
    for ctl in ("quad_perm:[1,0,3,2]", "quad_perm:[2,3,0,1]", "row_half_mirror", "row_mirror"):
        r += ["s_nop 1", f"v_add_f32_dpp v{v}, v{v}, v{v} {ctl} row_mask:0xf bank_mask:0xf"]
    return r + [f"v_mov_b32 v{t}, v{v}", "s_nop 1", f"v_permlane16_swap_b32 v{t}, v{v}", "s_nop 0",
                f"v_add_f32 v{v}, v{t}, v{v}"]


def rnd(v):
    return [f"v_cvt_pk_bf16_f32 v{v}, v{v}, v{v}", f"v_and_b32 v{v}, 0xffff0000, v{v}"]


def stats_compute(vf1=vM0):
    r = [WAIT("stats_ld")]
    for j in range(8):
        r += [f"v_lshlrev_b32 v{72+2*j}, 16, v{64+j}", f"v_and_b32 v{73+2*j}, 0xffff0000, v{64+j}"]
    r.append("v_pk_add_f32 v[88:89], v[72:73], v[74:75]")
    r += [f"v_pk_add_f32 v[88:89], v[88:89], v[{72+2*j}:{73+2*j}]" for j in range(2, 8)]
    r += ["v_add_f32 v88, v88, v89"] + reduce32(88, 89) + [f"v_mul_f32 v88, {hx(f2u(1.0/512))}, v88"]
    r += [f"v_pk_add_f32 v[{72+2*j}:{73+2*j}], v[{72+2*j}:{73+2*j}], v[88:89] op_sel_hi:[1,0] neg_lo:[0,1] neg_hi:[0,1]"
          for j in range(8)]
    r.append("v_pk_mul_f32 v[90:91], v[72:73], v[72:73]")
    r += [f"v_pk_fma_f32 v[90:91], v[{72+2*j}:{73+2*j}], v[{72+2*j}:{73+2*j}], v[90:91]" for j in range(1, 8)]
    r += ["v_add_f32 v89, v90, v91"] + reduce32(89, 90) + [f"v_mul_f32 v89, {hx(f2u(1.0/512))}, v89"]
    r += rnd(88) + rnd(89) + [f"v_add_f32 v89, {hx(f2u(1e-5))}, v89"] + rnd(89) + ["v_sqrt_f32 v89, v89"]
    r += lines(f"""
    v_cmp_eq_u32 vcc, 0, v5
    s_lshr_b32 s79, s79, 7
    s_add_u32 s79, s79, {WS_ST}
    v_lshlrev_b32 v90, 3, v4
    v_cndmask_b32 v90, -1, v90, vcc
    v_mov_b32 v91, 0
    """) + rnd(89)
    r += [VM(f"buffer_store_dwordx2 v[88:89], v90, {srd(rWS)}, s79 offen {SC}"),
          VM(f"buffer_store_dword v91, v{vf1}, {srd(rWS)}, s{sF1} offen {SC}"),
          VM(f"buffer_store_dword v91, v{vM0}, {srd(rWS)}, s{sF2} offen {SC}", "init_st")]
    return r


def init_signal():
    return lines(f"""
    s_and_b32 s4, s2, 1
    s_lshl_b32 s4, s4, 7
    """) + [ATOM((f"s_cmp_eq_u32 s{sW}, 0", "s_cselect_b32 s4, s4, 0x1000"))] + lines(f"""
    v_mov_b32 v4, 1
    v_add_u32 v5, s4, v{vM0}
    """) + [VM(f"buffer_atomic_add v4, v5, {srd(rDBG)}, 0 offen {SC}")]


def setup_common(part=None):
    r = setup_all()
    cut = r.index(f"s_add_u32 s{sF2}, s6, {FL_Y}") + 1
    if part == 0:
        return r[:cut]
    late = r.index(f"v_lshlrev_b32 v{vFK}, 7, v6") + 1
    if part == "early":
        return r[:late]
    if part == "late":
        return [x.replace("v101", "v40").replace("v102", "v41").replace("v103", "v42") for x in r[late:]]
    if part == 1:
        redo = r.index(f"s_lshr_b32 s4, s{sW}, 1")
        return [f"v_lshrrev_b32 v4, 5, v{vLANE}", f"v_and_b32 v5, 31, v{vLANE}"] + r[redo:]
    return r


def setup_all():
    r = []
    for q, n in ((rWS, WS_BYTES), (rWD, W_BYTES), (rSK, X_BYTES), (rOUT, X_BYTES), (rDBG, 256)):
        r += [f"s_mov_b32 s{q+2}, {n}", f"s_mov_b32 s{q+3}, 0x20000"]
    table = "\n".join(f"s_add_u32 s6, s{GT[0]}, {g*32768}\ns_sub_u32 s7, s6, {14*32768}\ns_min_u32 s{GT[g]}, s6, s7" for g in range(1, 14))
    r += lines(f"""
    v_cmp_eq_u32 vcc, 0, v{vLANE}
    s_lshl_b32 s{sT2}, s{sT2}, 2
    s_and_b32 s4, s{sIDX}, 3
    v_bfrev_b32 v{vM0}, 1
    v_cndmask_b32 v{vM0}, v{vM0}, 0, vcc
    s_add_u32 s{sT2}, s{sT2}, s4
    s_lshr_b32 s4, s{sIDX}, 2
    s_xor_b32 s{sCT}, s4, 4
    s_lshr_b32 s4, s4, 2
    s_and_b32 s5, s{sXCD}, 1
    s_lshl_b32 s5, s5, 1
    s_add_u32 s4, s4, s5
    s_lshl_b32 s4, s4, 2
    s_add_u32 s4, s4, s{sW}
    s_lshl_b32 s4, s4, 10
    s_add_u32 s{sPK}, s4, {FL_K}
    s_lshr_b32 s4, s{sW}, 1
    s_and_b32 s{sMH}, s{sW}, 1
    s_lshl_b32 s5, s{sXCD}, 5
    s_add_u32 s5, s5, s{sIDX}
    s_lshl_b32 s5, s5, 1
    s_add_u32 s5, s5, s4
    s_lshl_b32 s6, s{sMH}, 9
    s_add_u32 s6, s6, s5
    s_lshr_b32 s6, s6, 4
    s_lshl_b32 s6, s6, 7
    s_add_u32 s{sF2}, s6, {FL_Y}
    s_lshl_b32 s{sSKO}, s5, 12
    s_lshl_b32 s6, s{sMH}, 11
    s_mul_i32 s{sYS}, s5, {KVP_COPY}
    s_add_u32 s{sKVO}, s{sYS}, {WS_KV}
    s_add_u32 s{sYS}, s{sYS}, s6
    s_add_u32 s{sYS}, s{sYS}, {WS_Y}
    s_lshl_b32 s5, s5, 1
    v_mov_b32 v{vDV}, s5
    v_mov_b32 v{vH0}, s{sSKO}
    s_add_u32 s{sSKO}, s{sSKO}, s6
    s_add_u32 s89, s{sSKO}, 2
    s_mul_i32 s7, s4, {ES}
    s_add_u32 s7, s7, {EB}
    s_mul_i32 s4, s4, {CH_LDS}
    s_add_u32 s4, s4, {CONV_BASE}
    s_mul_i32 s5, s{sMH}, {2*US + 8}
    s_sub_u32 s{sUM}, s4, s5
    s_add_u32 s{sHM}, s4, s6
    s_add_u32 s{sHM}, s{sHM}, {4*US + 112}
    s_add_u32 s{sEM}, s7, s6
    s_add_u32 s{sEM}, s{sEM}, 116
    v_lshl_add_u32 v{vZU}, v{vLANE}, 2, s{sUM}
    s_sub_u32 s93, s7, s4
    s_sub_u32 s93, s93, {4*US}
    s_add_u32 s5, s{sMH}, 27
    v_min_u32 v{vZH}, s5, v{vLANE}
    s_mul_i32 s5, s{sMH}, s93
    s_add_u32 s5, s5, s4
    s_add_u32 s5, s5, {4*US}
    v_lshl_add_u32 v{vZH}, v{vZH}, 2, s5
    v_lshlrev_b32 v{vL8}, 3, v{vLANE}
    s_sub_u32 s5, s4, s6
    s_add_u32 s5, s5, {3*US + 4080 - 3*512}
    v_and_b32 v{vDT}, -16, v{vL8}
    v_sub_u32 v{vDT}, s5, v{vDT}
    s_lshl_b32 s5, s{sMH}, 8
    s_add_u32 s4, s4, s5
    s_add_u32 s7, s7, s5
    v_lshrrev_b32 v98, 4, v{vLANE}
    v_and_b32 v{vFK}, 3, v{vLANE}
    v_bfe_u32 v99, v{vLANE}, 2, 2
    v_mul_u32_u24 v{vUA}, {US}, v{vFK}
    v_lshlrev_b32 v100, 7, v99
    v_sub_u32 v{vUA}, v{vUA}, v100
    v_lshl_add_u32 v{vUA}, v98, 4, v{vUA}
    s_add_u32 s5, s4, {248*16 - 7*512}
    v_add_u32 v{vUA}, s5, v{vUA}
    v_and_b32 v{vFD}, 1, v{vLANE}
    v_mul_u32_u24 v{vHA}, s93, v{vFD}
    v_sub_u32 v{vHA}, s7, v{vHA}
    v_bfe_u32 v101, v{vLANE}, 1, 3
    v_add_u32 v101, v101, v98
    v_lshl_add_u32 v{vHA}, v101, 4, v{vHA}
    v_mul_u32_u24 v{vPS}, 0x202, v{vFD}
    v_sub_u32 v{vPS}, 0x302, v{vPS}
    v_lshlrev_b32 v{vPS}, 16, v{vPS}
    v_or_b32 v{vPS}, 0xc0c, v{vPS}
    v_lshlrev_b32 v{vFD}, 7, v4
    s_mul_i32 s{sDM}, s{sW}, {WDW}
    s_add_u32 s5, s{sDM}, {wd_off(RED_SLOT)}
    v_add_u32 v{vRW}, s5, v{vL16}
    s_xor_b32 s5, s{sW}, 1
    s_mul_i32 s5, s5, {WDW}
    s_add_u32 s5, s5, {wd_off(RED_SLOT)}
    v_add_u32 v{vRR}, s5, v{vL16}
    v_and_b32 v101, 1, v98
    v_lshlrev_b32 v102, 2, v101
    v_xor_b32 v102, v7, v102
    v_lshlrev_b32 v102, 4, v102
    v_lshl_add_u32 v{vDD}, v6, 10, v102
    s_mul_i32 s6, s{sW}, {448*1024}
    s_lshl_b32 s5, s{sCT}, 7
    s_add_u32 s6, s6, s5
    v_add_u32 v{vDD}, s6, v{vDD}
    v_add_u32 v{vDD+1}, {8192-1024}, v{vDD}
    v_add_u32 v{vDD+2}, {2*(8192-1024)}, v{vDD}
    v_add_u32 v{vDD+3}, {3*(8192-1024)}, v{vDD}
    s_bfe_u32 s6, s{sT2}, 0x10001
    s_mul_i32 s6, s6, 3
    s_xor_b32 s7, s{sCT}, 3
    s_min_u32 s7, s7, {0 if "rot4" in OPT else 1}
    s_sub_u32 s7, 1, s7
    s_mul_i32 s6, s6, s7
    {f's_xor_b32 s93, s{sT2}, s{sCT}' if 'nohrot' not in OPT else f's_mov_b32 s93, s{sT2}'}
    s_and_b32 s93, s93, 1
    s_mul_i32 s93, s93, 7
    {"s_mul_i32 s93, s93, s7" if "rot1" in OPT else ""}
    s_add_u32 s6, s6, s93
    s_min_u32 s7, s{sXCD}, {int(OPT.get("xrot", 6))}
    s_add_u32 s93, s6, s7
    s_sub_u32 s7, s93, 14
    s_min_u32 s93, s93, s7
    s_lshl_b32 s{GT[0]}, s93, 15
    v_lshl_add_u32 v{vDA}, v4, 9, v100
    v_lshl_add_u32 v{vDA}, v101, 5, v{vDA}
    v_lshl_add_u32 v{vDA}, v{vFK}, 3, v{vDA}
    v_and_b32 v102, 1, v6
    v_lshl_add_u32 v{vDA}, v102, 6, v{vDA}
    s_lshl_b32 s{sSP}, s{sW}, 12
    s_add_u32 s{sSP}, s{sSP}, {3*SLOT}
    v_add_u32 v{vDS}, s{sSP}, v{vDA}
    v_xor_b32 v{vDS+1}, 64, v{vDS}
    v_add_u32 v{vDA}, s{sDM}, v{vDA}
    v_xor_b32 v{vDA+1}, 64, v{vDA}
    v_lshlrev_b32 v{vFK}, 7, v6
    {table}
    s_lshl_b32 s5, s{sCT}, 7
    s_and_b32 s6, s{sCT}, {0 if SPLIT or 'nosto' in OPT else 1}
    s_lshl_b32 s7, s{sT2}, 1
    s_add_u32 s7, s7, s6
    s_lshl_b32 s{sXO}, s7, 15
    s_add_u32 s{sXO}, s{sXO}, s5
    s_xor_b32 s{sXO+1}, s{sXO}, 0x8000
    s_lshl_b32 s{sSO}, s7, 8
    s_add_u32 s{sSO}, s{sSO}, {WS_ST}
    s_xor_b32 s{sSO+1}, s{sSO}, 0x100
    s_mul_i32 s4, s{sW}, {28*1024}
    s_mul_i32 s{sHL}, s7, {112*1024}
    s_add_u32 s{sHL}, s{sHL}, s4
    s_xor_b32 s7, s7, 1
    s_mul_i32 s{sHL+1}, s7, {112*1024}
    s_add_u32 s{sHL+1}, s{sHL+1}, s4
    s_lshl_b32 s4, s{sW}, 3
    v_add_u32 v102, s4, v6
    v_lshlrev_b32 v{vSO}, 3, v102
    v_lshlrev_b32 v103, 4, v7
    v_lshl_add_u32 v{vXO}, v102, 10, v103
    v_mul_u32_u24 v{vYD}, {KVP_COPY}, v6
    v_add_u32 v{vYD}, v{vYD}, v103
    s_lshl_b32 s4, s{sCT}, 2
    s_add_u32 s4, s4, s{sW}
    s_mul_i32 s{sYD}, s4, {16*KVP_COPY}
    s_lshl_b32 s7, s{sT2}, 7
    s_add_u32 s{sYD}, s{sYD}, s7
    s_add_u32 s{sYD}, s{sYD}, {WS_Y}
    s_lshl_b32 s{sPH}, s{sW}, 7
    s_lshl_b32 s7, s7, 2
    s_add_u32 s{sPH}, s{sPH}, s7
    s_add_u32 s{sPH}, s{sPH}, {FL_H}
    s_lshl_b32 s4, s4, 7
    s_lshr_b32 s7, s{sT2}, 4
    s_lshl_b32 s7, s7, 12
    s_add_u32 s4, s4, s7
    s_add_u32 s{sPY}, s4, {FL_Y}
    s_mul_i32 s{sYM}, s{sW}, {2*YP}
    s_add_u32 s{sYM}, s{sYM}, {YB}
    v_mul_u32_u24 v103, {YP}, v7
    v_and_b32 v101, 6, v6
    v_add_u32 v103, v103, v101
    v_and_b32 v101, 1, v6
    v_lshl_add_u32 v103, v101, 3, v103
    s_lshl_b32 s4, s{sW}, 4
    v_add_u32 v103, s4, v103
    s_lshl_b32 s6, s6, 6
    s_add_u32 s4, s6, {YB}
    v_add_u32 v{vYG}, s4, v103
    s_sub_u32 s4, {YB + 64}, s6
    v_add_u32 v{vYG+1}, s4, v103
    v_xor_b32 v103, v4, v7
    v_lshlrev_b32 v103, 4, v103
    v_lshl_add_u32 v103, v5, 8, v103
    v_add_u32 v{vPW}, s{sDM}, v103
    v_xor_b32 v{vPW+1}, 32, v{vPW}
    v_xor_b32 v{vPW+2}, 64, v{vPW}
    v_xor_b32 v{vPW+3}, 96, v{vPW}
    v_lshlrev_b32 v103, 1, v7
    v_xor_b32 v103, v103, v6
    v_lshlrev_b32 v103, 4, v103
    v_lshl_add_u32 v{vPR}, v102, 8, v103
    v_add_u32 v{vPR}, {PART[0]}, v{vPR}
    v_xor_b32 v{vPR+1}, 16, v{vPR}
    """)
    return r


def param_loads():
    return [VM(f"global_load_ushort v{vDV}, v{vDV}, s[{pSD}:{pSD+1}]"), VM(f"buffer_load_ushort v{vH0}, v{vH0}, {srd(rSK)}, 0 offen")]


SPARE = 3 * SLOT
NPRE = int(OPT.get("npre", 1))
NB = int(OPT.get("nb", 3))
GPLAN = OPT.get("gplan", "--------")
NGE = GPLAN.count("w")
G_AG, G_G1 = NPRE + 3, NPRE + 3 + NB
G_LD = G_G1 + NGE
RED_SLOT = (8 - NPRE) % 6
PART = [SLOT, 0] if RED_SLOT < 3 else [0, SLOT]
WD_SLOT = {g: ("S" if g < NPRE else (g - NPRE) % 6) for g in range(14)}


def wd_off(slot):
    return 0 if slot == "S" else (slot // 3) * SLOT + (slot % 3) * 4096


def wd_dma(g, slot=None, pad=False):
    slot = WD_SLOT[g] if slot is None else slot
    r = []
    for j in range(4):
        it = [VM(f"buffer_load_dwordx4 v{vDD+j}, {srd(rWD)}, s{GT[g]} offen offset:{j*1024} lds", f"wd{g}" if j == 3 else None)]
        if j == 0:
            it = [f"s_mov_b32 m0, s{sSP}" if slot == "S" else f"s_add_u32 m0, s{sDM}, {wd_off(slot)}"] + ["s_nop 0"] * pad + it
        if j == 3:
            it = [ATOM((it[0], f"s_lshr_b32 s{GT[g]}, s{GT[g]}, 4"))]
        r.append(it)
    return r


def wd_reads(g, slot=None):
    slot = WD_SLOT[g] if slot is None else slot
    va = vDS if slot == "S" else vDA
    r = []
    for k in range(2):
        for u in range(2):
            for e in range(2):
                last = k == 1 and u == 1 and e == 1
                r.append(DS(f"ds_read_b64_tr_b16 {ar((2*g+k)*8 + u*4 + 2*e, 2)}, v{va+u} offset:{wd_off(slot) + k*1024 + e*2048}",
                            f"wr{g}" if last else None))
    return r


def conv_dma(pad=True):
    out = []
    for m0, rs, so, sc, n in ((f"s{sUM}, {3*US}", rWS, sKVO, SC, 4), (f"s{sUM}, {2*US - 4}", rWS, sKVO, SC, 4),
                              (f"s{sHM}, 0", rSK, sSKO, "", 2), (f"s{sEM}, 0", rSK, 89, "", 2)):
        r = []
        for j in range(n):
            it = [VM(f"buffer_load_dwordx4 v{vL16}, {srd(rs)}, s{so} offen offset:{j*1024} {sc} lds", "cv_dma")]
            if j == 0:
                it = [f"s_add_u32 m0, {m0}"] + ["s_nop 0"] * pad + it
            r.append(it)
        out.append(r)
    return out[0] + out[1], out[2], out[3]


def conv_zero(z):
    return [DS(f"ds_write2st64_b32 v4, v{z}, v{z} offset0:0 offset1:1"),
            DS(f"ds_write2st64_b32 v5, v{z}, v{z} offset0:0 offset1:1"),
            DS(f"ds_write_b32 v{vZH}, v{vH0}", "cv_zero")]


def conv_zero_addr():
    return [f"v_add_u32 v4, {3*US + 4096}, v{vZU}", f"v_add_u32 v5, {2*US + 4092}, v{vZU}",
            f"v_mul_u32_u24 v{vH0}, s{sMH}, v{vH0}", f"v_add_u32 v0, 4, v{vLANE}", "v_min_u32 v0, 32, v0",
            "v_lshrrev_b32 v0, 5, v0", f"v_mul_u32_u24 v{vH0}, v0, v{vH0}", f"v_lshlrev_b32 v{vH0}, 16, v{vH0}"]


CUF = [("v", 128), ("a", 160)]
CHF = [("v", 160), ("a", 192)]
CACC = 64


def conv_reads(m):
    p = m & 1
    u = [DS(f"ds_read_b128 {rg(CUF[p], 4*j, 4)}, v{vUA} offset:{64*m + 512*(7-j)}", f"cu{j}") for j in range(8)]
    h = [DS(f"ds_read_b128 {rg(CHF[p], 4*j, 4)}, v{vHA} offset:{64*m + 512*j}", f"cf{m}" if j == 7 else f"ch{j}") for j in range(8)]
    return h[:1] + u + h[1:]


NHEAD = int(OPT.get("nhead", 5))


def g1_dma_setup():
    r = lines(f"""
    s_and_b32 s6, s{sIDX}, 3
    s_add_u32 s{sRB}, s{sRB}, s6
    s_mul_i32 s{sFS}, s5, 7
    s_lshr_b32 s6, s{sIDX}, 2
    s_add_u32 s{sFS}, s{sFS}, s6
    v_lshrrev_b32 v98, 4, v{vLANE}
    s_lshr_b32 s4, s{sW}, 1
    s_and_b32 s6, s{sW}, 1
    v_and_b32 v99, 1, v98
    v_lshlrev_b32 v99, 1, v99
    v_xor_b32 v99, v7, v99
    v_mul_u32_u24 v100, {F*2}, v6
    v_lshl_add_u32 v99, v99, 4, v100
    s_mul_i32 s6, s6, {32*F*2}
    s_lshl_b32 s7, s{sFS}, 7
    s_add_u32 s6, s6, s7
    v_add_u32 v{vWD}, s6, v99
    v_xor_b32 v99, 64, v{vWD}
    v_add_u32 v{vWD+1}, {8*F*2 - 1024}, v99
    v_add_u32 v{vWD+2}, {2*(8*F*2 - 1024)}, v{vWD}
    v_add_u32 v{vWD+3}, {3*(8*F*2 - 1024)}, v99
    s_lshl_b32 s{sG1S}, s{sRB}, 2
    s_add_u32 s{sG1S}, s{sG1S}, s{sW}
    s_lshl_b32 s7, s{sG1S}, 16
    v_xor_b32 v99, v7, v98
    v_lshlrev_b32 v99, 4, v99
    v_lshl_add_u32 v99, v6, 10, v99
    v_add_u32 v{vXD}, s7, v99
    v_xor_b32 v99, 64, v{vXD}
    """)
    for j in range(1, 8):
        r.append(f"v_add_u32 v{vXD+j}, {j*8192 - (j%4)*1024}, v{99 if j & 1 else vXD}")
    xr = OPT.get("xr", "1")
    if xr == "1":
        rot = f"s_lshl_b32 s{sXK}, s{sRB}, 7"
    elif xr == "2":
        rot = f"s_lshl_b32 s6, s{sFS}, 2\ns_add_u32 s6, s6, s{sRB}\ns_and_b32 s6, s6, 7\ns_lshl_b32 s{sXK}, s6, 7"
    else:
        par = f"s_xor_b32 s7, s{sXCD}, s5" if xr == "4" else f"s_mov_b32 s7, s{sXCD}"
        rot = (f"s_add_u32 s6, s{sFS}, s{sRB}\ns_and_b32 s6, s6, 3\ns_lshl_b32 s6, s6, 1\n{par}\ns_and_b32 s7, s7, 1\n"
               f"s_add_u32 s6, s6, s7\ns_lshl_b32 s{sXK}, s6, 7")
    r += lines(f"""
    s_lshl_b32 s{sXM}, s{sW}, 13
    s_lshl_b32 s{sWM}, s{sW}, 12
    s_add_u32 s{sWM}, s{sWM}, 32768
    {rot}
    s_mov_b32 s{rW+2}, {W_BYTES}
    s_cmp_eq_u32 s4, 0
    s_waitcnt lgkmcnt(0)
    s_cselect_b32 s{rW}, s36, s38
    s_cselect_b32 s{rW+1}, s37, s39
    """)
    return r


def g1_setup():
    r = lines(f"""
    v_lshrrev_b32 v102, 4, v{vLANE}
    v_and_b32 v103, 15, v{vLANE}
    v_bfe_u32 v98, v{vLANE}, 1, 3
    v_xor_b32 v98, v102, v98
    v_lshlrev_b32 v98, 4, v98
    v_lshl_add_u32 v98, v103, 7, v98
    s_lshl_b32 s4, s{sW}, 13
    v_add_u32 v{vXB}, s4, v98
    v_xor_b32 v{vXB+1}, 64, v{vXB}
    v_add_u32 v{vXA}, {2*SLOT}, v{vXB}
    v_add_u32 v{vXA+1}, {2*SLOT}, v{vXB+1}
    v_and_b32 v99, 3, v6
    v_bfe_u32 v100, v{vLANE}, 2, 2
    v_lshlrev_b32 v98, 10, v102
    v_lshl_add_u32 v98, v100, 7, v98
    v_and_b32 v101, 3, v{vLANE}
    v_lshl_add_u32 v98, v101, 3, v98
    v_lshl_add_u32 v98, v99, 5, v98
    v_add_u32 v{vWB}, 32768, v98
    v_xor_b32 v{vWB+1}, 32, v{vWB}
    v_xor_b32 v{vWB+2}, 64, v{vWB}
    v_xor_b32 v{vWB+3}, 96, v{vWB}
    v_add_u32 v{vWA}, {2*SLOT}, v{vWB}
    v_add_u32 v{vWA+1}, {2*SLOT}, v{vWB+1}
    v_add_u32 v{vWA+2}, {2*SLOT}, v{vWB+2}
    v_add_u32 v{vWA+3}, {2*SLOT}, v{vWB+3}
    s_lshl_b32 s4, s{sW}, 5
    v_xor_b32 v{vCL}, s4, v{vWB}
    s_lshl_b32 s4, s{sG1S}, 2
    s_lshr_b32 s5, s{sXCD}, 1
    s_add_u32 s4, s4, s5
    s_lshl_b32 s4, s4, 7
    s_add_u32 s{sF1}, s4, {FL_H}
    s_lshl_b32 s5, s{sFS}, 2
    s_mul_i32 s4, s{sG1S}, 224
    s_add_u32 s4, s4, s5
    s_lshl_b32 s{sHS}, s4, 10
    s_add_u32 s{sHS+1}, s{sHS}, {112*1024}
    v_lshlrev_b32 v{vHO}, 4, v103
    v_lshl_add_u32 v{vHO}, v102, 9, v{vHO}
    s_lshl_b32 s{sG1S}, s{sG1S}, 9
    s_add_u32 s{sG1S}, s{sG1S}, {WS_ST}
    v_lshlrev_b32 v{vG1S}, 3, v103
    v_lshlrev_b32 v{vCA}, 31, v4
    v_lshl_add_u32 v{vCA}, v102, 11, v{vCA}
    v_add_u32 v{vCA}, v{vCA}, v{vG1S}
    s_lshl_b32 s6, s{sFS}, 12
    s_add_u32 s6, s6, {WS_CS}
    s_lshl_b32 s4, s{sW}, 10
    s_add_u32 s{sCS}, s6, s4
    s_add_u32 s{sCS+2}, s4, {CSL}
    s_lshl_b32 s4, s{sW}, 9
    s_add_u32 s6, s6, s4
    s_lshr_b32 s4, s{sRB}, 1
    s_lshl_b32 s4, s4, 7
    s_and_b32 s5, s{sRB}, 1
    s_lshl_b32 s5, s5, 2
    s_add_u32 s4, s4, s5
    s_add_u32 s{sCS+1}, s6, s4
    """)
    return r


def g1_acc(j, t, mat):
    return ACC1 + (2 * j + (t >> 1)) * 16 + 8 * mat + 4 * (t & 1)


def g1_reads(step):
    st, k2, fr = step >> 1, step & 1, FR[step & 1]
    slot = (st + 1) % 3
    xa, wa, o = (vXA, vWA, 0) if slot == 2 else (vXB, vWB, slot * SLOT)
    x = [DS(f"ds_read_b128 {rg(fr, 4*j, 4)}, v{xa+k2} offset:{o + j*2048}") for j in range(4)]
    w = [DS(f"ds_read_b64_tr_b16 {rg(fr, 16 + 4*q + 2*e, 2)}, v{wa+(q>>1)} offset:{o + (q&1)*8192 + k2*4096 + e*512}", f"g1f{step}")
         for q in range(8) for e in range(2)]
    return w[:2] + x + w[2:]


def g1_mfmas(step):
    fr, m = FR[step & 1], []
    for q in range(8):
        for j in range(4):
            acc = vr(g1_acc(j, q >> 1, q & 1), 4)
            m.append(f"v_mfma_f32_16x16x32_bf16 {acc}, {rg(fr, 16 + 4*q, 4)}, {rg(fr, 4*j, 4)}, {'0' if step == 0 else acc}")
    return m


def g1_dmas(st):
    slot = ((st + 1) % 3) * SLOT
    d = []
    for j in range(4):
        pre = [f"s_add_u32 m0, s{sWM}, {slot}", f"s_mul_i32 s{sWK}, s{sXK}, {F}"] if j == 0 else []
        post = [f"s_add_u32 m0, s{sXM}, {slot}"] if j == 3 else []
        d.append(pre + [VM(f"buffer_load_dwordx4 v{vWD+j}, {srd(rW)}, s{sWK} offen offset:{j*1024} lds", f"w{st}" if j == 3 else None)] + post)
    for j in range(8):
        post = [f"s_add_u32 m0, s{sXM}, {slot + 4096}"] if j == 3 else []
        if j == 7:
            post = [f"s_add_u32 s{sXK}, s{sXK}, 128", f"s_and_b32 s{sXK}, s{sXK}, 1023"]
        d.append([VM(f"buffer_load_dwordx4 v{vXD+j}, {srd(rX)}, s{sXK} offen offset:{(j%4)*1024} lds", f"st{st}" if j == 7 else None)] + post)
    return d


def colsum():
    T, ONE, R = 128, 144, 148
    r = [f"v_mov_b32 v{ONE+j}, 0x3f803f80" for j in range(4)] + [WAIT("w0"), "s_barrier"]
    r += [DS(f"ds_read_b64_tr_b16 {vr(T+4*q+2*e, 2)}, v{vCL} offset:{SLOT + q*4096 + e*512}", "csr") for q in range(4) for e in range(2)]
    m = [WAIT("csr")]
    m += [f"v_mfma_f32_16x16x32_bf16 {vr(R+4*(q>>1),4)}, {vr(ONE,4)}, {vr(T+4*q,4)}, {vr(R+4*(q>>1),4) if q & 1 else '0'}" for q in range(4)]
    f = lines(f"""
    v_cmp_gt_u32 s[4:5], 16, v{vLANE}
    v_add_u32 v{vCL}, {CSL}, v{vL8}
    s_nop 0
    v_cndmask_b32 v{R}, v{R+4}, v{R}, s[4:5]
    v_cvt_pk_bf16_f32 v{R+1}, v{R}, v{R}
    v_and_b32 v{R+1}, 0xffff0000, v{R+1}
    v_sub_f32 v{R+1}, v{R}, v{R+1}
    v_cvt_pk_bf16_f32 v{R+1}, v{R}, v{R+1}
    """) + [VM(f"buffer_store_dword v{R+1}, v{vCA}, {srd(rWS)}, s{sCS+1} offen {SC}")]
    return r, m, f


def gemm_role(a):
    a.put(g1_dma_setup())
    a.put(stamp(0))
    d0, d1 = g1_dmas(0), g1_dmas(1)
    n_first = int(OPT.get("nfirst", 5))
    n_late = int(OPT.get("nlate", 2))
    a.put(stats_loads() + [x + ["s_nop 0"] if isinstance(x[-1], str) else x for x in d0[:n_first]])
    DEFER = OPT.get("defer", "end")
    su = g1_setup() + setup_common(None if DEFER == "no" else "early")
    cut = int(OPT.get("sucut", 190))
    a.put(su[:cut])
    a.put(stamp(1))
    rest = d0[n_first:] + d1[:12 - n_late]
    sc, (c_r, c_m, c_f) = stats_compute(), colsum()
    fill = su[cut:] + sc[:50] + [c_r] + sc[50:66] + [c_m] + sc[66:-3] + c_f + sc[-3:]
    a.weave(rest, spread(fill, len(rest), 0, len(rest) - 1))
    a.put([WAIT("st0"), "s_barrier", stamp(2)])
    a.put(g1_reads(0))

    cu, co, ce = conv_dma(pad=False)
    EBAR = int(OPT.get("ebar", 11)) if NPRE else 0
    CF = 224
    handed = [[VM(f"buffer_load_dwordx2 {vr(vMS+2*j,2)}, v{vG1S}, {srd(rWS)}, s{sG1S} offen offset:{128*j} {SC}", "g1st") for j in range(4)] +
              [f"s_mov_b32 m0, s{sCS+2}", VM(f"buffer_load_dwordx4 v{vL16}, {srd(rWS)}, s{sCS} offen {SC} lds", "csf")]]
    queue = [(x, 0, None) for x in d1[12 - n_late:]]

    def push(items, earliest, g=None):
        queue.extend((x, earliest, g if i == len(items) - 1 else None) for i, x in enumerate(items))

    for k in range(2, 8):
        push(g1_dmas(k), max(0, 2 * k - 5))
        g = k - int(OPT.get("pre0", 6 - NPRE))
        if 0 <= g < NPRE:
            w = wd_dma(g)
            if g:
                w[0] = [WAIT(f"wr{g-1}")] + w[0]
            push(w, 0, g)
            if g == 0:
                push([[f"v_lshrrev_b32 v47, 2, v{vLANE}", "v_lshlrev_b32 v47, 7, v47",
                       VM(f"buffer_load_dword v47, v47, {srd(rSK)}, s{sSKO} offen")] + param_loads()], 0)
        if k == int(OPT.get("epos", 7)) and EBAR < 13:
            push(ce + ([] if NPRE else [param_loads()]), EBAR)
    for g in range(NPRE, G_G1 + 1):
        if g == NPRE + int(OPT.get("hpos", 3)):
            push(handed + (ce if EBAR == 13 else []), 13)
        if g < G_G1:
            push(wd_dma(g), 11 if g < NPRE + 3 else 13, g)
    push(co, 15)
    push(cu, 16)
    plan = [int(c, 16) for c in OPT.get("plan", "8866666777777777f")]
    lag = int(OPT.get("rlag", 8))
    for i, (_, _, g) in enumerate(list(queue)):
        if g is not None and g < NPRE + 3:
            for k in range(4):
                pos = min(i + lag, len(queue) - 4) + k
                it, e, g2 = queue[pos]
                queue[pos] = ([WAIT(f"wd{g}")] * (k == 0) + wd_reads(g)[2*k:2*k+2] + it, e, g2)

    def take(step):
        items = []
        while queue and len(items) < plan[step] and queue[0][1] <= step:
            items.append(queue.pop(0)[0])
        return items

    for step in range(16):
        st = step >> 1
        if step >= 11:
            a.put(stamp({11: 5, 12: 6, 13: 7, 14: 9, 15: 12}[step], "g7"))
        if step == 15:
            a.put([WAIT("g1f15", "csf"), stamp(13, "g7"), "s_barrier", stamp(10, "g7")])
        elif step & 1:
            wt = [f"st{st+1}", f"g1f{step}"] + ([f"wr{NPRE-1}"] if step == EBAR and NPRE else [])
            a.put([WAIT(*wt), "s_barrier", stamp([3, 4, 5, 6, 7, 8, 9][st], True)])
        else:
            a.put(WAIT(f"g1f{step}"))
        if step == 13:
            a.put([scheck(S_INIT, [82, 83], 0x80), stamp(8, "g7")])
        if step == 13 and NPRE:
            assert f"wr{NPRE-1}" in a.tags
        streams = []
        if step < 15:
            dummy = [DS(f"ds_read_b32 v0, v{vL8}")] if 1 <= step <= 8 and "vinit" not in OPT else []
            streams.append((g1_reads(step + 1) + dummy, 0, 26))
        else:
            cr = [DS(f"ds_read_b64 {ar(CF+2*q,2)}, v{vCL} offset:{((q&1)*4 + (q>>1))*512}") for q in range(8)]
            streams.append((cr, 0, 26))
            c = [WAIT("g1st")]
            for j in range(4):
                c += [f"v_cvt_pk_bf16_f32 v{vBM+2*j}, -v{vMS+2*j}, -v{vMS+2*j}", f"v_mov_b32 v{vBM+2*j+1}, v{vBM+2*j}"]
            streams.append((c + conv_zero_addr() + ["v_mov_b32 v6, 0"], 8, 28))
        mine = take(step)
        streams.append((mine, 0, 31))
        if step == 2 and "vinit" in OPT:
            streams.append((init_signal(), 0, 16))
        if step == 1 and "vinit" not in OPT:
            skip = a.label("sig")
            streams.append((["s_and_b32 s83, s2, 1", "s_lshl_b32 s83, s83, 7", "s_mov_b32 s79, 1",
                             ATOM((f"s_cmp_lg_u32 s{sW}, 0", f"s_cbranch_scc1 {skip}", f"s_atomic_add s79, s[{rDBG}:{rDBG+1}], s83", f"{skip}:"))], 20, 29))
        if step == 12:
            streams.append((S_INIT, 0, 2))
        if step == 15:
            streams.append((S_KV, int(OPT.get("pkv", 2)), int(OPT.get("pkv", 2)) + 8))
        chunk = spread(setup_common("late"), 16, int(OPT.get("df0", 2)), int(OPT.get("df1", 11)))[step]
        if DEFER == "sh":
            streams.append((chunk, 0, 30))
        fl, over = schedule(32, streams, 8, 2 if len(flat(mine)) > 14 else 1)
        if DEFER == "end":
            fl[15] = fl[15] + chunk
        if over:
            print(f"step {step}: {over} left over", file=sys.stderr)
        a.weave(g1_mfmas(step), fl)
        if "x_idle" in OPT:
            for seg in OPT["x_idle"].split(","):
                lo, hi, amt = (int(v) for v in seg.split(":"))
                if lo <= step <= hi:
                    a(f"s_sleep {amt}")
    a.put([stamp(11, "g7"), scheck(S_KV, KVR, 1), "s_barrier", stamp(3), stamp(12, True)])
    c = []
    for j in range(4):
        den, c1 = vMS + 2 * j + 1, vGC + 2 * j
        c += lines(f"""
        v_rcp_f32 v{c1}, v{den}
        v_mul_f32 v{vI2+j}, v{den}, v{den}
        v_mul_f32 v{c1+1}, v{c1}, v{c1}
        v_mul_f32 v{c1+1}, v{c1+1}, v{c1}
        v_mul_f32 v{c1}, {hx(f2u(C1))}, v{c1}
        v_mul_f32 v{c1+1}, {hx(f2u(C2))}, v{c1+1}
        """)
    ms = []
    for j in range(4):
        for q in range(8):
            acc = vr(g1_acc(j, q >> 1, q & 1), 4)
            ms.append(f"v_mfma_f32_16x16x16_bf16 {acc}, {ar(CF+2*q,2)}, {vr(vBM+2*j,2)}, {acc}")
    last = take(16)
    fl, over = schedule(32, [(conv_zero(6), 0, 28), (last, 0, 31), (c, 0, 28)], 8, 2)
    assert not queue
    a.weave(ms, fl)
    a.put(stamp(4))
    plan = GPLAN
    a.put(WAIT(f"wr{G_AG-1}"))
    extra = {"-": [[], [], [], []]}
    for n in range(8):
        jt, tp = n >> 1, n & 1
        c1, acc, T = vGC + 2 * jt, ACC1 + n * 16, 96 + 8 * tp
        i2, hi = vr(vI2 + (jt & 2), 2), jt & 1
        ex = wd_dma(G_G1 + plan[:n].count("w"), None, True) if plan[n] == "w" else extra[plan[n]]
        ex = [list(flat([list(y) if isinstance(y, ATOM) else y for y in x])) for x in ex]
        if n == 7:
            ex = [[], [], [], [WAIT(*(["cv_dma"] if SPLIT else ["cv_dma", "allds"])), "s_barrier"] + conv_reads(0)[:NHEAD]]
        E = range(0, 8, 2)
        a.put([f"v_pk_mul_f32 {vr(T+j,2)}, {vr(acc+j,2)}, {vr(acc+j,2)}" for j in E])
        a.put([f"v_pk_fma_f32 {vr(T+j,2)}, {vr(T+j,2)}, {vr(c1,2)}, {vr(c1,2)} op_sel:[0,1,0] op_sel_hi:[1,1,0]" for j in E])
        a.put([f"v_pk_mul_f32 {vr(T+j,2)}, {vr(T+j,2)}, {vr(acc+j,2)}" for j in E] + ex[0])
        a.put([f"v_exp_f32 v{T+j}, v{T+j}" for j in range(8)] + ex[1])
        a.put([f"v_pk_mul_f32 {vr(acc+j,2)}, {vr(acc+j,2)}, {vr(acc+8+j,2)}" for j in E])
        a.put([f"v_pk_fma_f32 {vr(T+j,2)}, {vr(T+j,2)}, {i2}, {i2} op_sel:[0,{hi},{hi}] op_sel_hi:[1,{hi},{hi}]" for j in E] + ex[2])
        a.put([f"v_rcp_f32 v{T+j}, v{T+j}" for j in range(8)] + ex[3])
        a.put([f"v_pk_mul_f32 {vr(acc+j,2)}, {vr(acc+j,2)}, {vr(T+j,2)}" for j in E])
        a.put([f"v_cvt_pk_bf16_f32 v{acc+8+j}, v{acc+2*j}, v{acc+2*j+1}" for j in range(4)])
        a.put(VM(f"buffer_store_dwordx4 {vr(acc+8,4)}, v{vHO}, {srd(rWS)}, s{sHS+(jt>>1)} offen offset:{tp*2048 + (jt&1)*256} {SC}", f"h_st{n}"))
        if SPLIT and n == int(OPT.get("pub1", 6)):
            a.put([WAIT("h_st3", "allds")] + publish(sF1))
        a.put(stamp([5, 6, 7, 8, 9, 12, 13, 11][n], "ge"))

    a.put(stamp(5))


def service_role(a):
    TAPB = 8 * KVT
    a.put(lines(f"""
    s_sub_u32 s{sFS}, s2, 224
    s_lshl_b32 s6, s{sFS}, 16
    s_lshr_b32 s7, s{sW}, 1
    s_and_b32 s4, s{sW}, 1
    v_lshlrev_b32 v8, 10, v6
    v_lshl_add_u32 v8, v7, 4, v8
    v_add_u32 v8, s6, v8
    v_subrev_u32 v12, 8192, v8
    s_mul_i32 s5, s4, 3
    s_add_u32 s5, s5, 5
    s_cmp_eq_u32 s{sFS}, 0
    s_cselect_b32 s5, 8, s5
    v_cmp_le_u32 vcc, s5, v6
    v_add_u32 v9, {8192 - KVP}, v8
    v_bfrev_b32 v29, 1
    v_cndmask_b32 v12, v29, v12, vcc
    v_add_u32 v10, {2*(8192 - KVP)}, v8
    s_mul_i32 s{sXM}, s{sW}, {VB}
    s_lshl_b32 s{sXK}, s7, 7
    s_mov_b32 s{rW+2}, {X_BYTES}
    s_lshl_b32 s5, s{sW}, 10
    v_add_u32 v13, s5, v{vL16}
    s_add_u32 m0, s5, {TAPB}
    s_cmp_eq_u32 s4, 0
    s_waitcnt lgkmcnt(0)
    s_cselect_b32 s{rW}, s{pKV}, s{pKV+2}
    s_cselect_b32 s{rW+1}, s{pKV+1}, s{pKV+3}
    """))
    a.put(stamp(0))
    nt = OPT.get("kvpol", "nt").replace("none", "")

    def tile_dma(tag):
        r = [[f"s_mov_b32 m0, s{sXM}", f"s_add_u32 s{sWM}, s{sXK}, {3*8192}",
              VM(f"buffer_load_dwordx4 v12, {srd(rW)}, s{sXK} offen lds")]]
        for j in range(8):
            q, pre = j % 3, []
            so = sXK if j < 3 else sWM
            if q == 0:
                pre = [f"s_add_u32 m0, s{sXM}, {(j+1)*KVP}", f"s_add_u32 s{sWM}, s{sWM}, {3*8192}" if j == 6 else "s_nop 0"]
            r.append(pre + [VM(f"buffer_load_dwordx4 v{8+q}, {srd(rW)}, s{so} offen offset:{q*KVP} {nt} lds", tag)])
        r[-1] += [f"s_add_u32 s{sXM}, s{sXM}, {2*KVT}", f"s_add_u32 s{sXK}, s{sXK}, 256"]
        return r

    if "x_nold" in OPT:
        a("v_mov_b32 v8, v29\nv_mov_b32 v9, v29\nv_mov_b32 v10, v29\nv_mov_b32 v12, v29")
    d0, n0 = tile_dma("kv0"), 5
    a.put(stats_loads() + [VM(f"global_load_lds_dwordx4 v13, s[{pSH}:{pSH+1}]")] + d0[:n0])
    a.put(lines(f"""
    s_lshl_b32 s5, s{sW}, 3
    v_add_u32 v11, s5, v6
    v_lshlrev_b32 v14, 5, v11
    v_add_u32 v14, {TAPB}, v14
    v_sub_u32 v13, 7, v7
    v_mul_u32_u24 v13, {KVP}, v13
    v_lshl_add_u32 v13, v6, 3, v13
    s_mul_i32 s5, s7, {KVT}
    s_lshl_b32 s4, s4, 6
    s_add_u32 s5, s5, s4
    v_add_u32 v13, s5, v13
    v_mul_u32_u24 v15, {4*KVP_COPY}, v11
    v_lshl_add_u32 v15, v7, 4, v15
    s_lshl_b32 s5, s{sFS}, 7
    s_sub_u32 s{sHS}, {WS_KV + 4096 - 128}, s5
    s_lshl_b32 s4, s{sW}, 12
    s_add_u32 s4, s4, s5
    s_add_u32 s{sF1}, s4, {FL_K}
    """))
    a.put(setup_common(0))
    d01 = d0[n0:] + tile_dma("kv1")
    a.weave(d01, spread(stats_compute(), len(d01), 0, int(OPT.get("svs", 6))))
    a.put(stamp(2))
    RAW, TR, TP, UNP, U, OUT = 64, 16, 32, 128, 172, 192

    def tile_reads():
        r = [DS(f"ds_read_b128 {vr(TR+4*h,4)}, v14 offset:{16*h}") for h in range(2)]
        for jj in range(19):
            rho, base = (5 + jj, KB) if jj < 11 else (jj - 3, VB)
            r.append(DS(f"ds_read_b64 {vr(RAW+2*jj,2)}, v13 offset:{base + (rho >> 3) * KVP + (rho & 7) * 128}"))
        return r + [f"v_add_u32 v13, {2*KVT}, v13", "v_add_u32 v14, 1024, v14"]

    def pair(h):
        r = []
        for j in range(10):
            for ch in range(2):
                r.append(f"v_perm_b32 v{UNP+2*j+ch}, v{RAW+2*j+h}, v{RAW+2*(j+1)+h}, s{80+ch}")
        for j in range(11, 19):
            r += [f"v_lshlrev_b32 v{UNP+2*j}, 16, v{RAW+2*j+h}", f"v_and_b32 v{UNP+2*j+1}, s83, v{RAW+2*j+h}"]
        if h:
            r += [f"v_pk_mov_b32 {vr(TP+2*ch,2)}, {vr(TR+4+2*ch,2)}, {vr(TR+4+2*ch,2)} op_sel:[0,1]" for ch in range(2)]
        tp = TP if h else TR
        m = [f"v_dot2_f32_bf16 v{U+2*jj+ch}, v{UNP+2*jj+ch}, v{tp+2*ch+1}, 0" for jj in range(8) for ch in range(2)]
        m += [f"v_dot2_f32_bf16 v{U+2*jj+ch}, v{UNP+2*(jj+2)+ch}, v{tp+2*ch}, v{U+2*jj+ch}" for jj in range(8) for ch in range(2)]
        m += [f"v_pk_mul_f32 {vr(U+2*jj,2)}, {vr(U+2*jj,2)}, {vr(UNP+2*(11+jj),2)}" for jj in range(8)]
        st = []
        for ch in range(2):
            o = OUT + 8 * h + 4 * ch
            m += [f"v_cvt_pk_bf16_f32 v{o+e}, v{U+2*(7-2*e)+ch}, v{U+2*(6-2*e)+ch}" for e in range(4)]
            st.append([VM(f"buffer_store_dwordx4 {vr(o,4)}, v15, {srd(rWS)}, s{sHS} offen {SC}"),
                       f"s_add_u32 s{sHS}, s{sHS}, {KVP_COPY if 2*h+ch < 3 else 125*KVP_COPY}"])
        return r, m, st

    def mix(alu, mem):
        g = spread(alu, len(mem) + 1)
        a.put(g[0])
        a.weave(mem, g[1:])

    (u0, m0_, st0), (u1, m1_, st1) = pair(0), pair(1)
    pad = lines(f"""
    s_mov_b32 s83, 0xffff0000
    s_mov_b32 s80, 0x05040100
    s_mov_b32 s81, 0x07060302
    """)
    a.put([WAIT("kv0"), "s_barrier"] + tile_reads() + pad)
    for it in range(4):
        dm = tile_dma(f"kv{it+2}") if it < 2 else []
        if it == 2:
            dm = [[]]
            if "svt" in OPT:
                a.put(lines(f"""
                s_lshl_b32 s4, s{sFS}, 2
                s_add_u32 s4, s4, s{sW}
                s_mul_i32 s4, s4, {112*128}
                v_min_u32 v27, 55, v{vLANE}
                v_lshlrev_b32 v27, 7, v27
                s_add_u32 s5, s4, {56*128}
                """))
                dm += [[VM(f"buffer_load_dword v25, v27, {srd(rWD)}, s4 offen")], [], [], [], [],
                       [VM(f"buffer_load_dword v26, v27, {srd(rWD)}, s5 offen")]]
        a.put([WAIT("allds"), stamp([5, 7, 9, 13][it], "sv")])
        mix(u0 + m0_, (st1 if it else []) + dm[:5])
        mix(u1, st0 + dm[5:6])
        a.put(stamp([6, 8, 12, 10][it], "sv"))
        if it < 3:
            a.put([WAIT(f"kv{it+1}"), "s_barrier"] + tile_reads())
        if it == 0:
            a.put(init_signal())
        mix(m1_, dm[6:])
    a.put(st1)
    a.put(stamp(3))
    su = setup_common(1)
    a.put(su[:110] + [WAIT("allvm"), stamp(1)] + publish(sF1))
    a.put(S_INIT + su[110:] + ["s_barrier", stamp(4)])
    cu, co, ce = conv_dma()
    first = min(6, G_AG)
    a.put(param_loads() + co + ce + [wd_dma(g, g, True) for g in range(first)])
    for g in range(first):
        a.put([WAIT(f"wd{g}")] + wd_reads(g, g))
    a.put([scheck(S_INIT, [82, 83], 0x80)] + S_KV + [wd_dma(g, g - 6, True) for g in range(6, G_AG)] + [wd_dma(g, None, True) for g in range(G_AG, min(G_LD, G_AG + 3))])
    a.put([scheck(S_KV, KVR, 1), "s_barrier"])
    a.put(cu + conv_zero_addr() + ["v_mov_b32 v12, 0"] + conv_zero(12))
    for g in range(6, G_AG):
        a.put([WAIT(f"wd{g}")] + wd_reads(g, g - 6))
    a.put([WAIT("allds")] + [wd_dma(g, None, True) for g in range(G_AG + 3, G_LD)])
    a.put([WAIT("allvm", "allds"), "s_barrier"] + conv_reads(0)[:NHEAD])
    a.put(stamp(5))


HR, NH = 192, 16
HPOL = OPT.get("x_hpol", SC).replace("none", "")


def h_load(n):
    st, ks = divmod(n, 28)
    return [VM(f"buffer_load_dwordx4 {vr(HR + 4*(n % NH), 4)}, v{6+st}, {srd(rWS)}, s{GT[ks >> 1]} offen offset:{(ks%2)*1024} {HPOL}",
               f"h{n}", after=f"wd{ks >> 1}")]


def wd_conv_stream():
    items = [wd_dma(g) for g in range(G_LD, 14)]
    pos = {g: 4 * (g - G_LD) for g in range(G_LD, 14)}
    q = sum(items, [])
    pre = [[] for _ in range(len(q) + 1)]
    slot = 0
    for g in range(G_AG, 10):
        lo = pos[g] + 3 + 7 if g >= G_LD else 0
        assert g + 6 >= G_LD
        hi = pos[g + 6] - 1 if g + 6 < 14 else len(q)
        slot = min(max(slot, lo), max(hi - 1, 0))
        assert g < G_LD or slot > pos[g] + 3
        rd = wd_reads(g)
        pre[slot] += [WAIT(f"wd{g}")] + rd[:4]
        slot = min(slot + 1, max(hi, slot))
        pre[slot] += rd[4:]
        if g + 6 < 14:
            pre[pos[g + 6]].append(WAIT(f"wr{g}"))
        slot += 1
    return sum((pre[i] + (q[i] if i < len(q) else []) for i in range(len(q) + 1)), [])


def conv(a):
    ms = []
    for m in range(4):
        p = m & 1
        for aa in range(8):
            for b in range(8 - aa):
                acc = vr(CACC + 4 * (aa + b), 4)
                c = "0" if (m == 0 and aa == 0) else acc
                ms.append(f"v_mfma_f32_16x16x32_bf16 {acc}, {rg(CUF[p], 4*b, 4)}, {rg(CHF[p], 4*aa, 4)}, {c}")
    NP, NC = int(OPT.get("npub", 36)), int(OPT.get("nchk", 108))
    head = {0: [WAIT("cu1")], 2: [WAIT("cu3")], 8: [WAIT("ch1")], 15: [WAIT("cf0")]}
    head.update({b: [WAIT(f"cu{b}")] for b in (4, 5, 6, 7)})
    head.update({36 * m: [WAIT(f"cf{m}")] for m in (1, 2, 3)})
    head[NP] = head.get(NP, []) + [WAIT("h_st7"), stamp(6)] + publish(sF1, 0x100 if SPLIT else 1)
    head[NC] = head.get(NC, []) + [check(sPH, 7, 0xff), stamp(7)]
    rest = conv_reads(0)[NHEAD:]
    dummy = [DS(f"ds_read_b32 v0, v{vL8}")]
    dterm = [DS(f"ds_read_b128 {vr(96+4*j,4)}, v{vDT} offset:{(3-j)*512}", "dt") for j in range(4)]
    unp = [WAIT("dt"), f"v_lshlrev_b32 v{vDV}, 16, v{vDV}"]
    unp += [f"v_perm_b32 v{8+4*j+r}, v{96+4*j+3-r}, v{96+4*j+3-r}, v{vPS}" for j in range(4) for r in range(4)]
    streams = [(rest + conv_reads(1) + dummy, 0, len(rest) + 17), (conv_reads(2) + dummy, 36, 64), (conv_reads(3) + dummy, 72, 100),
               (wd_conv_stream(), int(OPT.get("wd0", 14)), int(OPT.get("wd1", 92))),
               (peek(sPH), NC - int(OPT.get("php", 34)), NC - int(OPT.get("php", 34)) + 1),
               CHAIN([([f"v_add_u32 v{6+p}, s{sHL+p}, v{vL16}" for p in range(2)], 28, 32), ([h_load(n) for n in range(NH - 1)], NC, 143)]), CHAIN([(dterm, 108, 113), (unp, 120, 140)])]
    fl, over = schedule(144, streams, 8, 2)
    if over:
        print(f"conv: {over} left over", file=sys.stderr)
    a.weave([head.get(i, []) + [x] for i, x in enumerate(ms)], fl)
    a.put(stamp(8))


ACC2 = 128
XR, SR, XF, YV, PB = 32, 40, 8, 96, 64


def part_writes(p):
    return [DS(f"ds_write_b128 v{vPW+rq}, {vr(ACC2 + (p*2+u)*16 + 4*rq, 4)} offset:{PART[p] + u*128}", f"pw{p}")
            for u in range(2) for rq in range(4)]


def part_reads(p):
    pre = [f"v_add_u32 v{vPR+e}, {hx(PART[1] - PART[0])}, v{vPR+e}" for e in range(2)] if p else []
    return pre, [DS(f"ds_read_b128 {vr(PB + 8*w + 4*e, 4)}, v{vPR+e} offset:{w*WDW}", f"pr{p}") for w in range(4) for e in range(2)]


XN = 24


def gate_first():
    b, r = PB, []
    for o in (8, 16, 24):
        r += [f"v_add_f32 v{b+j}, v{b+j}, v{b+o+j}" for j in range(8)]
    r += [f"v_mul_f32 v{b+8+j}, {hx(f2u(-1.4426950408889634))}, v{b+j}" for j in range(8)]
    r += [f"v_exp_f32 v{b+8+j}, v{b+8+j}" for j in range(8)]
    r += [f"v_mul_f32 v{XN+j}, v{XN+j}, v{b+j}" for j in range(8)]
    r += [f"v_add_f32 v{b+8+j}, 1.0, v{b+8+j}" for j in range(8)]
    r += [f"v_rcp_f32 v{b+8+j}, v{b+8+j}" for j in range(8)]
    r += [f"v_mul_f32 v{XN+j}, v{XN+j}, v{b+8+j}" for j in range(8)]
    return r


def out_store(p, src):
    return [f"v_cvt_pk_bf16_f32 v{44+j}, v{src+2*j}, v{src+2*j+1}" for j in range(4)] + \
        [VM(f"buffer_store_dwordx4 {vr(44,4)}, v{vXO}, {srd(rOUT)}, s{sXO+p} offen {OPT.get('outpol', '')}")]


def finalize_last():
    b, r, E = PB, [], range(0, 8, 2)
    for j in E:
        r += [f"v_pk_add_f32 {vr(b+j,2)}, {vr(b+j,2)}, {vr(b+8+j,2)}", f"v_pk_add_f32 {vr(b+16+j,2)}, {vr(b+16+j,2)}, {vr(b+24+j,2)}"]
    r += [f"v_pk_add_f32 {vr(b+j,2)}, {vr(b+j,2)}, {vr(b+16+j,2)}" for j in E]
    r += [f"v_pk_mul_f32 {vr(b+8+j,2)}, {vr(b+j,2)}, v[4:5] op_sel_hi:[1,0]" for j in E]
    r += [f"v_exp_f32 v{b+8+j}, v{b+8+j}" for j in range(8)]
    r += [f"v_pk_mul_f32 {vr(b+j,2)}, {vr(b+j,2)}, {vr(YV+8+j,2)}" for j in E]
    r += [f"v_pk_add_f32 {vr(b+8+j,2)}, {vr(b+8+j,2)}, 1.0 op_sel_hi:[1,0]" for j in E]
    r += [f"v_rcp_f32 v{b+8+j}, v{b+8+j}" for j in range(8)]
    r += [f"v_pk_fma_f32 {vr(b+j,2)}, {vr(b+j,2)}, {vr(b+8+j,2)}, {vr(XF+8+j,2)}" for j in E]
    return r + out_store(1, b)


def gemm2(a):
    NT = int(OPT.get("ntail", 6))
    order = [(n, u) for n in range(56 - NT) for u in range(2)] + [(n, u) for u in range(2) for n in range(56 - NT, 56)]
    ms = []
    for n, u in order:
        st, ks = divmod(n, 28)
        acc = vr(ACC2 + (st * 2 + u) * 16, 16)
        m = f"v_mfma_f32_32x32x16_bf16 {acc}, {ar(ks*8+u*4,4)}, {vr(HR + 4*(n % NH), 4)}, {'0' if ks == 0 else acc}"
        w = [f"h{n}"] + ([f"wr{ks // 2}"] if st == 0 and ks >= 18 and ks % 2 == 0 else [])
        ms.append([WAIT(*w), m] if u == 0 else [m])
    budget = [20 if g + 1 < 112 and len(ms[g + 1]) > 1 else 24 for g in range(112)]
    NSPLIT = 8

    def exchange(half):
        return [([WAIT("wr8")] + [DS(f"ds_write_b128 v{vRW}, {vr(CACC+16*(1-half)+4*j,4)} offset:{j*1024}", "rw") for j in range(4)] +
                 [DS(f"ds_read_b32 v0, v{vL8}")], 0, NSPLIT),
                ([f"v_fma_f32 v{8+j}, v{8+j}, v{vDV}, v{CACC+16*half+j}" for j in range(16)], 2, NSPLIT)]

    last = int(OPT.get("hlast", 46))
    when = lambda n: 2 * n if n < NSPLIT // 2 else NSPLIT + (n - NSPLIT // 2) * (2 * last - NSPLIT) // (56 - NH - NSPLIT // 2)
    hl = [(h_load(n + NH - 1), when(n), when(n) + 1) for n in range(56 - NH + 1)]
    if SPLIT:
        k2, p2 = 28 - (NH - 1), int(OPT.get("ph2", 0))
        hl[p2] = (hl[p2][0] + peek(sPH),) + hl[p2][1:]
        hl[k2 - 1] = (hl[k2 - 1][0] + [check(sPH, 0x700)],) + hl[k2 - 1][1:]
    odd, join = a.label("odd"), a.label("join")
    a(f"s_cmp_eq_u32 s{sMH}, 0\ns_cbranch_scc0 {odd}")
    snap = (a.nvm, a.nds)
    for half, end in ((0, f"s_branch {join}\n{odd}:"), (1, f"{join}:")):
        a.nvm, a.nds = snap
        fl, over = schedule(NSPLIT, [CHAIN(hl[:NSPLIT // 2])] + exchange(half), budget, 3)
        a.weave(ms[:NSPLIT], fl)
        a(end)

    yfin = [ATOM((WAIT("rw"), "s_barrier"))] + [DS(f"ds_read_b128 {vr(96+4*j,4)}, v{vRR} offset:{j*1024}", "rr") for j in range(4)]
    yfin.append(DS(f"ds_read_b32 v0, v{vL8}"))
    yst = [WAIT("rr")]
    for j in range(4):
        yst += [f"v_add_f32 v{8+4*j+r}, v{8+4*j+r}, v{96+4*j+r}" for r in range(4)]
        yst += [f"v_cvt_pk_bf16_f32 v{24+2*j+k}, v{8+4*j+2*k}, v{9+4*j+2*k}" for k in range(2)]
        yst.append(VM(f"buffer_store_dwordx2 {vr(24+2*j,2)}, v{vL8}, {srd(rWS)}, s{sYS} offen offset:{j*512} {SC}", "y_st" if j == 3 else None))
    if "x_noyst" in OPT:
        yst = [x for x in yst if not (isinstance(x, tuple) and x[0] == "vm")] + [lambda e: e.tags.__setitem__("y_st", ("vm", e.nvm - 20))]
    xl = [VM(f"buffer_load_dwordx4 {vr(XR+4*p,4)}, v{vXO}, {srd(rX)}, s{sXO+p} offen") for p in range(2)]
    xl += [VM(f"buffer_load_dwordx2 {vr(SR+2*p,2)}, v{vSO}, {srd(rWS)}, s{sSO+p} offen {SC}", "xs" if p else None) for p in range(2)]
    xs = [WAIT("xs")]
    for p in range(2):
        xs.append(f"v_rcp_f32 v{SR+2*p+1}, v{SR+2*p+1}")
        for j in range(4):
            xs += [f"v_lshlrev_b32 v{XF+8*p+2*j}, 16, v{XR+4*p+j}", f"v_and_b32 v{XF+8*p+2*j+1}, 0xffff0000, v{XR+4*p+j}"]
        xs.append(f"v_mul_f32 v{SR+2*p}, v{SR+2*p}, v{SR+2*p+1}")
    xs += [f"v_fma_f32 v{XN+8*p+j}, v{XF+8*p+j}, v{SR+2*p+1}, -v{SR+2*p}" for p in range(2) for j in range(8)]
    xs += [f"v_mov_b32 v{YV+j}, 0" for j in range(16)] + [f"v_mov_b32 v4, {hx(f2u(-1.4426950408889634))}"]
    NF, NY = int(OPT.get("nf", 22)), int(OPT.get("ny", 30))
    LY = int(OPT.get("ly", 10))
    pre1, rd1 = part_reads(1)
    pw1 = part_writes(1)
    dummy = [DS(f"ds_read_b32 v0, v{vL8}", "dm")]
    yend = [ATOM((WAIT("y_dma"), "s_barrier"))]
    yend += [DS(f"ds_read_u16_d16_hi v{YV+8*p+j}, v{vYG+p} offset:{j*128}", f"yg{p}") for p in range(2) for j in range(8)]
    yend += [WAIT("yg0")] + [f"v_fma_f32 v{XN+j}, v{XN+j}, v{YV+j}, v{XF+j}" for j in range(8)] + out_store(0, XN)
    yend += [WAIT("yg1")] + [f"v_mul_f32 v{YV+8+j}, v{YV+8+j}, v{XN+8+j}" for j in range(8)]
    streams = [
        hl[NSPLIT // 2:],
        [(yfin, 9, 12), (yst, 14, 24), (xs, 40, 60), (part_writes(0) + dummy + dummy, 60, 69),
         ([ATOM((WAIT("pw0"), "s_barrier"))] + part_reads(0)[1] + dummy, 71, 74),
         ([WAIT("pr0")] + pre1 + gate_first(), 76, 96), (yend, int(OPT.get("ye", 97)), 108)],
        [(xl, 8, 16), ([WAIT("wd13")] + sum((wd_reads(g) for g in range(10, 14)), []) + dummy, int(OPT.get("wr0", 28)), 40)],
        [([ATOM([WAIT("y_st")] + publish(sF2))], 2 * NF, 2 * NF + 1), (peek(sPY), 2 * NY, 2 * NY + 1),
         ([check(sPY, 16), f"s_mov_b32 m0, s{sYM}", f"s_add_u32 s4, s{sYD}, {8*KVP_COPY - YP}",
           VM(f"buffer_load_dwordx4 v{vYD}, {srd(rWS)}, s{sYD} offen {SC} lds"),
           VM(f"buffer_load_dwordx4 v{vYD}, {srd(rWS)}, s4 offen offset:{YP} {SC} lds", "y_dma")], 2 * (NY + LY), 2 * (NY + LY) + 3)],
        [([stamp(9)], 24, 25), ([stamp(12)], 56, 57), ([stamp(13)], 84, 85)]]
    def drop(pred):
        for st in streams:
            for k, (it, g0, g1) in enumerate(st):
                st[k] = ([x for x in flat(it) if not pred(x)], g0, g1)

    txt = lambda x: repr(x)
    if "x_nolds" in OPT:
        drop(lambda x: "ds_write_b128" in txt(x) or "pw0" in txt(x) or "pr0" in txt(x) or "ds_read_b128 v[6" in txt(x) or "ds_read_b128 v[7" in txt(x) or "ds_read_b128 v[8" in txt(x) or "ds_read_b128 v[92" in txt(x))
    if "x_noldy" in OPT:
        drop(lambda x: "p_y" in txt(x))
    if "x_noydma" in OPT:
        drop(lambda x: "y_dma" in txt(x) or f"dwordx4 v{vYD}," in txt(x))
    if "x_noout0" in OPT:
        drop(lambda x: "buffer_store_dwordx4" in txt(x))
    if "x_noph2" in OPT:
        drop(lambda x: "p_h2" in txt(x) and "wait" in txt(x))
    if "x_novalu" in OPT:
        drop(lambda x: isinstance(x, str) and x.startswith("v_"))
    streams = [CHAIN((it, g0 - NSPLIT, g1 - NSPLIT) for it, g0, g1 in st) for st in streams]
    fl, over = schedule(112 - NSPLIT, streams, budget[NSPLIT:], 3)
    if over:
        print(f"gemm2: {over} left over", file=sys.stderr)
    early = 4 if NT >= 6 else 0
    if early:
        g_last = 112 - NT - 1 - NSPLIT
        dist = sum(len(flat(fl[g])) + 1 for g in range(g_last, g_last + NT - 3))
        fl[-3] = ([f"s_nop {11 - dist}"] if dist < 12 else []) + pw1[:1] + fl[-3]
        fl[-2] = pw1[1:2] + fl[-2]
        fl[-1] = pw1[2:4] + fl[-1]
    a.weave(ms[NSPLIT:], fl)
    a.put([stamp(10), "s_nop 9"] + pw1[early:] + [WAIT("pw1"), "s_barrier"] + rd1 + [WAIT("pr1")] + finalize_last())


def build():
    a = Em()
    entry(a)
    a(f"s_cmp_ge_u32 s{sIDX}, 28\ns_cbranch_scc1 L_service")
    snap = (a.nvm, a.nds)
    gemm_role(a)
    a("L_join:")
    conv(a)
    gemm2(a)
    if STAMP:
        a.put([stamp(11), WAIT("allvm"), stamp(15)])
        a(f"""
        s_add_u32 s{rWS}, s{rWS}, {WS_TS}
        s_addc_u32 s{rWS+1}, s{rWS+1}, 0
        s_lshl_b32 s4, s2, 2
        s_add_u32 s4, s4, s{sW}
        s_lshl_b32 s4, s4, 8
        s_getreg_b32 s5, hwreg(HW_REG_XCC_ID)
        s_getreg_b32 s6, hwreg(HW_REG_HW_ID)
        v_writelane_b32 v{vST}, s5, 32
        v_writelane_b32 v{vST}, s6, 33
        v_lshlrev_b32 v4, 2, v{vLANE}
        buffer_store_dword v{vST}, v4, {srd(rWS)}, s4 offen
        """)
    if "diag" in OPT:
        k = int(OPT["diag"])
        a(f"""
        v_readlane_b32 s4, v{vST}, 30
        v_readlane_b32 s5, v{vST}, {16 + k}
        s_nop 3
        s_cmp_eq_u32 s5, 0
        s_cselect_b32 s5, s4, s5
        s_cmp_eq_u32 s2, {OPT.get("diagwg", 40)}
        s_cselect_b32 s5, s5, s4
        s_add_u32 s5, s5, 4000
        L_diag:
        s_memrealtime s[94:95]
        s_waitcnt lgkmcnt(0)
        s_sub_u32 s6, s94, s5
        s_cmp_lt_i32 s6, 0
        s_cbranch_scc1 L_diag
        """)
    a("L_exit:\ns_endpgm\nL_service:")
    a.nvm, a.nds = snap
    service_role(a)
    a("s_branch L_join")
    for t in a.tail:
        a(t)
    a("L_end:\ns_endpgm")
    hdr = open("cdna_kernels/" + NAME + ".s.ref").read().split("; Override launch")[0]
    t = hdr + f"; @launch grid=(256,1,1) block=(256,1,1) lds={LDS_BYTES}\n" + HEAD + kernel_text(KERNEL, a.text())
    t += '.section .rodata,"a"\n' + descriptor(KERNEL, vgpr=512, accum=256)
    return t


if __name__ == "__main__":
    open(sys.argv[1], "w").write(build())
```

```python
from asmlib import Asm


class Em(Asm):
    def __init__(self):
        super().__init__()
        self.nvm = 0
        self.nds = 0
        self.tags = {}
        self.tail = []
        self.skip = []

    def put(self, it):
        if it is None:
            return
        if isinstance(it, str):
            for ln in it.split("\n"):
                s = ln.strip()
                assert not s.startswith(("buffer_", "global_", "ds_")), s
            self(it)
        elif isinstance(it, list) or type(it).__name__ == "ATOM":
            for x in it:
                self.put(x)
        elif callable(it):
            it(self)
        elif it[0] == "vm":
            assert it[3] is None or it[3] in self.tags, it
            if not any(p(it[1]) for p in self.skip):
                self(it[1])
                self.nvm += 1
            if it[2]:
                self.tags[it[2]] = ("vm", self.nvm)
        elif it[0] == "ds":
            if not any(p(it[1]) for p in self.skip):
                self(it[1])
                self.nds += 1
            if it[2]:
                self.tags[it[2]] = ("ds", self.nds)
        elif it[0] == "wait":
            vm, ds = None, None
            for t in it[1]:
                if t == "allds":
                    ds = 0
                elif t == "allvm":
                    vm = 0
                else:
                    kind, n = self.tags[t]
                    if kind == "vm":
                        c = min(62, self.nvm - n)
                        vm = c if vm is None else min(vm, c)
                    else:
                        c = min(14, self.nds - n)
                        ds = c if ds is None else min(ds, c)
            s = "s_waitcnt"
            if vm is not None:
                s += f" vmcnt({vm})"
            if ds is not None:
                s += f" lgkmcnt({ds})"
            self(s)
        else:
            raise ValueError(it)

    def weave(self, anchors, fillers):
        for i, m in enumerate(anchors):
            self.put(m)
            if i < len(fillers):
                self.put(fillers[i])


def VM(text, tag=None, after=None):
    return ("vm", text, tag, after)


def DS(text, tag=None):
    return ("ds", text, tag)


def WAIT(*tags):
    return ("wait", list(tags))


def lines(s):
    return [x.strip() for x in s.strip().split("\n") if x.strip()]


def _kind(it):
    if isinstance(it, tuple) and it[0] in ("vm", "ds"):
        return "mem"
    return "alu"


def _cost(it):
    if isinstance(it, list):
        return sum(_cost(x) for x in it)
    if it is None:
        return 0
    if callable(it):
        return 0 if it.__name__ == "<lambda>" and it.__defaults__ else 8
    if isinstance(it, str) and it.strip().startswith(("v_exp", "v_rcp", "v_sqrt")):
        return 8
    if isinstance(it, tuple) and it[0] == "ds" and it[1].startswith("ds_write_b128"):
        return 20
    return 4


def flat(items):
    r = []
    for x in items:
        if isinstance(x, list):
            r += flat(x)
        elif x is not None:
            r.append(x)
    return r


class ATOM(tuple):
    pass


class CHAIN(list):
    pass


def _isvm(it):
    if isinstance(it, ATOM):
        it = it[0]
    return isinstance(it, tuple) and it[0] == "vm"


def _timed(items, g0, g1):
    items = flat(items)
    n = len(items)
    vm = [i for i, it in enumerate(items) if _isvm(it)]
    if len(vm) <= 1:
        return [(g0 + i * (g1 - g0) / max(n, 1), it) for i, it in enumerate(items)]
    dt, t, prev = (g1 - g0) / len(vm), [0] * n, -1
    for k, i in enumerate(vm + [n]):
        lo, hi = g0 + (k - 0.5) * dt, g0 + (k + 0.5) * dt
        for j in range(prev + 1, min(i + 1, n)):
            t[j] = max(g0, lo + (hi - lo) * (j - prev) / (i - prev)) if i < n else lo
        prev = i
    return list(zip(t, items))


def schedule(ngaps, streams, budget, maxmem):
    qs = []
    for st in streams:
        qs.append(sum((_timed(*seg) for seg in st), []) if isinstance(st, CHAIN) else _timed(*st))
    out = []
    for g in range(ngaps):
        gap, used, nmem, alu_seen = [], 0, 0, False
        while True:
            cand = []
            for q in qs:
                if not q or q[0][0] >= g + 1:
                    continue
                it = q[0][1]
                real = list(it) if isinstance(it, ATOM) else it
                mem = _kind(real[0] if isinstance(real, list) else real) == "mem"
                if mem and (alu_seen or nmem >= maxmem):
                    continue
                if used and used + _cost(real) > (budget[g] if isinstance(budget, list) else budget):
                    continue
                cand.append((0 if mem else 1, q[0][0], q, real, mem))
            if not cand:
                break
            cand.sort(key=lambda c: (c[0], c[1]))
            _, _, q, real, mem = cand[0]
            q.pop(0)
            gap.append(real)
            used += _cost(real)
            nmem += mem
            alu_seen |= (not mem) or isinstance(real, list)
        out.append(gap)
    rest = [(t, i, k, it) for i, q in enumerate(qs) for k, (t, it) in enumerate(q)]
    prev = None
    for _, _, _, it in rest:
        real = list(it) if isinstance(it, ATOM) else it
        if isinstance(prev, str) and " m0," in prev:
            out[-1].append("s_nop 0")
        out[-1].append(real)
        prev = real
    if rest and len(out[-1]) > len(rest):
        k = len(out[-1]) - len(rest) - 1
        head = out[-1][max(k, 0)]
        if isinstance(head, str) and " m0," in head:
            out[-1].insert(k + 1, "s_nop 0")
    return out, len(rest)
```

```python
import sys
from common import (NAME, S, D, F, X_BYTES, W_BYTES, WS_H, WS_KV, WS_Y, WS_ST, WS_CS, WS_FL, WS_TS, LDS_BYTES, SLOT, KVP_COPY,
                    f2u, hx, vr, ar, spread, merge)
from asmlib import HEAD, kernel_text, descriptor
from emit import Em, VM, DS, WAIT, lines, schedule, ATOM, CHAIN, flat

OPT = dict(x[2:].split("=") if "=" in x else (x[2:], "1") for x in sys.argv if x.startswith("--"))
STAMP = "stamp" in OPT
KERNEL = NAME + "_kernel"
WS_BYTES = 16 << 20
SC = "sc1"
SPLIT = "nosplit" not in OPT

rX, rW, rWS, rWD, rSK, rOUT, rDBG, rV = 8, 12, 16, 20, 24, 28, 32, 36
pSD, pSH, pKV = 98, 42, 80
sXM, sWM, sXK, sWK, sHS = 44, 45, 46, 47, 48
sF1, sF2, sPH, sPY, sPK = 56, 57, 58, 59, 60
sDM = 61
sUM, sHM, sKVO, sSKO, sYS = 63, 64, 65, 66, 67
sYD, sYM, sXO, sSO, sHL, sG1S, sMH, sSPIN = 68, 69, 70, 72, 74, 76, 77, 78
sRB, sFS, sT2, sCT = 84, 85, 86, 87
GT = [62, 0, 1, 3, 39, 40, 50, 51, 52, 53, 54, 55, 80, 81]
sCS, sEM, sSP = 36, 41, 88
sXCD, sIDX, sW = 90, 91, 92
srd = lambda r: f"s[{r}:{r+3}]"

vLANE, vL16, vST = 1, 2, 3
vXD, vWD, vXA, vXB, vWA, vWB = 8, 16, 20, 22, 24, 28
vHO, vCA, vG1S, vCL, vH0, vPS, vDS = 32, 33, 34, 35, 36, 37, 38
vMS, vGC, vI2, vBM = 40, 8, 16, 64
vDD, vDA, vUA, vHA, vZU, vZH, vRW, vRR, vDT, vL8, vM0, vDV = 48, 52, 54, 55, 56, 57, 58, 59, 60, 61, 62, 63
vYD, vXO, vSO, vYG, vPW, vPR, vFH, vFY, vFK, vFD, vPOLL = 112, 113, 114, 115, 117, 121, 123, 124, 125, 126, 127
FR = [("v", 64), ("a", 160)]
ACC1 = 128
rg = lambda kb, o, n: (vr if kb[0] == "v" else ar)(kb[1] + o, n)

US = 4640
CH_LDS = 4 * US + 4208 + 16
CONV_BASE = 2 * SLOT + 16
EB, ES = 3 * SLOT + 16, 4352
YB, YP = 3 * SLOT, 1040
CSL = 3 * SLOT + 12288
WDW = 12288
KB, KVP = 0, 1056
VB = 9 * KVP
KVT = 18 * KVP
FL_H, FL_Y, FL_K = WS_FL, WS_FL + 131072, WS_FL + 262144

C1 = -2.0 * 0.7978845608028654 * 1.4426950408889634
C2 = C1 * 0.044715


def stamp(n, g1=False):
    mode = "g1" if "g1st" in OPT else ("ge" if "gest" in OPT else ("sv" if "svst" in OPT else ("g7" if "g7st" in OPT else False)))
    g1 = "g1" if g1 is True else g1
    if "lite" in OPT and n not in (0, 15):
        return None
    keep = (0, 1, 2, 15) if mode == "g1" else (0, 1, 2, 3, 4, 15)
    if not STAMP or (mode != g1 and (g1 or n not in keep)):
        return None

    def emit(a):
        stamp_flush(a, False)
        if n == 0:
            a(f"v_writelane_b32 v{vST}, s100, 14\nv_writelane_b32 v{vST}, s94, 30")
        a("s_memrealtime s[94:95]\ns_memtime s[96:97]")
        a.pending = n
    return emit


def stamp_flush(a, wait=True):
    n = getattr(a, "pending", None)
    if n is not None:
        a(("s_nop 15\ns_nop 15\n" if wait else "") + f"v_writelane_b32 v{vST}, s96, {n}\nv_writelane_b32 v{vST}, s94, {16 + n}")
    a.pending = None


LD_INIT = f"buffer_load_dword v{vPOLL}, v{vFD}, {srd(rDBG)}, 0 offen {SC}"
LD_KV = f"buffer_load_dword v{vPOLL}, v{vFK}, {srd(rWS)}, s{sPK} offen {SC}"


def publish(sf, inc=1):
    r = 79 if inc == 1 else 82
    return [f"s_mov_b32 s{r}, {inc}", f"s_atomic_add s{r}, s[{rWS}:{rWS+1}], s{sf}"]


def peek(sp):
    return ["s_mov_b32 s83, 0", f"s_atomic_add s83, s[{rWS}:{rWS+1}], s{sp} glc"]


def check(sp, want, mask=None):
    def emit(a):
        slow, back = a.label("slow"), a.label("back")
        test = (f"s_and_b32 s83, s83, {mask}\n" if mask else "") + f"s_cmp_ge_u32 s83, {want}"
        a("s_waitcnt lgkmcnt(0)")
        if ("x_noypoll" in OPT and sp == sPY) or ("x_nohpoll" in OPT and sp == sPH):
            return
        a(f"{test}\ns_cbranch_scc0 {slow}\n{back}:")
        a.tail.append(f"""
        {slow}:
        s_mov_b32 s{sSPIN}, 0x10000
        {slow}_l:
        s_mov_b32 s83, 0
        s_atomic_add s83, s[{rWS}:{rWS+1}], s{sp} glc
        s_sub_u32 s{sSPIN}, s{sSPIN}, 1
        s_cmp_eq_u32 s{sSPIN}, 0
        s_waitcnt lgkmcnt(0)
        s_cbranch_scc1 {back}
        {test}
        s_cbranch_scc0 {slow}_l
        s_branch {back}
        """)
    return emit


KVR = [44, 45, 46, 47, 42, 43, 98, 99]
S_INIT = [f"s_load_dword s{82+j}, s[{rDBG}:{rDBG+1}], {128*j}" for j in range(2)]
S_KV = [f"s_load_dword s{KVR[j]}, s[{rWS}:{rWS+1}], s{sPK} offset:{128*j}" for j in range(8)]


def scheck(loads, regs, want):
    def emit(a):
        slow, back = a.label("slow"), a.label("back")
        test = "\n".join(f"s_min_u32 s{regs[0]}, s{regs[0]}, s{r}" for r in regs[1:]) + f"\ns_cmp_ge_u32 s{regs[0]}, {want}"
        a("s_waitcnt lgkmcnt(0)")
        if "x_nokvpoll" in OPT and loads is S_KV:
            return
        a(f"{test}\ns_cbranch_scc0 {slow}\n{back}:")
        a.tail.append(f"""
        {slow}:
        s_mov_b32 s{sSPIN}, 0x10000
        {slow}_l:
        {LD_KV if loads is S_KV else LD_INIT}
        s_sub_u32 s{sSPIN}, s{sSPIN}, 1
        s_cmp_eq_u32 s{sSPIN}, 0
        s_waitcnt vmcnt(0)
        s_cbranch_scc1 {back}
        v_cmp_gt_u32 vcc, {want}, v{vPOLL}
        s_cbranch_vccnz {slow}_l
        s_branch {back}
        """)
    return emit


WALK = "nowalk" not in OPT


def visit(first):
    def emit(a):
        if not WALK:
            return
        done = a.label("visited")
        a("s_mov_b64 exec, 0")
        for w in range(4):
            nxt = a.label("w")
            if w < 3:
                a(f"s_cmp_lg_u32 s{sW}, {w}\ns_cbranch_scc1 {nxt}")
            a(f"s_call_b64 s[6:7], L_page{first}_{w}")
            if w < 3:
                a(f"s_branch {done}\n{nxt}:")
        a(f"{done}:\ns_mov_b64 exec, -1")
    return emit


def entry(a):
    if STAMP:
        a("s_memrealtime s[94:95]\ns_memtime s[100:101]")
    a(f"""
    s_load_dwordx2 s[{rX}:{rX+1}], s[0:1], 0
    s_load_dwordx4 s[36:39], s[0:1], 56
    s_load_dwordx2 s[{rWS}:{rWS+1}], s[0:1], 96
    s_load_dwordx4 s[{pKV}:{pKV+3}], s[0:1], 8
    s_getpc_b64 s[4:5]
    L_pc:
    s_cmp_ge_u32 s2, 256
    s_cbranch_scc1 L_exit
    s_lshr_b32 s{sIDX}, s2, 3
    v_lshrrev_b32 v4, 4, v0
    s_lshl_b32 s6, s{sIDX}, 11
    v_lshl_add_u32 v4, v4, 7, s6
    v_min_u32 v4, L_end-L_pc-4, v4
    v_mov_b32 v5, s5
    v_add_co_u32 v4, vcc, s4, v4
    v_lshrrev_b32 v6, 6, v0
    v_and_b32 v{vLANE}, 63, v0
    v_addc_co_u32 v5, vcc, 0, v5, vcc
    """)
    if "nocodepf" not in OPT:
        a.put(VM(f"global_load_dword v{vPOLL}, v[4:5], off"))
    a(f"""
    v_readfirstlane_b32 s{sW}, v6
    s_load_dwordx2 s[{rWD}:{rWD+1}], s[0:1], 72
    s_load_dwordx2 s[{rSK}:{rSK+1}], s[0:1], 32
    s_load_dwordx2 s[{rOUT}:{rOUT+1}], s[0:1], 80
    s_load_dwordx2 s[{rDBG}:{rDBG+1}], s[0:1], 88
    s_load_dwordx2 s[{pSD}:{pSD+1}], s[0:1], 40
    s_load_dwordx2 s[{pSH}:{pSH+1}], s[0:1], 24
    s_and_b32 s{sXCD}, s2, 7
    v_lshlrev_b32 v{vL16}, 4, v{vLANE}
    s_mov_b32 s{rX+2}, {X_BYTES}
    s_mov_b32 s{rX+3}, 0x20000
    s_mov_b32 s{rW+3}, 0x20000
    s_and_b32 s4, s{sXCD}, 1
    s_lshr_b32 s5, s{sXCD}, 1
    s_lshl_b32 s{sRB}, s4, 2
    s_add_u32 s{sT2}, s{sRB}, s5
    s_lshl_b32 s6, s{sT2}, 5
    s_add_u32 s6, s6, s{sIDX}
    s_lshl_b32 s6, s6, 2
    s_add_u32 s6, s6, s{sW}
    s_lshl_b32 s79, s6, 11
    v_lshrrev_b32 v4, 5, v{vLANE}
    v_and_b32 v5, 31, v{vLANE}
    v_lshlrev_b32 v96, 10, v4
    v_lshl_add_u32 v96, v5, 4, v96
    v_lshrrev_b32 v6, 3, v{vLANE}
    v_and_b32 v7, 7, v{vLANE}
    """)
    if STAMP:
        a(f"v_mov_b32 v{vST}, 0")


def stats_loads():
    return [VM(f"buffer_load_dwordx4 v[64:67], v96, {srd(rX)}, s79 offen"),
            VM(f"buffer_load_dwordx4 v[68:71], v96, {srd(rX)}, s79 offen offset:512", "stats_ld")]


def reduce32(v, t):
    r = []
    for ctl in ("quad_perm:[1,0,3,2]", "quad_perm:[2,3,0,1]", "row_half_mirror", "row_mirror"):
        r += ["s_nop 1", f"v_add_f32_dpp v{v}, v{v}, v{v} {ctl} row_mask:0xf bank_mask:0xf"]
    return r + [f"v_mov_b32 v{t}, v{v}", "s_nop 1", f"v_permlane16_swap_b32 v{t}, v{v}", "s_nop 0",
                f"v_add_f32 v{v}, v{t}, v{v}"]


def rnd(v):
    return [f"v_cvt_pk_bf16_f32 v{v}, v{v}, v{v}", f"v_and_b32 v{v}, 0xffff0000, v{v}"]


def stats_compute():
    r = [WAIT("stats_ld")]
    for j in range(8):
        r += [f"v_lshlrev_b32 v{72+2*j}, 16, v{64+j}", f"v_and_b32 v{73+2*j}, 0xffff0000, v{64+j}"]
    r.append("v_pk_add_f32 v[88:89], v[72:73], v[74:75]")
    r += [f"v_pk_add_f32 v[88:89], v[88:89], v[{72+2*j}:{73+2*j}]" for j in range(2, 8)]
    r += ["v_add_f32 v88, v88, v89"] + reduce32(88, 89) + [f"v_mul_f32 v88, {hx(f2u(1.0/512))}, v88"]
    r += [f"v_pk_add_f32 v[{72+2*j}:{73+2*j}], v[{72+2*j}:{73+2*j}], v[88:89] op_sel_hi:[1,0] neg_lo:[0,1] neg_hi:[0,1]"
          for j in range(8)]
    r.append("v_pk_mul_f32 v[90:91], v[72:73], v[72:73]")
    r += [f"v_pk_fma_f32 v[90:91], v[{72+2*j}:{73+2*j}], v[{72+2*j}:{73+2*j}], v[90:91]" for j in range(1, 8)]
    r += ["v_add_f32 v89, v90, v91"] + reduce32(89, 90) + [f"v_mul_f32 v89, {hx(f2u(1.0/512))}, v89"]
    r += rnd(88) + rnd(89) + [f"v_add_f32 v89, {hx(f2u(1e-5))}, v89"] + rnd(89) + ["v_sqrt_f32 v89, v89"]
    r += lines(f"""
    v_cmp_eq_u32 vcc, 0, v5
    s_lshr_b32 s79, s79, 7
    s_add_u32 s79, s79, {WS_ST}
    v_lshlrev_b32 v46, 3, v4
    v_cndmask_b32 v46, -1, v46, vcc
    v_mov_b32 v44, v88
    v_cvt_pk_bf16_f32 v89, v89, v89
    v_and_b32 v45, 0xffff0000, v89
    """)
    r += [VM(f"buffer_store_dwordx2 v[44:45], v46, {srd(rWS)}, s79 offen {SC}", "init_st")]
    return r


def init_signal():
    return lines(f"""
    s_and_b32 s4, s2, 1
    s_lshl_b32 s4, s4, 7
    """) + [ATOM((f"s_cmp_eq_u32 s{sW}, 0", "s_cselect_b32 s4, s4, 0x1000"))] + lines(f"""
    v_mov_b32 v4, 1
    v_add_u32 v5, s4, v{vM0}
    """) + [VM(f"buffer_atomic_add v4, v5, {srd(rDBG)}, 0 offen {SC}")]


def clear_counters(a):
    l1, l2 = a.label("clr"), a.label("clr")
    a(f"""
    s_mov_b32 s82, 0
    s_add_u32 s83, s{sIDX}, 4
    s_and_b32 s83, s83, 24
    s_cbranch_scc1 {l1}
    s_atomic_and s82, s[{rWS}:{rWS+1}], s{sF1}
    {l1}:
    s_and_b32 s83, s5, 15
    s_cbranch_scc1 {l2}
    s_atomic_and s82, s[{rWS}:{rWS+1}], s{sF2}
    {l2}:
    """)


def setup_common(part=None):
    r = setup_all()
    cut = r.index(f"s_add_u32 s{sF2}, s6, {FL_Y}") + 1
    if part != 1:
        r = r[:cut] + [clear_counters] + r[cut:]
    if part == 0:
        return r[:cut + 1]
    late = r.index(f"v_lshlrev_b32 v{vFK}, 7, v6") + 1
    if part == "early":
        return r[:late]
    if part == "late":
        return [x.replace("v101", "v40").replace("v102", "v41").replace("v103", "v42") for x in r[late:]]
    if part == 1:
        redo = r.index(f"s_lshr_b32 s4, s{sW}, 1")
        return [f"v_lshrrev_b32 v4, 5, v{vLANE}", f"v_and_b32 v5, 31, v{vLANE}"] + r[redo:]
    return r


def setup_all():
    r = []
    for q, n in ((rWS, WS_BYTES), (rWD, W_BYTES), (rSK, X_BYTES), (rOUT, X_BYTES), (rDBG, 256)):
        r += [f"s_mov_b32 s{q+2}, {n}", f"s_mov_b32 s{q+3}, 0x20000"]
    table = "\n".join(f"s_add_u32 s6, s93, {g*32768}\ns_sub_u32 s7, s6, {14*32768}\ns_min_u32 s{GT[g]}, s6, s7" for g in range(1, 14))
    rot = f"""
    s_bfe_u32 s6, s{sT2}, 0x10001
    s_mul_i32 s6, s6, 3
    s_xor_b32 s7, s{sCT}, 3
    s_min_u32 s7, s7, {0 if "rot4" in OPT else 1}
    s_sub_u32 s7, 1, s7
    s_mul_i32 s6, s6, s7
    {f's_xor_b32 s93, s{sT2}, s{sCT}' if 'nohrot' not in OPT else f's_mov_b32 s93, s{sT2}'}
    s_and_b32 s93, s93, 1
    s_mul_i32 s93, s93, 7
    {"s_mul_i32 s93, s93, s7" if "rot1" in OPT else ""}
    s_add_u32 s6, s6, s93
    s_min_u32 s7, s{sXCD}, {int(OPT.get("xrot", 6))}
    s_add_u32 s93, s6, s7
    s_sub_u32 s7, s93, 14
    s_min_u32 s93, s93, s7
    s_lshl_b32 s93, s93, 15
    s_mov_b32 s{GT[0]}, s93
    """
    LEAD = int(OPT.get("lead", 0))
    lead = ""
    if LEAD:
        def entry_code(g):
            return (f"s_bfe_u32 s6, s{42 + g // 8}, {0x40000 + 4 * (g % 8)}\ns_lshl_b32 s6, s6, 15\ns_add_u32 s6, s6, s93\n"
                    f"s_sub_u32 s7, s6, {14*32768}\ns_min_u32 s{GT[g]}, s6, s7")
        lead = f"s_add_u32 s6, s{sT2}, s{sCT}\ns_and_b32 s6, s6, 3\n"
        for ph in range(4):
            perm = sorted(range(14), key=lambda g: g - (LEAD + 0.5) * (g % 4 == (ph + 1) % 4))
            w = sum(g << (4 * i) for i, g in enumerate(perm))
            if ph == 0:
                lead += f"s_mov_b32 s42, {hx(w)}\ns_mov_b32 s43, {hx(w >> 32)}\n"
            else:
                lead += f"s_cmp_eq_u32 s6, {ph} ; s_cmov_b32 s42, {hx(w)} ; s_cmov_b32 s43, {hx(w >> 32)}\n"
        lead += f"s_mul_i32 s93, s{sXCD}, {int(OPT.get('xl', 7))}\ns_lshr_b32 s93, s93, 2\ns_lshl_b32 s93, s93, 15\n" + entry_code(0)
        table = "\n".join(entry_code(g) for g in range(1, 14))
    r += lines(f"""
    v_cmp_eq_u32 vcc, 0, v{vLANE}
    s_lshl_b32 s{sT2}, s{sT2}, 2
    s_and_b32 s4, s{sIDX}, 3
    v_bfrev_b32 v{vM0}, 1
    v_cndmask_b32 v{vM0}, v{vM0}, 0, vcc
    s_add_u32 s{sT2}, s{sT2}, s4
    s_lshr_b32 s4, s{sIDX}, 2
    s_xor_b32 s{sCT}, s4, 4
    s_lshr_b32 s4, s4, 2
    s_and_b32 s5, s{sXCD}, 1
    s_lshl_b32 s5, s5, 1
    s_add_u32 s4, s4, s5
    s_lshl_b32 s4, s4, 2
    s_add_u32 s4, s4, s{sW}
    s_lshl_b32 s4, s4, 10
    s_add_u32 s{sPK}, s4, {FL_K}
    s_lshr_b32 s4, s{sW}, 1
    s_and_b32 s{sMH}, s{sW}, 1
    s_lshl_b32 s5, s{sXCD}, 5
    s_add_u32 s5, s5, s{sIDX}
    s_lshl_b32 s5, s5, 1
    s_add_u32 s5, s5, s4
    s_lshl_b32 s6, s{sMH}, 9
    s_add_u32 s6, s6, s5
    s_lshr_b32 s6, s6, 4
    s_lshl_b32 s6, s6, 7
    s_add_u32 s{sF2}, s6, {FL_Y}
    s_lshl_b32 s{sSKO}, s5, 12
    s_lshl_b32 s6, s{sMH}, 11
    s_mul_i32 s{sYS}, s5, {KVP_COPY}
    s_add_u32 s{sKVO}, s{sYS}, {WS_KV}
    s_add_u32 s{sYS}, s{sYS}, s6
    s_add_u32 s{sYS}, s{sYS}, {WS_Y}
    s_lshl_b32 s5, s5, 1
    v_mov_b32 v{vDV}, s5
    v_mov_b32 v{vH0}, s{sSKO}
    s_add_u32 s{sSKO}, s{sSKO}, s6
    s_add_u32 s89, s{sSKO}, 2
    s_mul_i32 s7, s4, {ES}
    s_add_u32 s7, s7, {EB}
    s_mul_i32 s4, s4, {CH_LDS}
    s_add_u32 s4, s4, {CONV_BASE}
    s_mul_i32 s5, s{sMH}, {2*US + 8}
    s_sub_u32 s{sUM}, s4, s5
    s_add_u32 s{sHM}, s4, s6
    s_add_u32 s{sHM}, s{sHM}, {4*US + 112}
    s_add_u32 s{sEM}, s7, s6
    s_add_u32 s{sEM}, s{sEM}, 116
    v_lshl_add_u32 v{vZU}, v{vLANE}, 2, s{sUM}
    s_sub_u32 s93, s7, s4
    s_sub_u32 s93, s93, {4*US}
    s_add_u32 s5, s{sMH}, 27
    v_min_u32 v{vZH}, s5, v{vLANE}
    s_mul_i32 s5, s{sMH}, s93
    s_add_u32 s5, s5, s4
    s_add_u32 s5, s5, {4*US}
    v_lshl_add_u32 v{vZH}, v{vZH}, 2, s5
    v_lshlrev_b32 v{vL8}, 3, v{vLANE}
    s_sub_u32 s5, s4, s6
    s_add_u32 s5, s5, {3*US + 4080 - 3*512}
    v_and_b32 v{vDT}, -16, v{vL8}
    v_sub_u32 v{vDT}, s5, v{vDT}
    s_lshl_b32 s5, s{sMH}, 8
    s_add_u32 s4, s4, s5
    s_add_u32 s7, s7, s5
    v_lshrrev_b32 v98, 4, v{vLANE}
    v_and_b32 v{vFK}, 3, v{vLANE}
    v_bfe_u32 v99, v{vLANE}, 2, 2
    v_mul_u32_u24 v{vUA}, {US}, v{vFK}
    v_lshlrev_b32 v100, 7, v99
    v_sub_u32 v{vUA}, v{vUA}, v100
    v_lshl_add_u32 v{vUA}, v98, 4, v{vUA}
    s_add_u32 s5, s4, {248*16 - 7*512}
    v_add_u32 v{vUA}, s5, v{vUA}
    v_and_b32 v{vFD}, 1, v{vLANE}
    v_mul_u32_u24 v{vHA}, s93, v{vFD}
    v_sub_u32 v{vHA}, s7, v{vHA}
    v_bfe_u32 v101, v{vLANE}, 1, 3
    v_add_u32 v101, v101, v98
    v_lshl_add_u32 v{vHA}, v101, 4, v{vHA}
    v_mul_u32_u24 v{vPS}, 0x202, v{vFD}
    v_sub_u32 v{vPS}, 0x302, v{vPS}
    v_lshlrev_b32 v{vPS}, 16, v{vPS}
    v_or_b32 v{vPS}, 0xc0c, v{vPS}
    v_lshlrev_b32 v{vFD}, 7, v4
    s_mul_i32 s{sDM}, s{sW}, {WDW}
    s_add_u32 s5, s{sDM}, {wd_off(RED_SLOT)}
    v_add_u32 v{vRW}, s5, v{vL16}
    s_xor_b32 s5, s{sW}, 1
    s_mul_i32 s5, s5, {WDW}
    s_add_u32 s5, s5, {wd_off(RED_SLOT)}
    v_add_u32 v{vRR}, s5, v{vL16}
    v_and_b32 v101, 1, v98
    v_lshlrev_b32 v102, 2, v101
    v_xor_b32 v102, v7, v102
    v_lshlrev_b32 v102, 4, v102
    v_lshl_add_u32 v{vDD}, v6, 10, v102
    s_mul_i32 s6, s{sW}, {448*1024}
    s_lshl_b32 s5, s{sCT}, 7
    s_add_u32 s6, s6, s5
    v_add_u32 v{vDD}, s6, v{vDD}
    v_add_u32 v{vDD+1}, {8192-1024}, v{vDD}
    v_add_u32 v{vDD+2}, {2*(8192-1024)}, v{vDD}
    v_add_u32 v{vDD+3}, {3*(8192-1024)}, v{vDD}
    {lead if LEAD else rot}
    v_lshl_add_u32 v{vDA}, v4, 9, v100
    v_lshl_add_u32 v{vDA}, v101, 5, v{vDA}
    v_lshl_add_u32 v{vDA}, v{vFK}, 3, v{vDA}
    v_and_b32 v102, 1, v6
    v_lshl_add_u32 v{vDA}, v102, 6, v{vDA}
    s_lshl_b32 s{sSP}, s{sW}, 12
    s_add_u32 s{sSP}, s{sSP}, {3*SLOT}
    v_add_u32 v{vDS}, s{sSP}, v{vDA}
    v_xor_b32 v{vDS+1}, 64, v{vDS}
    v_add_u32 v{vDA}, s{sDM}, v{vDA}
    v_xor_b32 v{vDA+1}, 64, v{vDA}
    v_lshlrev_b32 v{vFK}, 7, v6
    {table}
    s_lshl_b32 s5, s{sCT}, 7
    s_and_b32 s6, s{sCT}, {0 if SPLIT or 'nosto' in OPT else 1}
    s_lshl_b32 s7, s{sT2}, 1
    s_add_u32 s7, s7, s6
    s_lshl_b32 s{sXO}, s7, 15
    s_add_u32 s{sXO}, s{sXO}, s5
    s_xor_b32 s{sXO+1}, s{sXO}, 0x8000
    s_lshl_b32 s{sSO}, s7, 8
    s_add_u32 s{sSO}, s{sSO}, {WS_ST}
    s_xor_b32 s{sSO+1}, s{sSO}, 0x100
    s_mul_i32 s4, s{sW}, {28*1024}
    s_mul_i32 s{sHL}, s7, {112*1024}
    s_add_u32 s{sHL}, s{sHL}, s4
    s_xor_b32 s7, s7, 1
    s_mul_i32 s{sHL+1}, s7, {112*1024}
    s_add_u32 s{sHL+1}, s{sHL+1}, s4
    s_lshl_b32 s4, s{sW}, 3
    v_add_u32 v102, s4, v6
    v_lshlrev_b32 v{vSO}, 3, v102
    v_lshlrev_b32 v103, 4, v7
    v_lshl_add_u32 v{vXO}, v102, 10, v103
    v_mul_u32_u24 v{vYD}, {KVP_COPY}, v6
    v_add_u32 v{vYD}, v{vYD}, v103
    s_lshl_b32 s4, s{sCT}, 2
    s_add_u32 s4, s4, s{sW}
    s_mul_i32 s{sYD}, s4, {16*KVP_COPY}
    s_lshl_b32 s7, s{sT2}, 7
    s_add_u32 s{sYD}, s{sYD}, s7
    s_add_u32 s{sYD}, s{sYD}, {WS_Y}
    s_lshl_b32 s{sPH}, s{sW}, 7
    s_lshl_b32 s7, s7, 2
    s_add_u32 s{sPH}, s{sPH}, s7
    s_add_u32 s{sPH}, s{sPH}, {FL_H}
    s_lshl_b32 s4, s4, 7
    s_lshr_b32 s7, s{sT2}, 4
    s_lshl_b32 s7, s7, 12
    s_add_u32 s4, s4, s7
    s_add_u32 s{sPY}, s4, {FL_Y}
    s_mul_i32 s{sYM}, s{sW}, {2*YP}
    s_add_u32 s{sYM}, s{sYM}, {YB}
    v_mul_u32_u24 v103, {YP}, v7
    v_and_b32 v101, 6, v6
    v_add_u32 v103, v103, v101
    v_and_b32 v101, 1, v6
    v_lshl_add_u32 v103, v101, 3, v103
    s_lshl_b32 s4, s{sW}, 4
    v_add_u32 v103, s4, v103
    s_lshl_b32 s6, s6, 6
    s_add_u32 s4, s6, {YB}
    v_add_u32 v{vYG}, s4, v103
    s_sub_u32 s4, {YB + 64}, s6
    v_add_u32 v{vYG+1}, s4, v103
    v_xor_b32 v103, v4, v7
    v_lshlrev_b32 v103, 4, v103
    v_lshl_add_u32 v103, v5, 8, v103
    v_add_u32 v{vPW}, s{sDM}, v103
    v_xor_b32 v{vPW+1}, 32, v{vPW}
    v_xor_b32 v{vPW+2}, 64, v{vPW}
    v_xor_b32 v{vPW+3}, 96, v{vPW}
    v_lshlrev_b32 v103, 1, v7
    v_xor_b32 v103, v103, v6
    v_lshlrev_b32 v103, 4, v103
    v_lshl_add_u32 v{vPR}, v102, 8, v103
    v_add_u32 v{vPR}, {PART[0]}, v{vPR}
    v_xor_b32 v{vPR+1}, 16, v{vPR}
    """)
    return [x.replace(" ; ", "\n") for x in r]


def param_loads():
    return [VM(f"global_load_ushort v{vDV}, v{vDV}, s[{pSD}:{pSD+1}]"), VM(f"buffer_load_ushort v{vH0}, v{vH0}, {srd(rSK)}, 0 offen")]


SPARE = 3 * SLOT
NPRE = int(OPT.get("npre", 1))
NB = int(OPT.get("nb", 3))
GPLAN = OPT.get("gplan", "--------")
NGE = GPLAN.count("w")
G_AG, G_G1 = NPRE + 3, NPRE + 3 + NB
G_LD = G_G1 + NGE
EARLY_SVC = int(OPT.get("esvc", 0))
assert G_AG <= 6
RED_SLOT = (8 - NPRE) % 6
PART = [SLOT, 0] if RED_SLOT < 3 else [0, SLOT]
WD_SLOT = {g: ("S" if g < NPRE else (g - NPRE) % 6) for g in range(14)}


def wd_off(slot):
    return 0 if slot == "S" else (slot // 3) * SLOT + (slot % 3) * 4096


def wd_dma(g, slot=None, pad=False):
    slot = WD_SLOT[g] if slot is None else slot
    r = []
    for j in range(4):
        it = [VM(f"buffer_load_dwordx4 v{vDD+j}, {srd(rWD)}, s{GT[g]} offen offset:{j*1024} lds", f"wd{g}" if j == 3 else None)]
        if j == 0:
            it = [f"s_mov_b32 m0, s{sSP}" if slot == "S" else f"s_add_u32 m0, s{sDM}, {wd_off(slot)}"] + ["s_nop 0"] * pad + it
        if j == 3:
            it = [ATOM((it[0], f"s_lshr_b32 s{GT[g]}, s{GT[g]}, 4"))]
        r.append(it)
    return r


def wd_reads(g, slot=None):
    slot = WD_SLOT[g] if slot is None else slot
    va = vDS if slot == "S" else vDA
    r = []
    for k in range(2):
        for u in range(2):
            for e in range(2):
                last = k == 1 and u == 1 and e == 1
                r.append(DS(f"ds_read_b64_tr_b16 {ar((2*g+k)*8 + u*4 + 2*e, 2)}, v{va+u} offset:{wd_off(slot) + k*1024 + e*2048}",
                            f"wr{g}" if last else None))
    return r


def conv_dma(pad=True):
    out = []
    for m0, rs, so, sc, n in ((f"s{sUM}, {3*US}", rWS, sKVO, SC, 4), (f"s{sUM}, {2*US - 4}", rWS, sKVO, SC, 4),
                              (f"s{sHM}, 0", rSK, sSKO, "", 2), (f"s{sEM}, 0", rSK, 89, "", 2)):
        r = []
        for j in range(n):
            it = [VM(f"buffer_load_dwordx4 v{vL16}, {srd(rs)}, s{so} offen offset:{j*1024} {sc} lds", "cv_dma")]
            if j == 0:
                it = [f"s_add_u32 m0, {m0}"] + ["s_nop 0"] * pad + it
            r.append(it)
        out.append(r)
    return out[0] + out[1], out[2], out[3]


def conv_zero(z):
    return [DS(f"ds_write2st64_b32 v4, v{z}, v{z} offset0:0 offset1:1"),
            DS(f"ds_write2st64_b32 v5, v{z}, v{z} offset0:0 offset1:1"),
            DS(f"ds_write_b32 v{vZH}, v{vH0}", "cv_zero")]


def conv_zero_addr():
    return [f"v_add_u32 v4, {3*US + 4096}, v{vZU}", f"v_add_u32 v5, {2*US + 4092}, v{vZU}",
            f"v_mul_u32_u24 v{vH0}, s{sMH}, v{vH0}", f"v_add_u32 v0, 4, v{vLANE}", "v_min_u32 v0, 32, v0",
            "v_lshrrev_b32 v0, 5, v0", f"v_mul_u32_u24 v{vH0}, v0, v{vH0}", f"v_lshlrev_b32 v{vH0}, 16, v{vH0}"]


CUF = [("v", 128), ("a", 160)]
CHF = [("v", 160), ("a", 192)]
CACC = 64


def conv_reads(m):
    p = m & 1
    u = [DS(f"ds_read_b128 {rg(CUF[p], 4*j, 4)}, v{vUA} offset:{64*m + 512*(7-j)}", f"cu{j}") for j in range(8)]
    h = [DS(f"ds_read_b128 {rg(CHF[p], 4*j, 4)}, v{vHA} offset:{64*m + 512*j}", f"cf{m}" if j == 7 else f"ch{j}") for j in range(8)]
    return h[:1] + u + h[1:]


NHEAD = int(OPT.get("nhead", 5))


def g1_dma_setup():
    r = lines(f"""
    s_and_b32 s6, s{sIDX}, 3
    s_add_u32 s{sRB}, s{sRB}, s6
    s_mul_i32 s{sFS}, s5, 7
    s_lshr_b32 s6, s{sIDX}, 2
    s_add_u32 s{sFS}, s{sFS}, s6
    v_lshrrev_b32 v98, 4, v{vLANE}
    s_lshr_b32 s4, s{sW}, 1
    s_and_b32 s6, s{sW}, 1
    v_and_b32 v99, 1, v98
    v_lshlrev_b32 v99, 1, v99
    v_xor_b32 v99, v7, v99
    v_mul_u32_u24 v100, {F*2}, v6
    v_lshl_add_u32 v99, v99, 4, v100
    s_mul_i32 s6, s6, {32*F*2}
    s_lshl_b32 s7, s{sFS}, 7
    s_add_u32 s6, s6, s7
    v_add_u32 v{vWD}, s6, v99
    v_xor_b32 v99, 64, v{vWD}
    v_add_u32 v{vWD+1}, {8*F*2 - 1024}, v99
    v_add_u32 v{vWD+2}, {2*(8*F*2 - 1024)}, v{vWD}
    v_add_u32 v{vWD+3}, {3*(8*F*2 - 1024)}, v99
    s_lshl_b32 s{sG1S}, s{sRB}, 2
    s_add_u32 s{sG1S}, s{sG1S}, s{sW}
    s_lshl_b32 s7, s{sG1S}, 16
    v_xor_b32 v99, v7, v98
    v_lshlrev_b32 v99, 4, v99
    v_lshl_add_u32 v99, v6, 10, v99
    v_add_u32 v{vXD}, s7, v99
    v_xor_b32 v99, 64, v{vXD}
    """)
    for j in range(1, 8):
        r.append(f"v_add_u32 v{vXD+j}, {j*8192 - (j%4)*1024}, v{99 if j & 1 else vXD}")
    xr = OPT.get("xr", "1")
    if xr == "1":
        rot = f"s_lshl_b32 s{sXK}, s{sRB}, 7"
    elif xr == "2":
        rot = f"s_lshl_b32 s6, s{sFS}, 2\ns_add_u32 s6, s6, s{sRB}\ns_and_b32 s6, s6, 7\ns_lshl_b32 s{sXK}, s6, 7"
    else:
        par = f"s_xor_b32 s7, s{sXCD}, s5" if xr == "4" else f"s_mov_b32 s7, s{sXCD}"
        rot = (f"s_add_u32 s6, s{sFS}, s{sRB}\ns_and_b32 s6, s6, 3\ns_lshl_b32 s6, s6, 1\n{par}\ns_and_b32 s7, s7, 1\n"
               f"s_add_u32 s6, s6, s7\ns_lshl_b32 s{sXK}, s6, 7")
    r += lines(f"""
    s_lshl_b32 s{sXM}, s{sW}, 13
    s_lshl_b32 s{sWM}, s{sW}, 12
    s_add_u32 s{sWM}, s{sWM}, 32768
    {rot}
    s_mov_b32 s{rW+2}, {W_BYTES}
    s_cmp_eq_u32 s4, 0
    s_waitcnt lgkmcnt(0)
    s_cselect_b32 s{rW}, s36, s38
    s_cselect_b32 s{rW+1}, s37, s39
    """)
    return r


def g1_setup():
    r = lines(f"""
    v_lshrrev_b32 v102, 4, v{vLANE}
    v_and_b32 v103, 15, v{vLANE}
    v_bfe_u32 v98, v{vLANE}, 1, 3
    v_xor_b32 v98, v102, v98
    v_lshlrev_b32 v98, 4, v98
    v_lshl_add_u32 v98, v103, 7, v98
    s_lshl_b32 s4, s{sW}, 13
    v_add_u32 v{vXB}, s4, v98
    v_xor_b32 v{vXB+1}, 64, v{vXB}
    v_add_u32 v{vXA}, {2*SLOT}, v{vXB}
    v_add_u32 v{vXA+1}, {2*SLOT}, v{vXB+1}
    v_and_b32 v99, 3, v6
    v_bfe_u32 v100, v{vLANE}, 2, 2
    v_lshlrev_b32 v98, 10, v102
    v_lshl_add_u32 v98, v100, 7, v98
    v_and_b32 v101, 3, v{vLANE}
    v_lshl_add_u32 v98, v101, 3, v98
    v_lshl_add_u32 v98, v99, 5, v98
    v_add_u32 v{vWB}, 32768, v98
    v_xor_b32 v{vWB+1}, 32, v{vWB}
    v_xor_b32 v{vWB+2}, 64, v{vWB}
    v_xor_b32 v{vWB+3}, 96, v{vWB}
    v_add_u32 v{vWA}, {2*SLOT}, v{vWB}
    v_add_u32 v{vWA+1}, {2*SLOT}, v{vWB+1}
    v_add_u32 v{vWA+2}, {2*SLOT}, v{vWB+2}
    v_add_u32 v{vWA+3}, {2*SLOT}, v{vWB+3}
    s_lshl_b32 s4, s{sW}, 5
    v_xor_b32 v{vCL}, s4, v{vWB}
    s_lshl_b32 s4, s{sG1S}, 2
    s_lshr_b32 s5, s{sXCD}, 1
    s_add_u32 s4, s4, s5
    s_lshl_b32 s4, s4, 7
    s_add_u32 s{sF1}, s4, {FL_H}
    s_lshl_b32 s5, s{sFS}, 2
    s_mul_i32 s4, s{sG1S}, 224
    s_add_u32 s4, s4, s5
    s_lshl_b32 s{sHS}, s4, 10
    s_add_u32 s{sHS+1}, s{sHS}, {112*1024}
    v_lshlrev_b32 v{vHO}, 4, v103
    v_lshl_add_u32 v{vHO}, v102, 9, v{vHO}
    s_lshl_b32 s{sG1S}, s{sG1S}, 9
    s_add_u32 s{sG1S}, s{sG1S}, {WS_ST}
    v_lshlrev_b32 v{vG1S}, 3, v103
    v_lshlrev_b32 v{vCA}, 31, v4
    v_lshl_add_u32 v{vCA}, v102, 11, v{vCA}
    v_add_u32 v{vCA}, v{vCA}, v{vG1S}
    s_lshl_b32 s6, s{sFS}, 12
    s_add_u32 s6, s6, {WS_CS}
    s_lshl_b32 s4, s{sW}, 10
    s_add_u32 s{sCS}, s6, s4
    s_add_u32 s{sCS+2}, s4, {CSL}
    s_lshl_b32 s4, s{sW}, 9
    s_add_u32 s6, s6, s4
    s_lshr_b32 s4, s{sRB}, 1
    s_lshl_b32 s4, s4, 7
    s_and_b32 s5, s{sRB}, 1
    s_lshl_b32 s5, s5, 2
    s_add_u32 s4, s4, s5
    s_add_u32 s{sCS+1}, s6, s4
    """)
    return r


def g1_acc(j, t, mat):
    return ACC1 + (2 * j + (t >> 1)) * 16 + 8 * mat + 4 * (t & 1)


def g1_reads(step):
    st, k2, fr = step >> 1, step & 1, FR[step & 1]
    slot = (st + 1) % 3
    xa, wa, o = (vXA, vWA, 0) if slot == 2 else (vXB, vWB, slot * SLOT)
    x = [DS(f"ds_read_b128 {rg(fr, 4*j, 4)}, v{xa+k2} offset:{o + j*2048}") for j in range(4)]
    w = [DS(f"ds_read_b64_tr_b16 {rg(fr, 16 + 4*q + 2*e, 2)}, v{wa+(q>>1)} offset:{o + (q&1)*8192 + k2*4096 + e*512}", f"g1f{step}")
         for q in range(8) for e in range(2)]
    return w[:2] + x + w[2:]


def g1_mfmas(step):
    fr, m = FR[step & 1], []
    for q in range(8):
        for j in range(4):
            acc = vr(g1_acc(j, q >> 1, q & 1), 4)
            m.append(f"v_mfma_f32_16x16x32_bf16 {acc}, {rg(fr, 16 + 4*q, 4)}, {rg(fr, 4*j, 4)}, {'0' if step == 0 else acc}")
    return m


def g1_dmas(st):
    slot = ((st + 1) % 3) * SLOT
    d = []
    for j in range(4):
        pre = [f"s_add_u32 m0, s{sWM}, {slot}", f"s_mul_i32 s{sWK}, s{sXK}, {F}"] if j == 0 else []
        post = [f"s_add_u32 m0, s{sXM}, {slot}"] if j == 3 else []
        d.append(pre + [VM(f"buffer_load_dwordx4 v{vWD+j}, {srd(rW)}, s{sWK} offen offset:{j*1024} lds", f"w{st}" if j == 3 else None)] + post)
    for j in range(8):
        post = [f"s_add_u32 m0, s{sXM}, {slot + 4096}"] if j == 3 else []
        if j == 7:
            post = [f"s_add_u32 s{sXK}, s{sXK}, 128", f"s_and_b32 s{sXK}, s{sXK}, 1023"]
        d.append([VM(f"buffer_load_dwordx4 v{vXD+j}, {srd(rX)}, s{sXK} offen offset:{(j%4)*1024} lds", f"st{st}" if j == 7 else None)] + post)
    return d


def colsum():
    T, ONE, R = 128, 144, 148
    r = [f"v_mov_b32 v{ONE+j}, 0x3f803f80" for j in range(4)] + [WAIT("w0"), "s_barrier"]
    r += [DS(f"ds_read_b64_tr_b16 {vr(T+4*q+2*e, 2)}, v{vCL} offset:{SLOT + q*4096 + e*512}", "csr") for q in range(4) for e in range(2)]
    m = [WAIT("csr")]
    m += [f"v_mfma_f32_16x16x32_bf16 {vr(R+4*(q>>1),4)}, {vr(ONE,4)}, {vr(T+4*q,4)}, {vr(R+4*(q>>1),4) if q & 1 else '0'}" for q in range(4)]
    f = lines(f"""
    v_cmp_gt_u32 s[4:5], 16, v{vLANE}
    v_add_u32 v{vCL}, {CSL}, v{vL8}
    s_nop 0
    v_cndmask_b32 v{R}, v{R+4}, v{R}, s[4:5]
    v_cvt_pk_bf16_f32 v{R+1}, v{R}, v{R}
    v_and_b32 v{R+1}, 0xffff0000, v{R+1}
    v_sub_f32 v{R+1}, v{R}, v{R+1}
    v_cvt_pk_bf16_f32 v43, v{R}, v{R+1}
    """) + [VM(f"buffer_store_dword v43, v{vCA}, {srd(rWS)}, s{sCS+1} offen {SC}")]
    return r, m, f


def gemm_role(a):
    a.put(g1_dma_setup())
    a.put(stamp(0))
    d0, d1 = g1_dmas(0), g1_dmas(1)
    n_first = int(OPT.get("nfirst", 5))
    n_late = int(OPT.get("nlate", 0))
    a.put(stats_loads() + [x + ["s_nop 0"] if isinstance(x[-1], str) else x for x in d0[:n_first]])
    DEFER = OPT.get("defer", "end")
    su = g1_setup() + setup_common(None if DEFER == "no" else "early")
    cut = int(OPT.get("sucut", 190))
    a.put(su[:cut])
    a.put(stamp(1))
    rest = d0[n_first:] + d1[:12 - n_late]
    sc, (c_r, c_m, c_f) = stats_compute(), colsum()
    w0, w1 = int(OPT.get("walk0", 0)), int(OPT.get("walk1", 34))
    fill = su[cut:] + sc[:w0] + [visit("A")] + sc[w0:w1] + [visit("B")] + sc[w1:50] + [c_r] + sc[50:66] + [c_m] + sc[66:-1] + c_f[:-1]
    init_st = c_f[-1:] + sc[-1:]
    SIG = int(OPT.get("sig", 3))
    if SIG == 1:
        fill += init_st
    a.weave(rest, spread(fill, len(rest), 0, len(rest) - 1))
    if WALK:
        a("s_branch L_main\nL_return:\ns_setpc_b64 s[6:7]\n.p2align 12\nL_main:")
    a.put([WAIT("st0"), "s_barrier", stamp(2)])
    a.put(g1_reads(0))

    cu, co, ce = conv_dma(pad=False)
    EBAR = int(OPT.get("ebar", 11)) if NPRE else 0
    CF = 224
    handed = [[VM(f"buffer_load_dwordx2 {vr(vMS+2*j,2)}, v{vG1S}, {srd(rWS)}, s{sG1S} offen offset:{128*j} {SC}", "g1st") for j in range(4)] +
              [f"s_mov_b32 m0, s{sCS+2}", VM(f"buffer_load_dwordx4 v{vL16}, {srd(rWS)}, s{sCS} offen {SC} lds", "csf")]]
    queue = [(x, 0, None) for x in d1[12 - n_late:]] + ([(init_st, 0, None)] if SIG == 3 else [])

    def push(items, earliest, g=None):
        queue.extend((x, earliest, g if i == len(items) - 1 else None) for i, x in enumerate(items))

    prepos = [int(c) for c in OPT.get("prepos", "5")]
    assert len(prepos) == NPRE
    for k in range(1, 8):
        if k > 1:
            push(g1_dmas(k), max(0, 2 * k - 5))
        if SIG > 3 and k == (SIG - 1) // 2:
            push([init_st], 0)
        g = prepos.index(k) if k in prepos else -1
        if 0 <= g < NPRE:
            w = wd_dma(g)
            if g:
                w[0] = [WAIT(f"wr{g-1}")] + w[0]
            push(w, 0, g)
            if g == 0:
                push([[f"v_lshrrev_b32 v47, 2, v{vLANE}", "v_lshlrev_b32 v47, 7, v47",
                       VM(f"buffer_load_dword v47, v47, {srd(rSK)}, s{sSKO} offen")] + param_loads()], 0)
        if k == int(OPT.get("epos", 7)) and EBAR < 13:
            push(ce + ([] if NPRE else [param_loads()]), EBAR)
    for g in range(NPRE, G_G1 + 1):
        if g == NPRE + int(OPT.get("hpos", 3)):
            push(handed + (ce if EBAR == 13 else []), 13)
        if g < G_G1:
            push(wd_dma(g), 11 if g < NPRE + 3 else 13, g)
    push(co, 15)
    push(cu, 16)
    plan = [int(c, 16) for c in OPT.get("plan", "8866666777777777f")]
    lag = int(OPT.get("rlag", 8))
    for i, (_, _, g) in enumerate(list(queue)):
        if g is not None and g < NPRE + 3:
            for k in range(4):
                pos = min(i + lag, len(queue) - 4) + k
                it, e, g2 = queue[pos]
                queue[pos] = ([WAIT(f"wd{g}")] * (k == 0) + wd_reads(g)[2*k:2*k+2] + it, e, g2)

    def take(step):
        items = []
        while queue and len(items) < plan[step] and queue[0][1] <= step:
            items.append(queue.pop(0)[0])
        return items

    for step in range(16):
        st = step >> 1
        if step >= 11:
            a.put(stamp({11: 5, 12: 6, 13: 7, 14: 9, 15: 12}[step], "g7"))
        if step == 15:
            a.put([WAIT("g1f15", "csf"), stamp(13, "g7"), "s_barrier", stamp(10, "g7")])
        elif step & 1:
            wt = [f"st{st+1}", f"g1f{step}"] + ([f"wr{NPRE-1}"] if step == EBAR and NPRE else [])
            a.put([WAIT(*wt), "s_barrier", stamp([3, 4, 5, 6, 7, 8, 9][st], True)])
        else:
            a.put(WAIT(f"g1f{step}"))
        if step == 13:
            a.put([scheck(S_INIT, [82, 83], 0x80), stamp(8, "g7")])
        if step == 13 and NPRE:
            assert f"wr{NPRE-1}" in a.tags
        streams = []
        if step < 15:
            dummy = [DS(f"ds_read_b32 v0, v{vL8}")] if SIG <= step <= 9 else []
            streams.append((g1_reads(step + 1) + dummy, 0, 26))
        else:
            cr = [DS(f"ds_read_b64 {ar(CF+2*q,2)}, v{vCL} offset:{((q&1)*4 + (q>>1))*512}") for q in range(8)]
            streams.append((cr, 0, 26))
            c = [WAIT("g1st")]
            for j in range(4):
                c += [f"v_cvt_pk_bf16_f32 v{vBM+2*j}, -v{vMS+2*j}, -v{vMS+2*j}", f"v_mov_b32 v{vBM+2*j+1}, v{vBM+2*j}"]
            streams.append((c + conv_zero_addr() + ["v_mov_b32 v6, 0"], 8, 28))
        mine = take(step)
        streams.append((mine, 0, 31))
        if step == SIG:
            skip = a.label("sig")
            streams.append((["s_and_b32 s83, s2, 1", "s_lshl_b32 s83, s83, 7", "s_mov_b32 s79, 1",
                             ATOM((f"s_cmp_lg_u32 s{sW}, 0", f"s_cbranch_scc1 {skip}", f"s_atomic_add s79, s[{rDBG}:{rDBG+1}], s83", f"{skip}:"))], 0, 6))
        if step == 12:
            streams.append((S_INIT, 0, 2))
        if step == 15:
            streams.append((S_KV, int(OPT.get("pkv", 2)), int(OPT.get("pkv", 2)) + 8))
        chunk = spread(setup_common("late"), 16, int(OPT.get("df0", 2)), int(OPT.get("df1", 11)))[step]
        if DEFER == "sh":
            streams.append((chunk, 0, 30))
        fl, over = schedule(32, streams, 8, 2 if len(flat(mine)) > 14 else 1)
        if DEFER == "end":
            fl[15] = fl[15] + chunk
        if over:
            print(f"step {step}: {over} left over", file=sys.stderr)
        a.weave(g1_mfmas(step), fl)
        if "x_idle" in OPT:
            for seg in OPT["x_idle"].split(","):
                lo, hi, amt = (int(v) for v in seg.split(":"))
                if lo <= step <= hi:
                    a(f"s_sleep {amt}")
    a.put([stamp(11, "g7"), scheck(S_KV, KVR, 1), "s_barrier", stamp(3), stamp(12, True)])
    c = []
    for j in range(4):
        den, c1 = vMS + 2 * j + 1, vGC + 2 * j
        c += lines(f"""
        v_rcp_f32 v{c1}, v{den}
        v_mul_f32 v{vI2+j}, v{den}, v{den}
        v_mul_f32 v{c1+1}, v{c1}, v{c1}
        v_mul_f32 v{c1+1}, v{c1+1}, v{c1}
        v_mul_f32 v{c1}, {hx(f2u(C1))}, v{c1}
        v_mul_f32 v{c1+1}, {hx(f2u(C2))}, v{c1+1}
        """)
    ms = []
    for j in range(4):
        for q in range(8):
            acc = vr(g1_acc(j, q >> 1, q & 1), 4)
            ms.append(f"v_mfma_f32_16x16x16_bf16 {acc}, {ar(CF+2*q,2)}, {vr(vBM+2*j,2)}, {acc}")
    last = take(16)
    fl, over = schedule(32, [(conv_zero(6), 0, 28), (last, 0, 31), (c, 0, 28)], 8, 2)
    assert not queue
    a.weave(ms, fl)
    a.put(stamp(4))
    plan = GPLAN
    extra = {"-": [[], [], [], []]}
    for n in range(8):
        jt, tp = n >> 1, n & 1
        c1, acc, T = vGC + 2 * jt, ACC1 + n * 16, 96 + 8 * tp
        i2, hi = vr(vI2 + (jt & 2), 2), jt & 1
        ex = wd_dma(G_G1 + plan[:n].count("w"), None, True) if plan[n] == "w" else extra[plan[n]]
        ex = [list(flat([list(y) if isinstance(y, ATOM) else y for y in x])) for x in ex]
        if n == 7:
            ex = [[], [], [], [WAIT("cv_dma"), "s_barrier"] + conv_reads(0)[:NHEAD]]
        E = range(0, 8, 2)
        if n == (0 if plan[0] == "w" else 1):
            a.put(WAIT("allds"))
        a.put([f"v_pk_mul_f32 {vr(T+j,2)}, {vr(acc+j,2)}, {vr(acc+j,2)}" for j in E])
        a.put([f"v_pk_fma_f32 {vr(T+j,2)}, {vr(T+j,2)}, {vr(c1,2)}, {vr(c1,2)} op_sel:[0,1,0] op_sel_hi:[1,1,0]" for j in E])
        a.put([f"v_pk_mul_f32 {vr(T+j,2)}, {vr(T+j,2)}, {vr(acc+j,2)}" for j in E] + ex[0])
        a.put([f"v_exp_f32 v{T+j}, v{T+j}" for j in range(8)] + ex[1])
        a.put([f"v_pk_mul_f32 {vr(acc+j,2)}, {vr(acc+j,2)}, {vr(acc+8+j,2)}" for j in E])
        a.put([f"v_pk_fma_f32 {vr(T+j,2)}, {vr(T+j,2)}, {i2}, {i2} op_sel:[0,{hi},{hi}] op_sel_hi:[1,{hi},{hi}]" for j in E] + ex[2])
        a.put([f"v_rcp_f32 v{T+j}, v{T+j}" for j in range(8)] + ex[3])
        a.put([f"v_pk_mul_f32 {vr(acc+j,2)}, {vr(acc+j,2)}, {vr(T+j,2)}" for j in E])
        a.put([f"v_cvt_pk_bf16_f32 v{acc+8+j}, v{acc+2*j}, v{acc+2*j+1}" for j in range(4)])
        a.put(VM(f"buffer_store_dwordx4 {vr(acc+8,4)}, v{vHO}, {srd(rWS)}, s{sHS+(jt>>1)} offen offset:{tp*2048 + (jt&1)*256} {SC}", f"h_st{n}"))
        if SPLIT and n == int(OPT.get("pub1", 7)):
            a.put([WAIT("h_st3")] + publish(sF1))
        a.put(stamp([5, 6, 7, 8, 9, 12, 13, 11][n], "ge"))

    a.put(stamp(5))


def service_role(a):
    TAPB = 8 * KVT
    a.put(lines(f"""
    s_sub_u32 s{sFS}, s2, 224
    s_lshl_b32 s6, s{sFS}, 16
    s_lshr_b32 s7, s{sW}, 1
    s_and_b32 s4, s{sW}, 1
    v_lshlrev_b32 v8, 10, v6
    v_lshl_add_u32 v8, v7, 4, v8
    v_add_u32 v8, s6, v8
    v_subrev_u32 v12, 8192, v8
    s_mul_i32 s5, s4, 3
    s_add_u32 s5, s5, 5
    s_cmp_eq_u32 s{sFS}, 0
    s_cselect_b32 s5, 8, s5
    v_cmp_le_u32 vcc, s5, v6
    v_add_u32 v9, {8192 - KVP}, v8
    v_bfrev_b32 v29, 1
    v_cndmask_b32 v12, v29, v12, vcc
    v_add_u32 v10, {2*(8192 - KVP)}, v8
    s_mul_i32 s{sXM}, s{sW}, {VB}
    s_lshl_b32 s{sXK}, s7, 7
    s_mov_b32 s{rW+2}, {X_BYTES}
    s_lshl_b32 s5, s{sW}, 10
    v_add_u32 v13, s5, v{vL16}
    s_add_u32 m0, s5, {TAPB}
    s_cmp_eq_u32 s4, 0
    s_waitcnt lgkmcnt(0)
    s_cselect_b32 s{rW}, s{pKV}, s{pKV+2}
    s_cselect_b32 s{rW+1}, s{pKV+1}, s{pKV+3}
    """))
    a.put(stamp(0))
    nt = OPT.get("kvpol", "nt").replace("none", "")

    def tile_dma(tag):
        r = [[f"s_mov_b32 m0, s{sXM}", f"s_add_u32 s{sWM}, s{sXK}, {3*8192}",
              VM(f"buffer_load_dwordx4 v12, {srd(rW)}, s{sXK} offen lds")]]
        for j in range(8):
            q, pre = j % 3, []
            so = sXK if j < 3 else sWM
            if q == 0:
                pre = [f"s_add_u32 m0, s{sXM}, {(j+1)*KVP}", f"s_add_u32 s{sWM}, s{sWM}, {3*8192}" if j == 6 else "s_nop 0"]
            r.append(pre + [VM(f"buffer_load_dwordx4 v{8+q}, {srd(rW)}, s{so} offen offset:{q*KVP} {nt} lds", tag)])
        r[-1] += [f"s_add_u32 s{sXM}, s{sXM}, {2*KVT}", f"s_add_u32 s{sXK}, s{sXK}, 256"]
        return r

    if "x_nold" in OPT:
        a("v_mov_b32 v8, v29\nv_mov_b32 v9, v29\nv_mov_b32 v10, v29\nv_mov_b32 v12, v29")
    d0, n0 = tile_dma("kv0"), 5
    a.put(stats_loads() + [VM(f"global_load_lds_dwordx4 v13, s[{pSH}:{pSH+1}]")] + d0[:n0])
    a.put(lines(f"""
    s_lshl_b32 s5, s{sW}, 3
    v_add_u32 v11, s5, v6
    v_lshlrev_b32 v14, 5, v11
    v_add_u32 v14, {TAPB}, v14
    v_sub_u32 v13, 7, v7
    v_mul_u32_u24 v13, {KVP}, v13
    v_lshl_add_u32 v13, v6, 3, v13
    s_mul_i32 s5, s7, {KVT}
    s_lshl_b32 s4, s4, 6
    s_add_u32 s5, s5, s4
    v_add_u32 v13, s5, v13
    v_mul_u32_u24 v15, {4*KVP_COPY}, v11
    v_lshl_add_u32 v15, v7, 4, v15
    s_lshl_b32 s5, s{sFS}, 7
    s_sub_u32 s{sHS}, {WS_KV + 4096 - 128}, s5
    s_lshl_b32 s4, s{sW}, 12
    s_add_u32 s4, s4, s5
    s_add_u32 s{sF1}, s4, {FL_K}
    """))
    a.put(setup_common(0) + [visit("S")])
    d01 = d0[n0:] + tile_dma("kv1")
    a.weave(d01, spread(stats_compute(), len(d01), 0, int(OPT.get("svs", 6))))
    a.put(stamp(2))
    RAW, TR, TP, UNP, U, OUT = 64, 16, 32, 128, 172, 192

    def tile_reads():
        r = [DS(f"ds_read_b128 {vr(TR+4*h,4)}, v14 offset:{16*h}") for h in range(2)]
        for jj in range(19):
            rho, base = (5 + jj, KB) if jj < 11 else (jj - 3, VB)
            r.append(DS(f"ds_read_b64 {vr(RAW+2*jj,2)}, v13 offset:{base + (rho >> 3) * KVP + (rho & 7) * 128}"))
        return r + [f"v_add_u32 v13, {2*KVT}, v13", "v_add_u32 v14, 1024, v14"]

    def pair(h):
        r = []
        for j in range(10):
            for ch in range(2):
                r.append(f"v_perm_b32 v{UNP+2*j+ch}, v{RAW+2*j+h}, v{RAW+2*(j+1)+h}, s{80+ch}")
        for j in range(11, 19):
            r += [f"v_lshlrev_b32 v{UNP+2*j}, 16, v{RAW+2*j+h}", f"v_and_b32 v{UNP+2*j+1}, s83, v{RAW+2*j+h}"]
        if h:
            r += [f"v_pk_mov_b32 {vr(TP+2*ch,2)}, {vr(TR+4+2*ch,2)}, {vr(TR+4+2*ch,2)} op_sel:[0,1]" for ch in range(2)]
        tp = TP if h else TR
        m = [f"v_dot2_f32_bf16 v{U+2*jj+ch}, v{UNP+2*jj+ch}, v{tp+2*ch+1}, 0" for jj in range(8) for ch in range(2)]
        m += [f"v_dot2_f32_bf16 v{U+2*jj+ch}, v{UNP+2*(jj+2)+ch}, v{tp+2*ch}, v{U+2*jj+ch}" for jj in range(8) for ch in range(2)]
        m += [f"v_pk_mul_f32 {vr(U+2*jj,2)}, {vr(U+2*jj,2)}, {vr(UNP+2*(11+jj),2)}" for jj in range(8)]
        st = []
        for ch in range(2):
            o = OUT + 8 * h + 4 * ch
            m += [f"v_cvt_pk_bf16_f32 v{o+e}, v{U+2*(7-2*e)+ch}, v{U+2*(6-2*e)+ch}" for e in range(4)]
            st.append([VM(f"buffer_store_dwordx4 {vr(o,4)}, v15, {srd(rWS)}, s{sHS} offen {SC}"),
                       f"s_add_u32 s{sHS}, s{sHS}, {KVP_COPY if 2*h+ch < 3 else 125*KVP_COPY}"])
        return r, m, st

    def mix(alu, mem):
        g = spread(alu, len(mem) + 1)
        a.put(g[0])
        a.weave(mem, g[1:])

    (u0, m0_, st0), (u1, m1_, st1) = pair(0), pair(1)
    pad = lines(f"""
    s_mov_b32 s83, 0xffff0000
    s_mov_b32 s80, 0x05040100
    s_mov_b32 s81, 0x07060302
    """)
    a.put([WAIT("kv0"), "s_barrier"] + tile_reads() + pad)
    for it in range(4):
        dm = tile_dma(f"kv{it+2}") if it < 2 else []
        if it == 2:
            dm = [[]]
            if "svt" in OPT:
                a.put(lines(f"""
                s_lshl_b32 s4, s{sFS}, 2
                s_add_u32 s4, s4, s{sW}
                s_mul_i32 s4, s4, {112*128}
                v_min_u32 v27, 55, v{vLANE}
                v_lshlrev_b32 v27, 7, v27
                s_add_u32 s5, s4, {56*128}
                """))
                dm += [[VM(f"buffer_load_dword v25, v27, {srd(rWD)}, s4 offen")], [], [], [], [],
                       [VM(f"buffer_load_dword v26, v27, {srd(rWD)}, s5 offen")]]
        a.put([WAIT("allds"), stamp([5, 7, 9, 13][it], "sv")])
        mix(u0 + m0_, (st1 if it else []) + dm[:5])
        mix(u1, st0 + dm[5:6])
        a.put(stamp([6, 8, 12, 10][it], "sv"))
        if it < 3:
            a.put([WAIT(f"kv{it+1}"), "s_barrier"] + tile_reads())
        if it == 0:
            a.put(init_signal())
        mix(m1_, dm[6:])
    a.put(st1)
    a.put(stamp(3))
    su = setup_common(1)
    a.put(su[:110] + [WAIT("allvm"), stamp(1)] + publish(sF1))
    a.put(S_INIT + su[110:] + ["s_barrier", stamp(4)])
    cu, co, ce = conv_dma()
    early = EARLY_SVC
    a.put(param_loads() + co + ce + [wd_dma(g, g, True) for g in range(early, 3)] + [visit("C")])
    a.put([wd_dma(g, None, True) for g in range(G_AG, min(G_LD, G_AG + 3))])
    for g in range(3):
        a.put([WAIT(f"wd{g}")] + wd_reads(g, g))
    a.put([scheck(S_INIT, [82, 83], 0x80)] + S_KV + [wd_dma(g, g - 3, True) for g in range(3, G_AG)])
    a.put([scheck(S_KV, KVR, 1), "s_barrier"])
    a.put(cu + conv_zero_addr() + ["v_mov_b32 v12, 0"] + conv_zero(12))
    for g in range(3, G_AG):
        a.put([WAIT(f"wd{g}")] + wd_reads(g, g - 3))
    a.put([WAIT("allds")] + [wd_dma(g, None, True) for g in range(G_AG + 3, G_LD)])
    a.put([WAIT("allvm", "allds"), "s_barrier"] + conv_reads(0)[:NHEAD])
    a.put(stamp(5))


HR, NH = 192, 16
HPOL = OPT.get("x_hpol", SC).replace("none", "")


def h_load(n):
    st, ks = divmod(n, 28)
    return [VM(f"buffer_load_dwordx4 {vr(HR + 4*(n % NH), 4)}, v{6+st}, {srd(rWS)}, s{GT[ks >> 1]} offen offset:{(ks%2)*1024} {HPOL}",
               f"h{n}", after=f"wd{ks >> 1}")]


def wd_conv_stream():
    items = [wd_dma(g) for g in range(G_LD, 14)]
    pos = {g: 4 * (g - G_LD) for g in range(G_LD, 14)}
    q = sum(items, [])
    pre = [[] for _ in range(len(q) + 1)]
    slot = 0
    for g in range(G_AG, 10):
        lo = pos[g] + 3 + 7 if g >= G_LD else 0
        assert g + 6 >= G_LD
        hi = pos[g + 6] - 1 if g + 6 < 14 else len(q)
        slot = min(max(slot, lo), max(hi - 1, 0))
        assert g < G_LD or slot > pos[g] + 3
        rd = wd_reads(g)
        pre[slot] += [WAIT(f"wd{g}")] + rd[:4]
        slot = min(slot + 1, max(hi, slot))
        pre[slot] += rd[4:]
        if g + 6 < 14:
            pre[pos[g + 6]].append(WAIT(f"wr{g}"))
        slot += 1
    return sum((pre[i] + (q[i] if i < len(q) else []) for i in range(len(q) + 1)), [])


def conv(a):
    ms = []
    for m in range(4):
        p = m & 1
        for aa in range(8):
            for b in range(8 - aa):
                acc = vr(CACC + 4 * (aa + b), 4)
                c = "0" if (m == 0 and aa == 0) else acc
                ms.append(f"v_mfma_f32_16x16x32_bf16 {acc}, {rg(CUF[p], 4*b, 4)}, {rg(CHF[p], 4*aa, 4)}, {c}")
    NP, NC = int(OPT.get("npub", 48)), int(OPT.get("nchk", 108))
    head = {0: [WAIT("cu1")], 2: [WAIT("cu3")], 8: [WAIT("ch1")], 15: [WAIT("cf0")]}
    head.update({b: [WAIT(f"cu{b}")] for b in (4, 5, 6, 7)})
    head.update({36 * m: [WAIT(f"cf{m}")] for m in (1, 2, 3)})
    head[NP] = head.get(NP, []) + [WAIT("h_st7"), stamp(6)] + publish(sF1, 0x100 if SPLIT else 1)
    head[NC] = head.get(NC, []) + [check(sPH, 7, 0xff), stamp(7)]
    rest = conv_reads(0)[NHEAD:]
    dummy = [DS(f"ds_read_b32 v0, v{vL8}")]
    dterm = [DS(f"ds_read_b128 {vr(96+4*j,4)}, v{vDT} offset:{(3-j)*512}", "dt") for j in range(4)]
    unp = [WAIT("dt"), f"v_lshlrev_b32 v{vDV}, 16, v{vDV}"]
    unp += [f"v_perm_b32 v{8+4*j+r}, v{96+4*j+3-r}, v{96+4*j+3-r}, v{vPS}" for j in range(4) for r in range(4)]
    streams = [(rest + conv_reads(1) + dummy, 0, len(rest) + 17), (conv_reads(2) + dummy + dummy, 36, 64), (conv_reads(3) + dummy, 72, 100),
               (wd_conv_stream(), int(OPT.get("wd0", 14)), int(OPT.get("wd1", 92))),
               (peek(sPH), NC - int(OPT.get("php", 34)), NC - int(OPT.get("php", 34)) + 1),
               CHAIN([([f"v_add_u32 v{6+p}, s{sHL+p}, v{vL16}" for p in range(2)], 28, 32), ([h_load(n) for n in range(NH - 1)], NC, 143)]), CHAIN([(dterm, 108, 113), (unp, 120, 140)])]
    fl, over = schedule(144, streams, 8, int(OPT.get("cmem", 2)))
    if over:
        print(f"conv: {over} left over", file=sys.stderr)
    a.weave([head.get(i, []) + [x] for i, x in enumerate(ms)], fl)
    a.put(stamp(8))


ACC2 = 128
XR, SR, XF, YV, PB = 32, 40, 8, 96, 64


def part_writes(p):
    return [DS(f"ds_write_b128 v{vPW+rq}, {vr(ACC2 + (p*2+u)*16 + 4*rq, 4)} offset:{PART[p] + u*128}", f"pw{p}")
            for u in range(2) for rq in range(4)]


def part_reads(p):
    pre = [f"v_add_u32 v{vPR+e}, {hx(PART[1] - PART[0])}, v{vPR+e}" for e in range(2)] if p else []
    return pre, [DS(f"ds_read_b128 {vr(PB + 8*w + 4*e, 4)}, v{vPR+e} offset:{w*WDW}", f"pr{p}") for w in range(4) for e in range(2)]


XN = 24


def gate_first():
    b, r = PB, []
    for o in (8, 16, 24):
        r += [f"v_add_f32 v{b+j}, v{b+j}, v{b+o+j}" for j in range(8)]
    r += [f"v_mul_f32 v{b+8+j}, {hx(f2u(-1.4426950408889634))}, v{b+j}" for j in range(8)]
    r += [f"v_exp_f32 v{b+8+j}, v{b+8+j}" for j in range(8)]
    r += [f"v_mul_f32 v{XN+j}, v{XN+j}, v{b+j}" for j in range(8)]
    r += [f"v_add_f32 v{b+8+j}, 1.0, v{b+8+j}" for j in range(8)]
    r += [f"v_rcp_f32 v{b+8+j}, v{b+8+j}" for j in range(8)]
    r += [f"v_mul_f32 v{XN+j}, v{XN+j}, v{b+8+j}" for j in range(8)]
    return r


def out_store(p, src, t=44):
    return [f"v_cvt_pk_bf16_f32 v{t+j}, v{src+2*j}, v{src+2*j+1}" for j in range(4)] + \
        [VM(f"buffer_store_dwordx4 {vr(t,4)}, v{vXO}, {srd(rOUT)}, s{sXO+p} offen {OPT.get('outpol', SC).replace('none', '')}")]


def finalize_last():
    b, r, E = PB, [], range(0, 8, 2)
    for j in E:
        r += [f"v_pk_add_f32 {vr(b+j,2)}, {vr(b+j,2)}, {vr(b+8+j,2)}", f"v_pk_add_f32 {vr(b+16+j,2)}, {vr(b+16+j,2)}, {vr(b+24+j,2)}"]
    r += [f"v_pk_add_f32 {vr(b+j,2)}, {vr(b+j,2)}, {vr(b+16+j,2)}" for j in E]
    r += [f"v_pk_mul_f32 {vr(b+8+j,2)}, {vr(b+j,2)}, v[4:5] op_sel_hi:[1,0]" for j in E]
    r += [f"v_exp_f32 v{b+8+j}, v{b+8+j}" for j in range(8)]
    r += [f"v_pk_mul_f32 {vr(b+j,2)}, {vr(b+j,2)}, {vr(YV+8+j,2)}" for j in E]
    r += [f"v_pk_add_f32 {vr(b+8+j,2)}, {vr(b+8+j,2)}, 1.0 op_sel_hi:[1,0]" for j in E]
    r += [f"v_rcp_f32 v{b+8+j}, v{b+8+j}" for j in range(8)]
    r += [f"v_pk_fma_f32 {vr(b+j,2)}, {vr(b+j,2)}, {vr(b+8+j,2)}, {vr(XF+8+j,2)}" for j in E]
    return r + out_store(1, b)


def gemm2(a):
    NT = int(OPT.get("ntail", 6))
    order = [(n, u) for n in range(56 - NT) for u in range(2)] + [(n, u) for u in range(2) for n in range(56 - NT, 56)]
    ms = []
    for n, u in order:
        st, ks = divmod(n, 28)
        acc = vr(ACC2 + (st * 2 + u) * 16, 16)
        m = f"v_mfma_f32_32x32x16_bf16 {acc}, {ar(ks*8+u*4,4)}, {vr(HR + 4*(n % NH), 4)}, {'0' if ks == 0 else acc}"
        w = [f"h{n}"] + ([f"wr{ks // 2}"] if st == 0 and ks >= 18 and ks % 2 == 0 else [])
        ms.append([WAIT(*w), m] if u == 0 else [m])
    budget = [20 if g + 1 < 112 and len(ms[g + 1]) > 1 else 24 for g in range(112)]
    NSPLIT = 8

    def exchange(half):
        return [([WAIT("wr8")] + [DS(f"ds_write_b128 v{vRW}, {vr(CACC+16*(1-half)+4*j,4)} offset:{j*1024}", "rw") for j in range(4)] +
                 [DS(f"ds_read_b32 v0, v{vL8}")], 0, NSPLIT),
                ([f"v_fma_f32 v{8+j}, v{8+j}, v{vDV}, v{CACC+16*half+j}" for j in range(16)], 2, NSPLIT)]

    last = int(OPT.get("hlast", 46))
    when = lambda n: 2 * n if n < NSPLIT // 2 else NSPLIT + (n - NSPLIT // 2) * (2 * last - NSPLIT) // (56 - NH - NSPLIT // 2)
    hl = [(h_load(n + NH - 1), when(n), when(n) + 1) for n in range(56 - NH + 1)]
    if SPLIT:
        k2, p2 = 28 - (NH - 1), int(OPT.get("ph2", 0))
        hl[p2] = (hl[p2][0] + peek(sPH),) + hl[p2][1:]
        hl[k2 - 1] = (hl[k2 - 1][0] + [check(sPH, 0x700)],) + hl[k2 - 1][1:]
    odd, join = a.label("odd"), a.label("join")
    a(f"s_cmp_eq_u32 s{sMH}, 0\ns_cbranch_scc0 {odd}")
    snap = (a.nvm, a.nds)
    for half, end in ((0, f"s_branch {join}\n{odd}:"), (1, f"{join}:")):
        a.nvm, a.nds = snap
        fl, over = schedule(NSPLIT, [CHAIN(hl[:NSPLIT // 2])] + exchange(half), budget, 3)
        a.weave(ms[:NSPLIT], fl)
        a(end)

    yfin = [ATOM((WAIT("rw"), "s_barrier"))] + [DS(f"ds_read_b128 {vr(96+4*j,4)}, v{vRR} offset:{j*1024}", "rr") for j in range(4)]
    yfin.append(DS(f"ds_read_b32 v0, v{vL8}"))
    yst = [WAIT("rr")]
    for j in range(4):
        yst += [f"v_add_f32 v{8+4*j+r}, v{8+4*j+r}, v{96+4*j+r}" for r in range(4)]
        yst += [f"v_cvt_pk_bf16_f32 v{24+2*j+k}, v{8+4*j+2*k}, v{9+4*j+2*k}" for k in range(2)]
        yst.append(VM(f"buffer_store_dwordx2 {vr(24+2*j,2)}, v{vL8}, {srd(rWS)}, s{sYS} offen offset:{j*512} {SC}", "y_st" if j == 3 else None))
    if "x_noyst" in OPT:
        yst = [x for x in yst if not (isinstance(x, tuple) and x[0] == "vm")] + [lambda e: e.tags.__setitem__("y_st", ("vm", e.nvm - 20))]
    xl = [VM(f"buffer_load_dwordx4 {vr(XR+4*p,4)}, v{vXO}, {srd(rX)}, s{sXO+p} offen") for p in range(2)]
    xl += [VM(f"buffer_load_dwordx2 {vr(SR+2*p,2)}, v{vSO}, {srd(rWS)}, s{sSO+p} offen {SC}", "xs" if p else None) for p in range(2)]
    xs = [WAIT("xs")]
    for p in range(2):
        xs.append(f"v_rcp_f32 v{SR+2*p+1}, v{SR+2*p+1}")
        for j in range(4):
            xs += [f"v_lshlrev_b32 v{XF+8*p+2*j}, 16, v{XR+4*p+j}", f"v_and_b32 v{XF+8*p+2*j+1}, 0xffff0000, v{XR+4*p+j}"]
        xs.append(f"v_mul_f32 v{SR+2*p}, v{SR+2*p}, v{SR+2*p+1}")
    xs += [f"v_fma_f32 v{XN+8*p+j}, v{XF+8*p+j}, v{SR+2*p+1}, -v{SR+2*p}" for p in range(2) for j in range(8)]
    xs += [f"v_mov_b32 v{YV+j}, 0" for j in range(16)] + [f"v_mov_b32 v4, {hx(f2u(-1.4426950408889634))}"]
    YLATE = "yearly" not in OPT
    NF, NY = int(OPT.get("nf", 22)), int(OPT.get("ny", 36 if YLATE else 30))
    LY = int(OPT.get("ly", 13 if YLATE else 10))
    pre1, rd1 = part_reads(1)
    pw1 = part_writes(1)
    dummy = [DS(f"ds_read_b32 v0, v{vL8}", "dm")]
    yend = [ATOM((WAIT("y_dma"), "s_barrier"))]
    yend += [DS(f"ds_read_u16_d16_hi v{YV+8*p+j}, v{vYG+p} offset:{j*128}", f"yg{p}") for p in range(2) for j in range(8)]
    yend += [WAIT("yg0")] + [f"v_fma_f32 v{XN+j}, v{XN+j}, v{YV+j}, v{XF+j}" for j in range(8)] + out_store(0, XN)
    yend += [WAIT("yg1")] + [f"v_mul_f32 v{YV+8+j}, v{YV+8+j}, v{XN+8+j}" for j in range(8)]
    streams = [
        hl[NSPLIT // 2:],
        [(yfin, 9, 12), (yst, 14, 24), (xs, 40, 60), (part_writes(0) + dummy + dummy, 60, 69),
         ([ATOM((WAIT("pw0"), "s_barrier"))] + part_reads(0)[1] + dummy, 71, 74),
         ([WAIT("pr0")] + pre1 + gate_first(), 78, 104 if YLATE else 96)] + ([] if YLATE else [(yend, int(OPT.get("ye", 97)), 108)]),
        [(xl, 8, 16), ([WAIT("wd13")] + sum((wd_reads(g) for g in range(10, 14)), []) + dummy, int(OPT.get("wr0", 28)), 40)],
        [([ATOM([WAIT("y_st")] + publish(sF2))], 2 * NF, 2 * NF + 1), (peek(sPY), 2 * NY, 2 * NY + 1),
         ([check(sPY, 16), f"s_mov_b32 m0, s{sYM}", f"s_add_u32 s4, s{sYD}, {8*KVP_COPY - YP}",
           VM(f"buffer_load_dwordx4 v{vYD}, {srd(rWS)}, s{sYD} offen {SC} lds"),
           VM(f"buffer_load_dwordx4 v{vYD}, {srd(rWS)}, s4 offen offset:{YP} {SC} lds", "y_dma")], 2 * (NY + LY), 2 * (NY + LY) + 3)],
        [([stamp(9)], 24, 25), ([stamp(12)], 56, 57), ([stamp(13)], 84, 85)]]
    def drop(pred):
        for st in streams:
            for k, (it, g0, g1) in enumerate(st):
                st[k] = ([x for x in flat(it) if not pred(x)], g0, g1)

    txt = lambda x: repr(x)
    if "x_nolds" in OPT:
        drop(lambda x: "ds_write_b128" in txt(x) or "pw0" in txt(x) or "pr0" in txt(x) or "ds_read_b128 v[6" in txt(x) or "ds_read_b128 v[7" in txt(x) or "ds_read_b128 v[8" in txt(x) or "ds_read_b128 v[92" in txt(x))
    if "x_noldy" in OPT:
        drop(lambda x: "p_y" in txt(x))
    if "x_noydma" in OPT:
        drop(lambda x: "y_dma" in txt(x) or f"dwordx4 v{vYD}," in txt(x))
    if "x_noout0" in OPT:
        drop(lambda x: "buffer_store_dwordx4" in txt(x))
    if "x_noph2" in OPT:
        drop(lambda x: "p_h2" in txt(x) and "wait" in txt(x))
    if "x_novalu" in OPT:
        drop(lambda x: isinstance(x, str) and x.startswith("v_"))
    streams = [CHAIN((it, g0 - NSPLIT, g1 - NSPLIT) for it, g0, g1 in st) for st in streams]
    fl, over = schedule(112 - NSPLIT, streams, budget[NSPLIT:], 3)
    if over:
        print(f"gemm2: {over} left over", file=sys.stderr)
    early = 4 if NT >= 6 else 0
    if early:
        g_last = 112 - NT - 1 - NSPLIT
        dist = sum(len(flat(fl[g])) + 1 for g in range(g_last, g_last + NT - 3))
        fl[-3] = ([f"s_nop {11 - dist}"] if dist < 12 else []) + pw1[:1] + fl[-3]
        fl[-2] = pw1[1:2] + fl[-2]
        fl[-1] = pw1[2:4] + fl[-1]
    a.weave(ms[NSPLIT:], fl)
    a.put([stamp(10), "s_nop 9"] + pw1[early:])
    if not YLATE:
        a.put([WAIT("pw1"), "s_barrier"] + rd1 + [WAIT("pr1")] + finalize_last())
        return
    fin, E = finalize_last(), range(0, 8, 2)
    k = [i for i, x in enumerate(fin) if str(x).startswith("v_exp")][-1] + 1
    a.put([WAIT("pw1", "y_dma"), "s_barrier"] + yend[1:9] + rd1 + yend[9:17])
    a.put([WAIT("yg0")] + [f"v_pk_fma_f32 {vr(XN+j,2)}, {vr(XN+j,2)}, {vr(YV+j,2)}, {vr(XF+j,2)}" for j in E] + out_store(0, XN, 40))
    a.put([WAIT("pr1")] + fin[:k])
    a.put([WAIT("yg1")] + [f"v_pk_mul_f32 {vr(YV+8+j,2)}, {vr(YV+8+j,2)}, {vr(XN+8+j,2)}" for j in E] + fin[k:])


def add_pads(a):
    import re, subprocess, tempfile, os
    probe = re.sub(r"L_page\w+", "L_return", a.text())
    d = tempfile.mkdtemp()
    open(d + "/p.s", "w").write(HEAD + probe)
    subprocess.run(["clang", "-x", "assembler", "-target", "amdgcn-amd-amdhsa", "-mcpu=gfx950", "-c",
                    d + "/p.s", "-o", d + "/p.o"], check=True)
    lst = subprocess.run(["llvm-objdump", "-d", "--mcpu=gfx950", d + "/p.o"], capture_output=True, text=True).stdout
    lst = lst[lst.index("<L_main>:"):]
    sizes = [4 * len(m.group(1).split()) for m in re.finditer(r"// [0-9A-F]{12}: ([0-9A-F ]+)", lst)]
    k = a.lines.index("L_main:") + 1
    out, off, pages, i = a.lines[:k], 0, [], 0
    region, lanes_off = "main", False
    for ln in a.lines[k:]:
        if ln in ("L_join:", "L_service:"):
            region = ln
        if ln.startswith("    "):
            if off >= 4096 * len(pages) and not lanes_off:
                out += [f"L_pad{len(pages)}:", "    s_cbranch_execz L_return"]
                pages.append(region)
                off += 4
            off += sizes[i]
            i += 1
            if "exec" in ln.split(",")[0]:
                lanes_off = ln.strip() == "s_mov_b64 exec, 0"
        out.append(ln)
    assert i == len(sizes)
    main = [p for p, r in enumerate(pages) if r != "L_service:"]
    groups = {"A": main[:4], "B": main[4:8], "S": [p for p, r in enumerate(pages) if r == "L_service:"],
              "C": [p for p, r in enumerate(pages) if r == "L_join:"]}
    assert len(main) <= 8 and all(len(g) <= 4 for g in groups.values()), pages
    text = "\n".join(out)
    for g, ps in groups.items():
        for w in range(4):
            text = text.replace(f"L_page{g}_{w}", f"L_pad{ps[w]}" if w < len(ps) else "L_return")
    a.lines = text.split("\n")


def build():
    a = Em()
    for k in OPT.get("x_skip", "").split(","):
        if k.startswith("wd"):
            gs = [f"{srd(rWD)}, s{GT[g]} " for g in range(int(k[2:].split("-")[0]), int(k.split("-")[1]))]
            a.skip.append(lambda t, gs=gs: any(g in t for g in gs))
        if k == "wr":
            a.skip.append(lambda t: t.startswith("ds_read_b64_tr") and (f"v{vDA} " in t or f"v{vDA+1} " in t))
        if k == "cr":
            a.skip.append(lambda t: t.startswith("ds_read_b128") and f"v{vUA} " in t)
        if k == "hall":
            a.skip.append(lambda t: (", v7, " in t or ", v6, " in t) and "dwordx4 v[" in t)
        if k == "ist":
            a.skip.append(lambda t: t.startswith(("buffer_store_dword v4", "buffer_store_dwordx2 v[44")))
        if k == "stl":
            a.skip.append(lambda t: ", v96, " in t)
        if k == "hand":
            a.skip.append(lambda t: f", v{vG1S}, " in t or f"s{sCS} offen" in t)
        if k == "ce":
            a.skip.append(lambda t: "s89 offen" in t)
        if k == "ifl":
            a.skip.append(lambda t: t.startswith("buffer_store_dword v47"))
        if k == "ics":
            a.skip.append(lambda t: t.startswith("buffer_store_dword v43"))
        if k == "iss":
            a.skip.append(lambda t: t.startswith("buffer_store_dwordx2 v[44"))
        if k == "hst":
            a.skip.append(lambda t: f", v{vHO}, " in t)
        if k == "hld":
            a.skip.append(lambda t: ", v7, " in t and "dwordx4 v[" in t)
        if k == "cv":
            a.skip.append(lambda t: f"dwordx4 v{vL16}, " in t and "lds" in t)
        if k == "x":
            a.skip.append(lambda t: any(f"dwordx4 v{vXD+j}, {srd(rX)}" in t for j in range(4, 8)))
        if k == "touch":
            a.skip.append(lambda t: "dword v47" in t or "ushort" in t)
    entry(a)
    a(f"s_cmp_ge_u32 s{sIDX}, 28\ns_cbranch_scc1 L_service")
    snap = (a.nvm, a.nds)
    gemm_role(a)
    keep = getattr(a, "pending", None)
    if keep != 5:
        stamp_flush(a)
    a("L_join:")
    conv(a)
    gemm2(a)
    if STAMP:
        a.put([stamp(11), WAIT("allvm"), stamp(15), "s_waitcnt lgkmcnt(0)"])
        stamp_flush(a)
        a(f"""
        s_add_u32 s{rWS}, s{rWS}, {WS_TS}
        s_addc_u32 s{rWS+1}, s{rWS+1}, 0
        s_lshl_b32 s4, s2, 2
        s_add_u32 s4, s4, s{sW}
        s_lshl_b32 s4, s4, 8
        s_getreg_b32 s5, hwreg(HW_REG_XCC_ID)
        s_getreg_b32 s6, hwreg(HW_REG_HW_ID)
        v_writelane_b32 v{vST}, s5, 32
        v_writelane_b32 v{vST}, s6, 33
        v_lshlrev_b32 v4, 2, v{vLANE}
        buffer_store_dword v{vST}, v4, {srd(rWS)}, s4 offen
        """)
    if "diag" in OPT:
        k = int(OPT["diag"])
        a(f"""
        v_readlane_b32 s4, v{vST}, 30
        v_readlane_b32 s5, v{vST}, {16 + k}
        s_nop 3
        s_cmp_eq_u32 s5, 0
        s_cselect_b32 s5, s4, s5
        s_cmp_eq_u32 s2, {OPT.get("diagwg", 40)}
        s_cselect_b32 s5, s5, s4
        s_add_u32 s5, s5, 4000
        L_diag:
        s_memrealtime s[94:95]
        s_waitcnt lgkmcnt(0)
        s_sub_u32 s6, s94, s5
        s_cmp_lt_i32 s6, 0
        s_cbranch_scc1 L_diag
        """)
    a("L_exit:\ns_endpgm\nL_service:")
    a.nvm, a.nds = snap
    service_role(a)
    if keep != 5:
        stamp_flush(a)
    a("s_branch L_join")
    for t in a.tail:
        a(t)
    a("L_end:\ns_endpgm")
    if WALK:
        add_pads(a)
    hdr = open("cdna_kernels/" + NAME + ".s.ref").read().split("; Override launch")[0]
    t = hdr + f"; @launch grid=(256,1,1) block=(256,1,1) lds={LDS_BYTES}\n" + HEAD + (".p2align 12\n" if WALK else "") + kernel_text(KERNEL, a.text())
    t += '.section .rodata,"a"\n' + descriptor(KERNEL, vgpr=512, accum=256)
    return t


if __name__ == "__main__":
    open(sys.argv[1], "w").write(build())
```

```python
import re
import sys
from common import (NAME, S, D, F, X_BYTES, W_BYTES, WS_H, WS_KV, WS_Y, WS_ST, WS_CS, WS_FL, WS_TS, LDS_BYTES, SLOT, KVP_COPY,
                    f2u, hx, vr, ar, spread, merge)
from asmlib import HEAD, kernel_text, descriptor
from emit import Em, VM, DS, WAIT, lines, schedule, ATOM, CHAIN, flat

OPT = dict(x[2:].split("=") if "=" in x else (x[2:], "1") for x in sys.argv if x.startswith("--"))
STAMP = "stamp" in OPT
KERNEL = NAME + "_kernel"
WS_BYTES = 16 << 20
SC = "sc1"
SPLIT = "nosplit" not in OPT

rX, rW, rWS, rWD, rSK, rOUT, rDBG, rV = 8, 12, 16, 20, 24, 28, 32, 36
pSD, pSH, pKV = 98, 42, 80
sXM, sWM, sXK, sWK, sHS = 44, 45, 46, 47, 48
sF1, sF2, sPH, sPY, sPK = 56, 57, 58, 59, 60
sDM = 61
sUM, sHM, sKVO, sSKO, sYS = 63, 64, 65, 66, 67
sYD, sYM, sXO, sSO, sHL, sG1S, sMH, sSPIN = 68, 69, 70, 72, 74, 76, 77, 78
sRB, sFS, sT2, sCT = 84, 85, 86, 87
GT = [62, 0, 1, 3, 39, 40, 50, 51, 52, 53, 54, 55, 80, 81]
sCS, sEM, sSP = 36, 41, 88
sXCD, sIDX, sW = 90, 91, 92
srd = lambda r: f"s[{r}:{r+3}]"

vLANE, vL16, vST = 1, 2, 3
vXD, vWD, vXA, vXB, vWA, vWB = 8, 16, 20, 22, 24, 28
vHO, vCA, vG1S, vCL, vH0, vPS, vDS = 32, 33, 34, 35, 36, 37, 38
vMS, vGC, vI2, vBM = 40, 8, 16, 64
vDD, vDA, vUA, vHA, vZU, vZH, vRW, vRR, vDT, vL8, vM0, vDV = 48, 52, 54, 55, 56, 57, 58, 59, 60, 61, 62, 63
vYD, vXO, vSO, vYG, vPW, vPR, vFH, vFY, vFK, vFD, vPOLL = 112, 113, 114, 115, 117, 121, 123, 124, 125, 126, 127
FR = [("v", 64), ("a", 160)]
ACC1 = 128
rg = lambda kb, o, n: (vr if kb[0] == "v" else ar)(kb[1] + o, n)

US = 4640
CH_LDS = 4 * US + 4208 + 16
CONV_BASE = 2 * SLOT + 16
EB, ES = 3 * SLOT + 16, 4352
YB, YP = 3 * SLOT, 1040
CSL = 3 * SLOT + 12288
WDW = 12288
KB, KVP = 0, 1056
VB = 9 * KVP
KVT = 18 * KVP
FL_H, FL_Y, FL_K = WS_FL, WS_FL + 131072, WS_FL + 262144

C1 = -2.0 * 0.7978845608028654 * 1.4426950408889634
C2 = C1 * 0.044715


def stamp(n, g1=False):
    mode = "g1" if "g1st" in OPT else ("ge" if "gest" in OPT else ("sv" if "svst" in OPT else ("g7" if "g7st" in OPT else False)))
    g1 = "g1" if g1 is True else g1
    if "lite" in OPT and n not in (0, 15):
        return None
    keep = (0, 1, 2, 15) if mode == "g1" else (0, 1, 2, 3, 4, 15)
    if not STAMP or (mode != g1 and (g1 or n not in keep)):
        return None

    def emit(a):
        stamp_flush(a, False)
        if n == 0:
            a(f"v_writelane_b32 v{vST}, s100, 14\nv_writelane_b32 v{vST}, s94, 30")
        a("s_memrealtime s[94:95]\ns_memtime s[96:97]")
        a.pending = n
    return emit


def stamp_flush(a, wait=True):
    n = getattr(a, "pending", None)
    if n is not None:
        a(("s_nop 15\ns_nop 15\n" if wait else "") + f"v_writelane_b32 v{vST}, s96, {n}\nv_writelane_b32 v{vST}, s94, {16 + n}")
    a.pending = None


LD_INIT = f"buffer_load_dword v{vPOLL}, v{vFD}, {srd(rDBG)}, 0 offen {SC}"
LD_KV = f"buffer_load_dword v{vPOLL}, v{vFK}, {srd(rWS)}, s{sPK} offen {SC}"


def publish(sf, inc=1):
    r = 79 if inc == 1 else 82
    return [f"s_mov_b32 s{r}, {inc}", f"s_atomic_add s{r}, s[{rWS}:{rWS+1}], s{sf}"]


def peek(sp):
    return ["s_mov_b32 s83, 0", f"s_atomic_add s83, s[{rWS}:{rWS+1}], s{sp} glc"]


def check(sp, want, mask=None):
    def emit(a):
        slow, back = a.label("slow"), a.label("back")
        test = (f"s_and_b32 s83, s83, {mask}\n" if mask else "") + f"s_cmp_ge_u32 s83, {want}"
        a("s_waitcnt lgkmcnt(0)")
        if ("x_noypoll" in OPT and sp == sPY) or ("x_nohpoll" in OPT and sp == sPH):
            return
        a(f"{test}\ns_cbranch_scc0 {slow}\n{back}:")
        a.tail.append(f"""
        {slow}:
        s_mov_b32 s{sSPIN}, 0x10000
        {slow}_l:
        s_mov_b32 s83, 0
        s_atomic_add s83, s[{rWS}:{rWS+1}], s{sp} glc
        s_sub_u32 s{sSPIN}, s{sSPIN}, 1
        s_cmp_eq_u32 s{sSPIN}, 0
        s_waitcnt lgkmcnt(0)
        s_cbranch_scc1 {back}
        {test}
        s_cbranch_scc0 {slow}_l
        s_branch {back}
        """)
    return emit


KVR = [44, 45, 46, 47, 42, 43, 98, 99]
S_INIT = [f"s_load_dword s{82+j}, s[{rDBG}:{rDBG+1}], {128*j}" for j in range(2)]
S_KV = [f"s_load_dword s{KVR[j]}, s[{rWS}:{rWS+1}], s{sPK} offset:{128*j}" for j in range(8)]


def scheck(loads, regs, want):
    def emit(a):
        slow, back = a.label("slow"), a.label("back")
        test = "\n".join(f"s_min_u32 s{regs[0]}, s{regs[0]}, s{r}" for r in regs[1:]) + f"\ns_cmp_ge_u32 s{regs[0]}, {want}"
        a("s_waitcnt lgkmcnt(0)")
        if "x_nokvpoll" in OPT and loads is S_KV:
            return
        a(f"{test}\ns_cbranch_scc0 {slow}\n{back}:")
        a.tail.append(f"""
        {slow}:
        s_mov_b32 s{sSPIN}, 0x10000
        {slow}_l:
        {LD_KV if loads is S_KV else LD_INIT}
        s_sub_u32 s{sSPIN}, s{sSPIN}, 1
        s_cmp_eq_u32 s{sSPIN}, 0
        s_waitcnt vmcnt(0)
        s_cbranch_scc1 {back}
        v_cmp_gt_u32 vcc, {want}, v{vPOLL}
        s_cbranch_vccnz {slow}_l
        s_branch {back}
        """)
    return emit


WALK = "nowalk" not in OPT


def visit(first):
    def emit(a):
        if not WALK:
            return
        done = a.label("visited")
        a("s_mov_b64 exec, 0")
        for w in range(4):
            nxt = a.label("w")
            if w < 3:
                a(f"s_cmp_lg_u32 s{sW}, {w}\ns_cbranch_scc1 {nxt}")
            a(f"s_call_b64 s[6:7], L_page{first}_{w}")
            if w < 3:
                a(f"s_branch {done}\n{nxt}:")
        a(f"{done}:\ns_mov_b64 exec, -1")
    return emit


def entry(a):
    if STAMP:
        a("s_memrealtime s[94:95]\ns_memtime s[100:101]")
    a(f"""
    s_load_dwordx2 s[{rX}:{rX+1}], s[0:1], 0
    s_load_dwordx4 s[36:39], s[0:1], 56
    s_load_dwordx2 s[{rWS}:{rWS+1}], s[0:1], 96
    s_load_dwordx4 s[{pKV}:{pKV+3}], s[0:1], 8
    s_getpc_b64 s[4:5]
    L_pc:
    s_cmp_ge_u32 s2, 256
    s_cbranch_scc1 L_exit
    s_lshr_b32 s{sIDX}, s2, 3
    v_lshrrev_b32 v4, 4, v0
    s_lshl_b32 s6, s{sIDX}, 11
    v_lshl_add_u32 v4, v4, 7, s6
    v_min_u32 v4, L_end-L_pc-4, v4
    v_mov_b32 v5, s5
    v_add_co_u32 v4, vcc, s4, v4
    v_lshrrev_b32 v6, 6, v0
    v_and_b32 v{vLANE}, 63, v0
    v_addc_co_u32 v5, vcc, 0, v5, vcc
    """)
    if "nocodepf" not in OPT:
        a.put(VM(f"global_load_dword v{vPOLL}, v[4:5], off"))
    a(f"""
    v_readfirstlane_b32 s{sW}, v6
    s_load_dwordx2 s[{rWD}:{rWD+1}], s[0:1], 72
    s_load_dwordx2 s[{rSK}:{rSK+1}], s[0:1], 32
    s_load_dwordx2 s[{rOUT}:{rOUT+1}], s[0:1], 80
    s_load_dwordx2 s[{rDBG}:{rDBG+1}], s[0:1], 88
    s_load_dwordx2 s[{pSD}:{pSD+1}], s[0:1], 40
    s_load_dwordx2 s[{pSH}:{pSH+1}], s[0:1], 24
    s_and_b32 s{sXCD}, s2, 7
    v_lshlrev_b32 v{vL16}, 4, v{vLANE}
    s_mov_b32 s{rX+2}, {X_BYTES}
    s_mov_b32 s{rX+3}, 0x20000
    s_mov_b32 s{rW+3}, 0x20000
    s_and_b32 s4, s{sXCD}, 1
    s_lshr_b32 s5, s{sXCD}, 1
    s_lshl_b32 s{sRB}, s4, 2
    s_add_u32 s{sT2}, s{sRB}, s5
    s_lshl_b32 s6, s{sT2}, 5
    s_add_u32 s6, s6, s{sIDX}
    s_lshl_b32 s6, s6, 2
    s_add_u32 s6, s6, s{sW}
    s_lshl_b32 s79, s6, 11
    v_lshrrev_b32 v4, 5, v{vLANE}
    v_and_b32 v5, 31, v{vLANE}
    v_lshlrev_b32 v96, 10, v4
    v_lshl_add_u32 v96, v5, 4, v96
    v_lshrrev_b32 v6, 3, v{vLANE}
    v_and_b32 v7, 7, v{vLANE}
    """)
    if STAMP:
        a(f"v_mov_b32 v{vST}, 0")


def stats_loads():
    return [VM(f"buffer_load_dwordx4 v[64:67], v96, {srd(rX)}, s79 offen"),
            VM(f"buffer_load_dwordx4 v[68:71], v96, {srd(rX)}, s79 offen offset:512", "stats_ld")]


def reduce32(v, t):
    r = []
    for ctl in ("quad_perm:[1,0,3,2]", "quad_perm:[2,3,0,1]", "row_half_mirror", "row_mirror"):
        r += ["s_nop 1", f"v_add_f32_dpp v{v}, v{v}, v{v} {ctl} row_mask:0xf bank_mask:0xf"]
    return r + [f"v_mov_b32 v{t}, v{v}", "s_nop 1", f"v_permlane16_swap_b32 v{t}, v{v}", "s_nop 0",
                f"v_add_f32 v{v}, v{t}, v{v}"]


def rnd(v):
    return [f"v_cvt_pk_bf16_f32 v{v}, v{v}, v{v}", f"v_and_b32 v{v}, 0xffff0000, v{v}"]


def stats_compute():
    r = [WAIT("stats_ld")]
    for j in range(8):
        r += [f"v_lshlrev_b32 v{72+2*j}, 16, v{64+j}", f"v_and_b32 v{73+2*j}, 0xffff0000, v{64+j}"]
    r.append("v_pk_add_f32 v[88:89], v[72:73], v[74:75]")
    r += [f"v_pk_add_f32 v[88:89], v[88:89], v[{72+2*j}:{73+2*j}]" for j in range(2, 8)]
    r += ["v_add_f32 v88, v88, v89"] + reduce32(88, 89) + [f"v_mul_f32 v88, {hx(f2u(1.0/512))}, v88"]
    r += [f"v_pk_add_f32 v[{72+2*j}:{73+2*j}], v[{72+2*j}:{73+2*j}], v[88:89] op_sel_hi:[1,0] neg_lo:[0,1] neg_hi:[0,1]"
          for j in range(8)]
    r.append("v_pk_mul_f32 v[90:91], v[72:73], v[72:73]")
    r += [f"v_pk_fma_f32 v[90:91], v[{72+2*j}:{73+2*j}], v[{72+2*j}:{73+2*j}], v[90:91]" for j in range(1, 8)]
    r += ["v_add_f32 v89, v90, v91"] + reduce32(89, 90) + [f"v_mul_f32 v89, {hx(f2u(1.0/512))}, v89"]
    r += rnd(88) + rnd(89) + [f"v_add_f32 v89, {hx(f2u(1e-5))}, v89"] + rnd(89) + ["v_sqrt_f32 v89, v89"]
    r += lines(f"""
    v_cmp_eq_u32 vcc, 0, v5
    s_lshr_b32 s79, s79, 7
    s_add_u32 s79, s79, {WS_ST}
    v_lshlrev_b32 v46, 3, v4
    v_cndmask_b32 v46, -1, v46, vcc
    v_mov_b32 v44, v88
    v_cvt_pk_bf16_f32 v89, v89, v89
    v_and_b32 v45, 0xffff0000, v89
    """)
    r += [VM(f"buffer_store_dwordx2 v[44:45], v46, {srd(rWS)}, s79 offen {SC}", "init_st")]
    return r


def init_signal():
    return lines(f"""
    s_and_b32 s4, s2, 1
    s_lshl_b32 s4, s4, 7
    """) + [ATOM((f"s_cmp_eq_u32 s{sW}, 0", "s_cselect_b32 s4, s4, 0x1000"))] + lines(f"""
    v_mov_b32 v4, 1
    v_add_u32 v5, s4, v{vM0}
    """) + [VM(f"buffer_atomic_add v4, v5, {srd(rDBG)}, 0 offen {SC}")]


def clear_counters(a):
    l1, l2 = a.label("clr"), a.label("clr")
    a(f"""
    s_mov_b32 s82, 0
    s_add_u32 s83, s{sIDX}, 4
    s_and_b32 s83, s83, 24
    s_cbranch_scc1 {l1}
    s_atomic_and s82, s[{rWS}:{rWS+1}], s{sF1}
    {l1}:
    s_and_b32 s83, s5, 15
    s_cbranch_scc1 {l2}
    s_atomic_and s82, s[{rWS}:{rWS+1}], s{sF2}
    {l2}:
    """)


def setup_common(part=None):
    r = setup_all()
    cut = r.index(f"s_add_u32 s{sF2}, s6, {FL_Y}") + 1
    if part != 1:
        r = r[:cut] + [clear_counters] + r[cut:]
    if part == 0:
        return r[:cut + 1]
    late, pre = r.index(f"v_lshlrev_b32 v{vFK}, 7, v6") + 1, []
    if OPT.get("dlevel", "1") == "2":
        late = r.index(f"s_add_u32 s89, s{sSKO}, 2") + 1
        pre = [f"s_lshr_b32 s4, s{sW}, 1", f"s_lshl_b32 s6, s{sMH}, 11"]
    if part == "early":
        return r[:late]
    if part == "late":
        return [re.sub(r"\bv(98|99|10[0-3])\b", lambda m: f"v{(int(m.group(1)) - 101) % 6 + 40}", x) for x in pre + r[late:]]
    if part == 1:
        redo = r.index(f"s_lshr_b32 s4, s{sW}, 1")
        return [f"v_lshrrev_b32 v4, 5, v{vLANE}", f"v_and_b32 v5, 31, v{vLANE}"] + r[redo:]
    return r


def setup_all():
    r = []
    for q, n in ((rWS, WS_BYTES), (rWD, W_BYTES), (rSK, X_BYTES), (rOUT, X_BYTES), (rDBG, 256)):
        r += [f"s_mov_b32 s{q+2}, {n}", f"s_mov_b32 s{q+3}, 0x20000"]
    table = "\n".join(f"s_add_u32 s6, s93, {g*32768}\ns_sub_u32 s7, s6, {14*32768}\ns_min_u32 s{GT[g]}, s6, s7" for g in range(1, 14))
    rot = f"""
    s_bfe_u32 s6, s{sT2}, 0x10001
    s_mul_i32 s6, s6, 3
    s_xor_b32 s7, s{sCT}, 3
    s_min_u32 s7, s7, {0 if "rot4" in OPT else 1}
    s_sub_u32 s7, 1, s7
    s_mul_i32 s6, s6, s7
    {f's_xor_b32 s93, s{sT2}, s{sCT}' if 'nohrot' not in OPT else f's_mov_b32 s93, s{sT2}'}
    s_and_b32 s93, s93, 1
    s_mul_i32 s93, s93, 7
    {"s_mul_i32 s93, s93, s7" if "rot1" in OPT else ""}
    s_add_u32 s6, s6, s93
    s_min_u32 s7, s{sXCD}, {int(OPT.get("xrot", 6))}
    s_add_u32 s93, s6, s7
    s_sub_u32 s7, s93, 14
    s_min_u32 s93, s93, s7
    s_lshl_b32 s93, s93, 15
    s_mov_b32 s{GT[0]}, s93
    """
    LEAD = int(OPT.get("lead", 0))
    lead = ""
    if LEAD:
        def entry_code(g):
            return (f"s_bfe_u32 s6, s{42 + g // 8}, {0x40000 + 4 * (g % 8)}\ns_lshl_b32 s6, s6, 15\ns_add_u32 s6, s6, s93\n"
                    f"s_sub_u32 s7, s6, {14*32768}\ns_min_u32 s{GT[g]}, s6, s7")
        lead = f"s_add_u32 s6, s{sT2}, s{sCT}\ns_and_b32 s6, s6, 3\n"
        for ph in range(4):
            perm = sorted(range(14), key=lambda g: g - (LEAD + 0.5) * (g % 4 == (ph + 1) % 4))
            w = sum(g << (4 * i) for i, g in enumerate(perm))
            if ph == 0:
                lead += f"s_mov_b32 s42, {hx(w)}\ns_mov_b32 s43, {hx(w >> 32)}\n"
            else:
                lead += f"s_cmp_eq_u32 s6, {ph} ; s_cmov_b32 s42, {hx(w)} ; s_cmov_b32 s43, {hx(w >> 32)}\n"
        lead += f"s_mul_i32 s93, s{sXCD}, {int(OPT.get('xl', 7))}\ns_lshr_b32 s93, s93, 2\ns_lshl_b32 s93, s93, 15\n" + entry_code(0)
        table = "\n".join(entry_code(g) for g in range(1, 14))
    r += lines(f"""
    v_cmp_eq_u32 vcc, 0, v{vLANE}
    s_lshl_b32 s{sT2}, s{sT2}, 2
    s_and_b32 s4, s{sIDX}, 3
    v_bfrev_b32 v{vM0}, 1
    v_lshlrev_b32 v{vL8}, 3, v{vLANE}
    v_cndmask_b32 v{vM0}, v{vM0}, 0, vcc
    s_add_u32 s{sT2}, s{sT2}, s4
    s_lshr_b32 s4, s{sIDX}, 2
    s_xor_b32 s{sCT}, s4, 4
    s_lshr_b32 s4, s4, 2
    s_and_b32 s5, s{sXCD}, 1
    s_lshl_b32 s5, s5, 1
    s_add_u32 s4, s4, s5
    s_lshl_b32 s4, s4, 2
    s_add_u32 s4, s4, s{sW}
    s_lshl_b32 s4, s4, 10
    s_add_u32 s{sPK}, s4, {FL_K}
    s_lshr_b32 s4, s{sW}, 1
    s_and_b32 s{sMH}, s{sW}, 1
    s_lshl_b32 s5, s{sXCD}, 5
    s_add_u32 s5, s5, s{sIDX}
    s_lshl_b32 s5, s5, 1
    s_add_u32 s5, s5, s4
    s_lshl_b32 s6, s{sMH}, 9
    s_add_u32 s6, s6, s5
    s_lshr_b32 s6, s6, 4
    s_lshl_b32 s6, s6, 7
    s_add_u32 s{sF2}, s6, {FL_Y}
    s_lshl_b32 s{sSKO}, s5, 12
    s_lshl_b32 s6, s{sMH}, 11
    s_mul_i32 s{sYS}, s5, {KVP_COPY}
    s_add_u32 s{sKVO}, s{sYS}, {WS_KV}
    s_add_u32 s{sYS}, s{sYS}, s6
    s_add_u32 s{sYS}, s{sYS}, {WS_Y}
    s_lshl_b32 s5, s5, 1
    v_mov_b32 v{vDV}, s5
    v_mov_b32 v{vH0}, s{sSKO}
    s_add_u32 s{sSKO}, s{sSKO}, s6
    s_add_u32 s89, s{sSKO}, 2
    s_mul_i32 s7, s4, {ES}
    s_add_u32 s7, s7, {EB}
    s_mul_i32 s4, s4, {CH_LDS}
    s_add_u32 s4, s4, {CONV_BASE}
    s_mul_i32 s5, s{sMH}, {2*US + 8}
    s_sub_u32 s{sUM}, s4, s5
    s_add_u32 s{sHM}, s4, s6
    s_add_u32 s{sHM}, s{sHM}, {4*US + 112}
    s_add_u32 s{sEM}, s7, s6
    s_add_u32 s{sEM}, s{sEM}, 116
    v_lshl_add_u32 v{vZU}, v{vLANE}, 2, s{sUM}
    s_sub_u32 s93, s7, s4
    s_sub_u32 s93, s93, {4*US}
    s_add_u32 s5, s{sMH}, 27
    v_min_u32 v{vZH}, s5, v{vLANE}
    s_mul_i32 s5, s{sMH}, s93
    s_add_u32 s5, s5, s4
    s_add_u32 s5, s5, {4*US}
    v_lshl_add_u32 v{vZH}, v{vZH}, 2, s5
    s_sub_u32 s5, s4, s6
    s_add_u32 s5, s5, {3*US + 4080 - 3*512}
    v_and_b32 v{vDT}, -16, v{vL8}
    v_sub_u32 v{vDT}, s5, v{vDT}
    s_lshl_b32 s5, s{sMH}, 8
    s_add_u32 s4, s4, s5
    s_add_u32 s7, s7, s5
    v_lshrrev_b32 v98, 4, v{vLANE}
    v_and_b32 v{vFK}, 3, v{vLANE}
    v_bfe_u32 v99, v{vLANE}, 2, 2
    v_mul_u32_u24 v{vUA}, {US}, v{vFK}
    v_lshlrev_b32 v100, 7, v99
    v_sub_u32 v{vUA}, v{vUA}, v100
    v_lshl_add_u32 v{vUA}, v98, 4, v{vUA}
    s_add_u32 s5, s4, {248*16 - 7*512}
    v_add_u32 v{vUA}, s5, v{vUA}
    v_and_b32 v{vFD}, 1, v{vLANE}
    v_mul_u32_u24 v{vHA}, s93, v{vFD}
    v_sub_u32 v{vHA}, s7, v{vHA}
    v_bfe_u32 v101, v{vLANE}, 1, 3
    v_add_u32 v101, v101, v98
    v_lshl_add_u32 v{vHA}, v101, 4, v{vHA}
    v_mul_u32_u24 v{vPS}, 0x202, v{vFD}
    v_sub_u32 v{vPS}, 0x302, v{vPS}
    v_lshlrev_b32 v{vPS}, 16, v{vPS}
    v_or_b32 v{vPS}, 0xc0c, v{vPS}
    v_lshlrev_b32 v{vFD}, 7, v4
    s_mul_i32 s{sDM}, s{sW}, {WDW}
    s_add_u32 s5, s{sDM}, {wd_off(RED_SLOT)}
    v_add_u32 v{vRW}, s5, v{vL16}
    s_xor_b32 s5, s{sW}, 1
    s_mul_i32 s5, s5, {WDW}
    s_add_u32 s5, s5, {wd_off(RED_SLOT)}
    v_add_u32 v{vRR}, s5, v{vL16}
    v_and_b32 v101, 1, v98
    v_lshlrev_b32 v102, 2, v101
    v_xor_b32 v102, v7, v102
    v_lshlrev_b32 v102, 4, v102
    v_lshl_add_u32 v{vDD}, v6, 10, v102
    s_mul_i32 s6, s{sW}, {448*1024}
    s_lshl_b32 s5, s{sCT}, 7
    s_add_u32 s6, s6, s5
    v_add_u32 v{vDD}, s6, v{vDD}
    v_add_u32 v{vDD+1}, {8192-1024}, v{vDD}
    v_add_u32 v{vDD+2}, {2*(8192-1024)}, v{vDD}
    v_add_u32 v{vDD+3}, {3*(8192-1024)}, v{vDD}
    {lead if LEAD else rot}
    v_lshl_add_u32 v{vDA}, v4, 9, v100
    v_lshl_add_u32 v{vDA}, v101, 5, v{vDA}
    v_lshl_add_u32 v{vDA}, v{vFK}, 3, v{vDA}
    v_and_b32 v102, 1, v6
    v_lshl_add_u32 v{vDA}, v102, 6, v{vDA}
    s_lshl_b32 s{sSP}, s{sW}, 12
    s_add_u32 s{sSP}, s{sSP}, {3*SLOT}
    v_add_u32 v{vDS}, s{sSP}, v{vDA}
    v_xor_b32 v{vDS+1}, 64, v{vDS}
    v_add_u32 v{vDA}, s{sDM}, v{vDA}
    v_xor_b32 v{vDA+1}, 64, v{vDA}
    v_lshlrev_b32 v{vFK}, 7, v6
    {table}
    s_lshl_b32 s5, s{sCT}, 7
    s_and_b32 s6, s{sCT}, {0 if SPLIT or 'nosto' in OPT else 1}
    s_lshl_b32 s7, s{sT2}, 1
    s_add_u32 s7, s7, s6
    s_lshl_b32 s{sXO}, s7, 15
    s_add_u32 s{sXO}, s{sXO}, s5
    s_xor_b32 s{sXO+1}, s{sXO}, 0x8000
    s_lshl_b32 s{sSO}, s7, 8
    s_add_u32 s{sSO}, s{sSO}, {WS_ST}
    s_xor_b32 s{sSO+1}, s{sSO}, 0x100
    s_mul_i32 s4, s{sW}, {28*1024}
    s_mul_i32 s{sHL}, s7, {112*1024}
    s_add_u32 s{sHL}, s{sHL}, s4
    s_xor_b32 s7, s7, 1
    s_mul_i32 s{sHL+1}, s7, {112*1024}
    s_add_u32 s{sHL+1}, s{sHL+1}, s4
    s_lshl_b32 s4, s{sW}, 3
    v_add_u32 v102, s4, v6
    v_lshlrev_b32 v{vSO}, 3, v102
    v_lshlrev_b32 v103, 4, v7
    v_lshl_add_u32 v{vXO}, v102, 10, v103
    v_mul_u32_u24 v{vYD}, {KVP_COPY}, v6
    v_add_u32 v{vYD}, v{vYD}, v103
    s_lshl_b32 s4, s{sCT}, 2
    s_add_u32 s4, s4, s{sW}
    s_mul_i32 s{sYD}, s4, {16*KVP_COPY}
    s_lshl_b32 s7, s{sT2}, 7
    s_add_u32 s{sYD}, s{sYD}, s7
    s_add_u32 s{sYD}, s{sYD}, {WS_Y}
    s_lshl_b32 s{sPH}, s{sW}, 7
    s_lshl_b32 s7, s7, 2
    s_add_u32 s{sPH}, s{sPH}, s7
    s_add_u32 s{sPH}, s{sPH}, {FL_H}
    s_lshl_b32 s4, s4, 7
    s_lshr_b32 s7, s{sT2}, 4
    s_lshl_b32 s7, s7, 12
    s_add_u32 s4, s4, s7
    s_add_u32 s{sPY}, s4, {FL_Y}
    s_mul_i32 s{sYM}, s{sW}, {2*YP}
    s_add_u32 s{sYM}, s{sYM}, {YB}
    v_mul_u32_u24 v103, {YP}, v7
    v_and_b32 v101, 6, v6
    v_add_u32 v103, v103, v101
    v_and_b32 v101, 1, v6
    v_lshl_add_u32 v103, v101, 3, v103
    s_lshl_b32 s4, s{sW}, 4
    v_add_u32 v103, s4, v103
    s_lshl_b32 s6, s6, 6
    s_add_u32 s4, s6, {YB}
    v_add_u32 v{vYG}, s4, v103
    s_sub_u32 s4, {YB + 64}, s6
    v_add_u32 v{vYG+1}, s4, v103
    v_xor_b32 v103, v4, v7
    v_lshlrev_b32 v103, 4, v103
    v_lshl_add_u32 v103, v5, 8, v103
    v_add_u32 v{vPW}, s{sDM}, v103
    v_xor_b32 v{vPW+1}, 32, v{vPW}
    v_xor_b32 v{vPW+2}, 64, v{vPW}
    v_xor_b32 v{vPW+3}, 96, v{vPW}
    v_lshlrev_b32 v103, 1, v7
    v_xor_b32 v103, v103, v6
    v_lshlrev_b32 v103, 4, v103
    v_lshl_add_u32 v{vPR}, v102, 8, v103
    v_add_u32 v{vPR}, {PART[0]}, v{vPR}
    v_xor_b32 v{vPR+1}, 16, v{vPR}
    """)
    return [x.replace(" ; ", "\n") for x in r]


def param_loads():
    return [VM(f"global_load_ushort v{vDV}, v{vDV}, s[{pSD}:{pSD+1}]"), VM(f"buffer_load_ushort v{vH0}, v{vH0}, {srd(rSK)}, 0 offen")]


SPARE = 3 * SLOT
NPRE = int(OPT.get("npre", 1))
NB = int(OPT.get("nb", 3))
GPLAN = OPT.get("gplan", "--------")
NGE = GPLAN.count("w")
G_AG, G_G1 = NPRE + 3, NPRE + 3 + NB
G_LD = G_G1 + NGE
EARLY_SVC = int(OPT.get("esvc", 0))
assert G_AG <= 6
RED_SLOT = (8 - NPRE) % 6
PART = [SLOT, 0] if RED_SLOT < 3 else [0, SLOT]
WD_SLOT = {g: ("S" if g < NPRE else (g - NPRE) % 6) for g in range(14)}


def wd_off(slot):
    return 0 if slot == "S" else (slot // 3) * SLOT + (slot % 3) * 4096


def wd_dma(g, slot=None, pad=False):
    slot = WD_SLOT[g] if slot is None else slot
    r = []
    for j in range(4):
        it = [VM(f"buffer_load_dwordx4 v{vDD+j}, {srd(rWD)}, s{GT[g]} offen offset:{j*1024} lds", f"wd{g}" if j == 3 else None)]
        if j == 0:
            it = [f"s_mov_b32 m0, s{sSP}" if slot == "S" else f"s_add_u32 m0, s{sDM}, {wd_off(slot)}"] + ["s_nop 0"] * pad + it
        if j == 3:
            it = [ATOM((it[0], f"s_lshr_b32 s{GT[g]}, s{GT[g]}, 4"))]
        r.append(it)
    return r


def wd_reads(g, slot=None):
    slot = WD_SLOT[g] if slot is None else slot
    va = vDS if slot == "S" else vDA
    r = []
    for k in range(2):
        for u in range(2):
            for e in range(2):
                last = k == 1 and u == 1 and e == 1
                r.append(DS(f"ds_read_b64_tr_b16 {ar((2*g+k)*8 + u*4 + 2*e, 2)}, v{va+u} offset:{wd_off(slot) + k*1024 + e*2048}",
                            f"wr{g}" if last else None))
    return r


def conv_dma(pad=True):
    out = []
    for m0, rs, so, sc, n in ((f"s{sUM}, {3*US}", rWS, sKVO, SC, 4), (f"s{sUM}, {2*US - 4}", rWS, sKVO, SC, 4),
                              (f"s{sHM}, 0", rSK, sSKO, "", 2), (f"s{sEM}, 0", rSK, 89, "", 2)):
        r = []
        for j in range(n):
            it = [VM(f"buffer_load_dwordx4 v{vL16}, {srd(rs)}, s{so} offen offset:{j*1024} {sc} lds", "cv_dma")]
            if j == 0:
                it = [f"s_add_u32 m0, {m0}"] + ["s_nop 0"] * pad + it
            r.append(it)
        out.append(r)
    return out[0] + out[1], out[2], out[3]


def conv_zero(z):
    return [DS(f"ds_write2st64_b32 v4, v{z}, v{z} offset0:0 offset1:1"),
            DS(f"ds_write2st64_b32 v5, v{z}, v{z} offset0:0 offset1:1"),
            DS(f"ds_write_b32 v{vZH}, v{vH0}", "cv_zero")]


def conv_zero_addr():
    return [f"v_add_u32 v4, {3*US + 4096}, v{vZU}", f"v_add_u32 v5, {2*US + 4092}, v{vZU}",
            f"v_mul_u32_u24 v{vH0}, s{sMH}, v{vH0}", f"v_add_u32 v0, 4, v{vLANE}", "v_min_u32 v0, 32, v0",
            "v_lshrrev_b32 v0, 5, v0", f"v_mul_u32_u24 v{vH0}, v0, v{vH0}", f"v_lshlrev_b32 v{vH0}, 16, v{vH0}"]


CUF = [("v", 128), ("a", 160)]
CHF = [("v", 160), ("a", 192)]
CACC = 64


def conv_reads(m):
    p = m & 1
    u = [DS(f"ds_read_b128 {rg(CUF[p], 4*j, 4)}, v{vUA} offset:{64*m + 512*(7-j)}", f"cu{j}") for j in range(8)]
    h = [DS(f"ds_read_b128 {rg(CHF[p], 4*j, 4)}, v{vHA} offset:{64*m + 512*j}", f"cf{m}" if j == 7 else f"ch{j}") for j in range(8)]
    return h[:1] + u + h[1:]


NHEAD = int(OPT.get("nhead", 5))


def g1_dma_setup():
    r = lines(f"""
    s_and_b32 s6, s{sIDX}, 3
    s_add_u32 s{sRB}, s{sRB}, s6
    s_mul_i32 s{sFS}, s5, 7
    s_lshr_b32 s6, s{sIDX}, 2
    s_add_u32 s{sFS}, s{sFS}, s6
    v_lshrrev_b32 v98, 4, v{vLANE}
    s_lshr_b32 s4, s{sW}, 1
    s_and_b32 s6, s{sW}, 1
    v_and_b32 v99, 1, v98
    v_lshlrev_b32 v99, 1, v99
    v_xor_b32 v99, v7, v99
    v_mul_u32_u24 v100, {F*2}, v6
    v_lshl_add_u32 v99, v99, 4, v100
    s_mul_i32 s6, s6, {32*F*2}
    s_lshl_b32 s7, s{sFS}, 7
    s_add_u32 s6, s6, s7
    v_add_u32 v{vWD}, s6, v99
    v_xor_b32 v99, 64, v{vWD}
    v_add_u32 v{vWD+1}, {8*F*2 - 1024}, v99
    v_add_u32 v{vWD+2}, {2*(8*F*2 - 1024)}, v{vWD}
    v_add_u32 v{vWD+3}, {3*(8*F*2 - 1024)}, v99
    s_lshl_b32 s{sG1S}, s{sRB}, 2
    s_add_u32 s{sG1S}, s{sG1S}, s{sW}
    s_lshl_b32 s7, s{sG1S}, 16
    v_xor_b32 v99, v7, v98
    v_lshlrev_b32 v99, 4, v99
    v_lshl_add_u32 v99, v6, 10, v99
    v_add_u32 v{vXD}, s7, v99
    v_xor_b32 v99, 64, v{vXD}
    """)
    for j in range(1, 8):
        r.append(f"v_add_u32 v{vXD+j}, {j*8192 - (j%4)*1024}, v{99 if j & 1 else vXD}")
    xr = OPT.get("xr", "1")
    if xr == "1":
        rot = f"s_lshl_b32 s{sXK}, s{sRB}, 7"
    elif xr == "2":
        rot = f"s_lshl_b32 s6, s{sFS}, 2\ns_add_u32 s6, s6, s{sRB}\ns_and_b32 s6, s6, 7\ns_lshl_b32 s{sXK}, s6, 7"
    else:
        par = f"s_xor_b32 s7, s{sXCD}, s5" if xr == "4" else f"s_mov_b32 s7, s{sXCD}"
        rot = (f"s_add_u32 s6, s{sFS}, s{sRB}\ns_and_b32 s6, s6, 3\ns_lshl_b32 s6, s6, 1\n{par}\ns_and_b32 s7, s7, 1\n"
               f"s_add_u32 s6, s6, s7\ns_lshl_b32 s{sXK}, s6, 7")
    r += lines(f"""
    s_lshl_b32 s{sXM}, s{sW}, 13
    s_lshl_b32 s{sWM}, s{sW}, 12
    s_add_u32 s{sWM}, s{sWM}, 32768
    {rot}
    s_mov_b32 s{rW+2}, {W_BYTES}
    s_cmp_eq_u32 s4, 0
    s_waitcnt lgkmcnt(0)
    s_cselect_b32 s{rW}, s36, s38
    s_cselect_b32 s{rW+1}, s37, s39
    """)
    return r


def g1_setup():
    r = lines(f"""
    v_lshrrev_b32 v102, 4, v{vLANE}
    v_and_b32 v103, 15, v{vLANE}
    v_bfe_u32 v98, v{vLANE}, 1, 3
    v_xor_b32 v98, v102, v98
    v_lshlrev_b32 v98, 4, v98
    v_lshl_add_u32 v98, v103, 7, v98
    s_lshl_b32 s4, s{sW}, 13
    v_add_u32 v{vXB}, s4, v98
    v_xor_b32 v{vXB+1}, 64, v{vXB}
    v_add_u32 v{vXA}, {2*SLOT}, v{vXB}
    v_add_u32 v{vXA+1}, {2*SLOT}, v{vXB+1}
    v_and_b32 v99, 3, v6
    v_bfe_u32 v100, v{vLANE}, 2, 2
    v_lshlrev_b32 v98, 10, v102
    v_lshl_add_u32 v98, v100, 7, v98
    v_and_b32 v101, 3, v{vLANE}
    v_lshl_add_u32 v98, v101, 3, v98
    v_lshl_add_u32 v98, v99, 5, v98
    v_add_u32 v{vWB}, 32768, v98
    v_xor_b32 v{vWB+1}, 32, v{vWB}
    v_xor_b32 v{vWB+2}, 64, v{vWB}
    v_xor_b32 v{vWB+3}, 96, v{vWB}
    v_add_u32 v{vWA}, {2*SLOT}, v{vWB}
    v_add_u32 v{vWA+1}, {2*SLOT}, v{vWB+1}
    v_add_u32 v{vWA+2}, {2*SLOT}, v{vWB+2}
    v_add_u32 v{vWA+3}, {2*SLOT}, v{vWB+3}
    s_lshl_b32 s4, s{sW}, 5
    v_xor_b32 v{vCL}, s4, v{vWB}
    s_lshl_b32 s4, s{sG1S}, 2
    s_lshr_b32 s5, s{sXCD}, 1
    s_add_u32 s4, s4, s5
    s_lshl_b32 s4, s4, 7
    s_add_u32 s{sF1}, s4, {FL_H}
    s_lshl_b32 s5, s{sFS}, 2
    s_mul_i32 s4, s{sG1S}, 224
    s_add_u32 s4, s4, s5
    s_lshl_b32 s{sHS}, s4, 10
    s_add_u32 s{sHS+1}, s{sHS}, {112*1024}
    v_lshlrev_b32 v{vHO}, 4, v103
    v_lshl_add_u32 v{vHO}, v102, 9, v{vHO}
    s_lshl_b32 s{sG1S}, s{sG1S}, 9
    s_add_u32 s{sG1S}, s{sG1S}, {WS_ST}
    v_lshlrev_b32 v{vG1S}, 3, v103
    v_lshlrev_b32 v{vCA}, 31, v4
    v_lshl_add_u32 v{vCA}, v102, 11, v{vCA}
    v_add_u32 v{vCA}, v{vCA}, v{vG1S}
    s_lshl_b32 s6, s{sFS}, 12
    s_add_u32 s6, s6, {WS_CS}
    s_lshl_b32 s4, s{sW}, 10
    s_add_u32 s{sCS}, s6, s4
    s_add_u32 s{sCS+2}, s4, {CSL}
    s_lshl_b32 s4, s{sW}, 9
    s_add_u32 s6, s6, s4
    s_lshr_b32 s4, s{sRB}, 1
    s_lshl_b32 s4, s4, 7
    s_and_b32 s5, s{sRB}, 1
    s_lshl_b32 s5, s5, 2
    s_add_u32 s4, s4, s5
    s_add_u32 s{sCS+1}, s6, s4
    """)
    return r


def g1_acc(j, t, mat):
    return ACC1 + (2 * j + (t >> 1)) * 16 + 8 * mat + 4 * (t & 1)


def g1_reads(step):
    st, k2, fr = step >> 1, step & 1, FR[step & 1]
    slot = (st + 1) % 3
    xa, wa, o = (vXA, vWA, 0) if slot == 2 else (vXB, vWB, slot * SLOT)
    x = [DS(f"ds_read_b128 {rg(fr, 4*j, 4)}, v{xa+k2} offset:{o + j*2048}") for j in range(4)]
    w = [DS(f"ds_read_b64_tr_b16 {rg(fr, 16 + 4*q + 2*e, 2)}, v{wa+(q>>1)} offset:{o + (q&1)*8192 + k2*4096 + e*512}", f"g1f{step}")
         for q in range(8) for e in range(2)]
    return w[:2] + x + w[2:]


def g1_mfmas(step):
    fr, m = FR[step & 1], []
    for q in range(8):
        for j in range(4):
            acc = vr(g1_acc(j, q >> 1, q & 1), 4)
            m.append(f"v_mfma_f32_16x16x32_bf16 {acc}, {rg(fr, 16 + 4*q, 4)}, {rg(fr, 4*j, 4)}, {'0' if step == 0 else acc}")
    return m


def g1_dmas(st):
    slot = ((st + 1) % 3) * SLOT
    d = []
    for j in range(4):
        pre = [f"s_add_u32 m0, s{sWM}, {slot}", f"s_mul_i32 s{sWK}, s{sXK}, {F}"] if j == 0 else []
        post = [f"s_add_u32 m0, s{sXM}, {slot}"] if j == 3 else []
        d.append(pre + [VM(f"buffer_load_dwordx4 v{vWD+j}, {srd(rW)}, s{sWK} offen offset:{j*1024} lds", f"w{st}" if j == 3 else None)] + post)
    for j in range(8):
        post = [f"s_add_u32 m0, s{sXM}, {slot + 4096}"] if j == 3 else []
        if j == 7:
            post = [f"s_add_u32 s{sXK}, s{sXK}, 128", f"s_and_b32 s{sXK}, s{sXK}, 1023"]
        d.append([VM(f"buffer_load_dwordx4 v{vXD+j}, {srd(rX)}, s{sXK} offen offset:{(j%4)*1024} lds", f"st{st}" if j == 7 else None)] + post)
    return d


def colsum():
    T, ONE, R = 128, 144, 148
    r = [f"v_mov_b32 v{ONE+j}, 0x3f803f80" for j in range(4)] + [WAIT("w0"), "s_barrier"]
    r += [DS(f"ds_read_b64_tr_b16 {vr(T+4*q+2*e, 2)}, v{vCL} offset:{SLOT + q*4096 + e*512}", "csr") for q in range(4) for e in range(2)]
    m = [WAIT("csr")]
    m += [f"v_mfma_f32_16x16x32_bf16 {vr(R+4*(q>>1),4)}, {vr(ONE,4)}, {vr(T+4*q,4)}, {vr(R+4*(q>>1),4) if q & 1 else '0'}" for q in range(4)]
    f = lines(f"""
    v_cmp_gt_u32 s[4:5], 16, v{vLANE}
    v_add_u32 v{vCL}, {CSL}, v{vL8}
    s_nop 0
    v_cndmask_b32 v{R}, v{R+4}, v{R}, s[4:5]
    v_cvt_pk_bf16_f32 v{R+1}, v{R}, v{R}
    v_and_b32 v{R+1}, 0xffff0000, v{R+1}
    v_sub_f32 v{R+1}, v{R}, v{R+1}
    v_cvt_pk_bf16_f32 v43, v{R}, v{R+1}
    """) + [VM(f"buffer_store_dword v43, v{vCA}, {srd(rWS)}, s{sCS+1} offen {SC}")]
    return r, m, f


def need_setup(a, dests):
    for d in dests:
        assert any(x.split()[1:2] == [d] for x in a.lines), d


def gemm_role(a):
    a.put(g1_dma_setup())
    a.put(stamp(0))
    d0, d1 = g1_dmas(0), g1_dmas(1)
    n_first = int(OPT.get("nfirst", 5))
    n_late = int(OPT.get("nlate", 0))
    a.put(stats_loads() + [x + ["s_nop 0"] if isinstance(x[-1], str) else x for x in d0[:n_first]])
    DEFER = OPT.get("defer", "end")
    su = g1_setup() + setup_common(None if DEFER == "no" else "early")
    cut = int(OPT.get("sucut", 190))
    a.put(su[:cut])
    a.put(stamp(1))
    rest = d0[n_first:] + d1[:12 - n_late]
    sc, (c_r, c_m, c_f) = stats_compute(), colsum()
    w0, w1 = int(OPT.get("walk0", 0)), int(OPT.get("walk1", 34))
    fill = su[cut:] + sc[:w0] + [visit("A")] + sc[w0:w1] + [visit("B")] + sc[w1:50] + [c_r] + sc[50:66] + [c_m] + sc[66:-1] + c_f[:-1]
    init_st = c_f[-1:] + sc[-1:]
    SIG = int(OPT.get("sig", 3))
    if SIG == 1:
        fill += init_st
    a.weave(rest, spread(fill, len(rest), 0, len(rest) - 1))
    if WALK:
        a("s_branch L_main\nL_return:\ns_setpc_b64 s[6:7]\n.p2align 12\nL_main:")
    a.put([WAIT("st0"), "s_barrier", stamp(2)])
    a.put(g1_reads(0))

    cu, co, ce = conv_dma(pad=False)
    EBAR = int(OPT.get("ebar", 11)) if NPRE else 0
    CF = 224
    handed = [[VM(f"buffer_load_dwordx2 {vr(vMS+2*j,2)}, v{vG1S}, {srd(rWS)}, s{sG1S} offen offset:{128*j} {SC}", "g1st") for j in range(4)] +
              [f"s_mov_b32 m0, s{sCS+2}", VM(f"buffer_load_dwordx4 v{vL16}, {srd(rWS)}, s{sCS} offen {SC} lds", "csf")]]
    queue = [(x, 0, None) for x in d1[12 - n_late:]] + ([(init_st, 0, None)] if SIG == 3 else [])

    def push(items, earliest, g=None):
        queue.extend((x, earliest, g if i == len(items) - 1 else None) for i, x in enumerate(items))

    prepos = [int(c) for c in OPT.get("prepos", "5")]
    assert len(prepos) == NPRE
    for k in range(1, 8):
        if k > 1:
            push(g1_dmas(k), max(0, 2 * k - 5))
        if SIG > 3 and k == (SIG - 1) // 2:
            push([init_st], 0)
        g = prepos.index(k) if k in prepos else -1
        if 0 <= g < NPRE:
            w = wd_dma(g)
            w[0] = [lambda e, g=g: need_setup(e, [f"s{GT[g]},", f"v{vDS+1},", f"v{vDD+3},"])] + w[0]
            if g:
                w[0] = [WAIT(f"wr{g-1}")] + w[0]
            push(w, 0, g)
            if g == 0:
                push([[f"v_lshrrev_b32 v47, 2, v{vLANE}", "v_lshlrev_b32 v47, 7, v47",
                       VM(f"buffer_load_dword v47, v47, {srd(rSK)}, s{sSKO} offen")] + param_loads()], 0)
        if k == int(OPT.get("epos", 7)) and EBAR < 13:
            push(ce + ([] if NPRE else [param_loads()]), EBAR)
    for g in range(NPRE, G_G1 + 1):
        if g == NPRE + int(OPT.get("hpos", 3)):
            push(handed + (ce if EBAR == 13 else []), 13)
        if g < G_G1:
            push(wd_dma(g), 11 if g < NPRE + 3 else 13, g)
    push(co, 15)
    push(cu, 16)
    plan = [int(c, 16) for c in OPT.get("plan", "8866666777777777f")]
    lag = int(OPT.get("rlag", 8))
    for i, (_, _, g) in enumerate(list(queue)):
        if g is not None and g < NPRE + 3:
            for k in range(4):
                pos = min(i + lag, len(queue) - 4) + k
                it, e, g2 = queue[pos]
                queue[pos] = ([WAIT(f"wd{g}")] * (k == 0) + wd_reads(g)[2*k:2*k+2] + it, e, g2)

    def take(step):
        items = []
        while queue and len(items) < plan[step] and queue[0][1] <= step:
            items.append(queue.pop(0)[0])
        return items

    for step in range(16):
        st = step >> 1
        if step >= 11:
            a.put(stamp({11: 5, 12: 6, 13: 7, 14: 9, 15: 12}[step], "g7"))
        if step == 15:
            a.put([WAIT("g1f15", "csf"), stamp(13, "g7"), "s_barrier", stamp(10, "g7")])
        elif step & 1:
            wt = [f"st{st+1}", f"g1f{step}"] + ([f"wr{NPRE-1}"] if step == EBAR and NPRE else [])
            a.put([WAIT(*wt), "s_barrier", stamp([3, 4, 5, 6, 7, 8, 9][st], True)])
        else:
            a.put(WAIT(f"g1f{step}"))
        if step == 13:
            a.put([scheck(S_INIT, [82, 83], 0x80), stamp(8, "g7")])
        if step == 13 and NPRE:
            assert f"wr{NPRE-1}" in a.tags
        streams = []
        if step < 15:
            dummy = [DS(f"ds_read_b32 v0, v{vL8}")] if SIG <= step <= 9 else []
            streams.append((g1_reads(step + 1) + dummy, 0, 26))
        else:
            cr = [DS(f"ds_read_b64 {ar(CF+2*q,2)}, v{vCL} offset:{((q&1)*4 + (q>>1))*512}") for q in range(8)]
            streams.append((cr, 0, 26))
            c = [WAIT("g1st")]
            for j in range(4):
                c += [f"v_cvt_pk_bf16_f32 v{vBM+2*j}, -v{vMS+2*j}, -v{vMS+2*j}", f"v_mov_b32 v{vBM+2*j+1}, v{vBM+2*j}"]
            streams.append((c + conv_zero_addr() + ["v_mov_b32 v6, 0"], 8, 28))
        mine = take(step)
        streams.append((mine, 0, 31))
        if step == SIG:
            skip = a.label("sig")
            streams.append((["s_and_b32 s83, s2, 1", "s_lshl_b32 s83, s83, 7", "s_mov_b32 s79, 1",
                             ATOM((f"s_cmp_lg_u32 s{sW}, 0", f"s_cbranch_scc1 {skip}", f"s_atomic_add s79, s[{rDBG}:{rDBG+1}], s83", f"{skip}:"))], 0, 6))
        if step == 12:
            streams.append((S_INIT, 0, 2))
        if step == 15:
            streams.append((S_KV, int(OPT.get("pkv", 2)), int(OPT.get("pkv", 2)) + 8))
        chunk = spread(setup_common("late"), 16, int(OPT.get("df0", 2)), int(OPT.get("df1", 11)))[step]
        if DEFER == "sh":
            streams.append((chunk, 0, 30))
        fl, over = schedule(32, streams, 8, 2 if len(flat(mine)) > 14 else 1)
        if DEFER == "end":
            fl[15] = fl[15] + chunk
        if over:
            print(f"step {step}: {over} left over", file=sys.stderr)
        a.weave(g1_mfmas(step), fl)
        if "x_idle" in OPT:
            for seg in OPT["x_idle"].split(","):
                lo, hi, amt = (int(v) for v in seg.split(":"))
                if lo <= step <= hi:
                    a(f"s_sleep {amt}")
    a.put([stamp(11, "g7"), scheck(S_KV, KVR, 1), "s_barrier", stamp(3), stamp(12, True)])
    c = []
    for j in range(4):
        den, c1 = vMS + 2 * j + 1, vGC + 2 * j
        c += lines(f"""
        v_rcp_f32 v{c1}, v{den}
        v_mul_f32 v{vI2+j}, v{den}, v{den}
        v_mul_f32 v{c1+1}, v{c1}, v{c1}
        v_mul_f32 v{c1+1}, v{c1+1}, v{c1}
        v_mul_f32 v{c1}, {hx(f2u(C1))}, v{c1}
        v_mul_f32 v{c1+1}, {hx(f2u(C2))}, v{c1+1}
        """)
    ms = []
    for j in range(4):
        for q in range(8):
            acc = vr(g1_acc(j, q >> 1, q & 1), 4)
            ms.append(f"v_mfma_f32_16x16x16_bf16 {acc}, {ar(CF+2*q,2)}, {vr(vBM+2*j,2)}, {acc}")
    last = take(16)
    fl, over = schedule(32, [(conv_zero(6), 0, 28), (last, 0, 31), (c, 0, 28)], 8, 2)
    assert not queue
    a.weave(ms, fl)
    a.put(stamp(4))
    plan = GPLAN
    extra = {"-": [[], [], [], []]}
    for n in range(8):
        jt, tp = n >> 1, n & 1
        c1, acc, T = vGC + 2 * jt, ACC1 + n * 16, 96 + 8 * tp
        i2, hi = vr(vI2 + (jt & 2), 2), jt & 1
        ex = wd_dma(G_G1 + plan[:n].count("w"), None, True) if plan[n] == "w" else extra[plan[n]]
        ex = [list(flat([list(y) if isinstance(y, ATOM) else y for y in x])) for x in ex]
        if n == 7:
            ex = [[], [], [], [WAIT("cv_dma"), "s_barrier"] + conv_reads(0)[:NHEAD]]
        E = range(0, 8, 2)
        if n == (0 if plan[0] == "w" else 1):
            a.put(WAIT("allds"))
        a.put([f"v_pk_mul_f32 {vr(T+j,2)}, {vr(acc+j,2)}, {vr(acc+j,2)}" for j in E])
        a.put([f"v_pk_fma_f32 {vr(T+j,2)}, {vr(T+j,2)}, {vr(c1,2)}, {vr(c1,2)} op_sel:[0,1,0] op_sel_hi:[1,1,0]" for j in E])
        a.put([f"v_pk_mul_f32 {vr(T+j,2)}, {vr(T+j,2)}, {vr(acc+j,2)}" for j in E] + ex[0])
        a.put([f"v_exp_f32 v{T+j}, v{T+j}" for j in range(8)] + ex[1])
        a.put([f"v_pk_mul_f32 {vr(acc+j,2)}, {vr(acc+j,2)}, {vr(acc+8+j,2)}" for j in E])
        a.put([f"v_pk_fma_f32 {vr(T+j,2)}, {vr(T+j,2)}, {i2}, {i2} op_sel:[0,{hi},{hi}] op_sel_hi:[1,{hi},{hi}]" for j in E] + ex[2])
        a.put([f"v_rcp_f32 v{T+j}, v{T+j}" for j in range(8)] + ex[3])
        a.put([f"v_pk_mul_f32 {vr(acc+j,2)}, {vr(acc+j,2)}, {vr(T+j,2)}" for j in E])
        a.put([f"v_cvt_pk_bf16_f32 v{acc+8+j}, v{acc+2*j}, v{acc+2*j+1}" for j in range(4)])
        a.put(VM(f"buffer_store_dwordx4 {vr(acc+8,4)}, v{vHO}, {srd(rWS)}, s{sHS+(jt>>1)} offen offset:{tp*2048 + (jt&1)*256} {SC}", f"h_st{n}"))
        if SPLIT and n == int(OPT.get("pub1", 7)):
            a.put([WAIT("h_st3")] + publish(sF1))
        a.put(stamp([5, 6, 7, 8, 9, 12, 13, 11][n], "ge"))

    a.put(stamp(5))


def service_role(a):
    TAPB = 8 * KVT
    a.put(lines(f"""
    s_sub_u32 s{sFS}, s2, 224
    s_lshl_b32 s6, s{sFS}, 16
    s_lshr_b32 s7, s{sW}, 1
    s_and_b32 s4, s{sW}, 1
    v_lshlrev_b32 v8, 10, v6
    v_lshl_add_u32 v8, v7, 4, v8
    v_add_u32 v8, s6, v8
    v_subrev_u32 v12, 8192, v8
    s_mul_i32 s5, s4, 3
    s_add_u32 s5, s5, 5
    s_cmp_eq_u32 s{sFS}, 0
    s_cselect_b32 s5, 8, s5
    v_cmp_le_u32 vcc, s5, v6
    v_add_u32 v9, {8192 - KVP}, v8
    v_bfrev_b32 v29, 1
    v_cndmask_b32 v12, v29, v12, vcc
    v_add_u32 v10, {2*(8192 - KVP)}, v8
    s_mul_i32 s{sXM}, s{sW}, {VB}
    s_lshl_b32 s{sXK}, s7, 7
    s_mov_b32 s{rW+2}, {X_BYTES}
    s_lshl_b32 s5, s{sW}, 10
    v_add_u32 v13, s5, v{vL16}
    s_add_u32 m0, s5, {TAPB}
    s_cmp_eq_u32 s4, 0
    s_waitcnt lgkmcnt(0)
    s_cselect_b32 s{rW}, s{pKV}, s{pKV+2}
    s_cselect_b32 s{rW+1}, s{pKV+1}, s{pKV+3}
    """))
    a.put(stamp(0))
    nt = OPT.get("kvpol", "nt").replace("none", "")

    def tile_dma(tag):
        r = [[f"s_mov_b32 m0, s{sXM}", f"s_add_u32 s{sWM}, s{sXK}, {3*8192}",
              VM(f"buffer_load_dwordx4 v12, {srd(rW)}, s{sXK} offen lds")]]
        for j in range(8):
            q, pre = j % 3, []
            so = sXK if j < 3 else sWM
            if q == 0:
                pre = [f"s_add_u32 m0, s{sXM}, {(j+1)*KVP}", f"s_add_u32 s{sWM}, s{sWM}, {3*8192}" if j == 6 else "s_nop 0"]
            r.append(pre + [VM(f"buffer_load_dwordx4 v{8+q}, {srd(rW)}, s{so} offen offset:{q*KVP} {nt} lds", tag)])
        r[-1] += [f"s_add_u32 s{sXM}, s{sXM}, {2*KVT}", f"s_add_u32 s{sXK}, s{sXK}, 256"]
        return r

    if "x_nold" in OPT:
        a("v_mov_b32 v8, v29\nv_mov_b32 v9, v29\nv_mov_b32 v10, v29\nv_mov_b32 v12, v29")
    d0, n0 = tile_dma("kv0"), 5
    a.put(stats_loads() + [VM(f"global_load_lds_dwordx4 v13, s[{pSH}:{pSH+1}]")] + d0[:n0])
    a.put(lines(f"""
    s_lshl_b32 s5, s{sW}, 3
    v_add_u32 v11, s5, v6
    v_lshlrev_b32 v14, 5, v11
    v_add_u32 v14, {TAPB}, v14
    v_sub_u32 v13, 7, v7
    v_mul_u32_u24 v13, {KVP}, v13
    v_lshl_add_u32 v13, v6, 3, v13
    s_mul_i32 s5, s7, {KVT}
    s_lshl_b32 s4, s4, 6
    s_add_u32 s5, s5, s4
    v_add_u32 v13, s5, v13
    v_mul_u32_u24 v15, {4*KVP_COPY}, v11
    v_lshl_add_u32 v15, v7, 4, v15
    s_lshl_b32 s5, s{sFS}, 7
    s_sub_u32 s{sHS}, {WS_KV + 4096 - 128}, s5
    s_lshl_b32 s4, s{sW}, 12
    s_add_u32 s4, s4, s5
    s_add_u32 s{sF1}, s4, {FL_K}
    """))
    a.put(setup_common(0) + [visit("S")])
    d01 = d0[n0:] + tile_dma("kv1")
    a.weave(d01, spread(stats_compute(), len(d01), 0, int(OPT.get("svs", 6))))
    a.put(stamp(2))
    RAW, TR, TP, UNP, U, OUT = 64, 16, 32, 128, 172, 192

    def tile_reads():
        r = [DS(f"ds_read_b128 {vr(TR+4*h,4)}, v14 offset:{16*h}") for h in range(2)]
        for jj in range(19):
            rho, base = (5 + jj, KB) if jj < 11 else (jj - 3, VB)
            r.append(DS(f"ds_read_b64 {vr(RAW+2*jj,2)}, v13 offset:{base + (rho >> 3) * KVP + (rho & 7) * 128}"))
        return r + [f"v_add_u32 v13, {2*KVT}, v13", "v_add_u32 v14, 1024, v14"]

    def pair(h):
        r = []
        for j in range(10):
            for ch in range(2):
                r.append(f"v_perm_b32 v{UNP+2*j+ch}, v{RAW+2*j+h}, v{RAW+2*(j+1)+h}, s{80+ch}")
        for j in range(11, 19):
            r += [f"v_lshlrev_b32 v{UNP+2*j}, 16, v{RAW+2*j+h}", f"v_and_b32 v{UNP+2*j+1}, s83, v{RAW+2*j+h}"]
        if h:
            r += [f"v_pk_mov_b32 {vr(TP+2*ch,2)}, {vr(TR+4+2*ch,2)}, {vr(TR+4+2*ch,2)} op_sel:[0,1]" for ch in range(2)]
        tp = TP if h else TR
        m = [f"v_dot2_f32_bf16 v{U+2*jj+ch}, v{UNP+2*jj+ch}, v{tp+2*ch+1}, 0" for jj in range(8) for ch in range(2)]
        m += [f"v_dot2_f32_bf16 v{U+2*jj+ch}, v{UNP+2*(jj+2)+ch}, v{tp+2*ch}, v{U+2*jj+ch}" for jj in range(8) for ch in range(2)]
        m += [f"v_pk_mul_f32 {vr(U+2*jj,2)}, {vr(U+2*jj,2)}, {vr(UNP+2*(11+jj),2)}" for jj in range(8)]
        st = []
        for ch in range(2):
            o = OUT + 8 * h + 4 * ch
            m += [f"v_cvt_pk_bf16_f32 v{o+e}, v{U+2*(7-2*e)+ch}, v{U+2*(6-2*e)+ch}" for e in range(4)]
            st.append([VM(f"buffer_store_dwordx4 {vr(o,4)}, v15, {srd(rWS)}, s{sHS} offen {SC}"),
                       f"s_add_u32 s{sHS}, s{sHS}, {KVP_COPY if 2*h+ch < 3 else 125*KVP_COPY}"])
        return r, m, st

    def mix(alu, mem):
        g = spread(alu, len(mem) + 1)
        a.put(g[0])
        a.weave(mem, g[1:])

    (u0, m0_, st0), (u1, m1_, st1) = pair(0), pair(1)
    pad = lines(f"""
    s_mov_b32 s83, 0xffff0000
    s_mov_b32 s80, 0x05040100
    s_mov_b32 s81, 0x07060302
    """)
    a.put([WAIT("kv0"), "s_barrier"] + tile_reads() + pad)
    for it in range(4):
        dm = tile_dma(f"kv{it+2}") if it < 2 else []
        if it == 2:
            dm = [[]]
            if "svt" in OPT:
                a.put(lines(f"""
                s_lshl_b32 s4, s{sFS}, 2
                s_add_u32 s4, s4, s{sW}
                s_mul_i32 s4, s4, {112*128}
                v_min_u32 v27, 55, v{vLANE}
                v_lshlrev_b32 v27, 7, v27
                s_add_u32 s5, s4, {56*128}
                """))
                dm += [[VM(f"buffer_load_dword v25, v27, {srd(rWD)}, s4 offen")], [], [], [], [],
                       [VM(f"buffer_load_dword v26, v27, {srd(rWD)}, s5 offen")]]
        a.put([WAIT("allds"), stamp([5, 7, 9, 13][it], "sv")])
        mix(u0 + m0_, (st1 if it else []) + dm[:5])
        mix(u1, st0 + dm[5:6])
        a.put(stamp([6, 8, 12, 10][it], "sv"))
        if it < 3:
            a.put([WAIT(f"kv{it+1}"), "s_barrier"] + tile_reads())
        if it == 0:
            a.put(init_signal())
        mix(m1_, dm[6:])
    a.put(st1)
    a.put(stamp(3))
    su = setup_common(1)
    a.put(su[:110] + [WAIT("allvm"), stamp(1)] + publish(sF1))
    a.put(S_INIT + su[110:] + ["s_barrier", stamp(4)])
    cu, co, ce = conv_dma()
    early = EARLY_SVC
    a.put(param_loads() + co + ce + [wd_dma(g, g, True) for g in range(early, 3)] + [visit("C")])
    a.put([wd_dma(g, None, True) for g in range(G_AG, min(G_LD, G_AG + 3))])
    for g in range(3):
        a.put([WAIT(f"wd{g}")] + wd_reads(g, g))
    a.put([scheck(S_INIT, [82, 83], 0x80)] + S_KV + [wd_dma(g, g - 3, True) for g in range(3, G_AG)])
    a.put([scheck(S_KV, KVR, 1), "s_barrier"])
    a.put(cu + conv_zero_addr() + ["v_mov_b32 v12, 0"] + conv_zero(12))
    for g in range(3, G_AG):
        a.put([WAIT(f"wd{g}")] + wd_reads(g, g - 3))
    a.put([WAIT("allds")] + [wd_dma(g, None, True) for g in range(G_AG + 3, G_LD)])
    a.put([WAIT("allvm", "allds"), "s_barrier"] + conv_reads(0)[:NHEAD])
    a.put(stamp(5))


HR, NH = 192, 16
HPOL = OPT.get("x_hpol", SC).replace("none", "")


def h_load(n):
    st, ks = divmod(n, 28)
    return [VM(f"buffer_load_dwordx4 {vr(HR + 4*(n % NH), 4)}, v{6+st}, {srd(rWS)}, s{GT[ks >> 1]} offen offset:{(ks%2)*1024} {HPOL}",
               f"h{n}", after=f"wd{ks >> 1}")]


def wd_conv_stream():
    items = [wd_dma(g) for g in range(G_LD, 14)]
    pos = {g: 4 * (g - G_LD) for g in range(G_LD, 14)}
    q = sum(items, [])
    pre = [[] for _ in range(len(q) + 1)]
    slot = 0
    for g in range(G_AG, 10):
        lo = pos[g] + 3 + 7 if g >= G_LD else 0
        assert g + 6 >= G_LD
        hi = pos[g + 6] - 1 if g + 6 < 14 else len(q)
        slot = min(max(slot, lo), max(hi - 1, 0))
        assert g < G_LD or slot > pos[g] + 3
        rd = wd_reads(g)
        pre[slot] += [WAIT(f"wd{g}")] + rd[:4]
        slot = min(slot + 1, max(hi, slot))
        pre[slot] += rd[4:]
        if g + 6 < 14:
            pre[pos[g + 6]].append(WAIT(f"wr{g}"))
        slot += 1
    return sum((pre[i] + (q[i] if i < len(q) else []) for i in range(len(q) + 1)), [])


def conv(a):
    ms = []
    for m in range(4):
        p = m & 1
        for aa in range(8):
            for b in range(8 - aa):
                acc = vr(CACC + 4 * (aa + b), 4)
                c = "0" if (m == 0 and aa == 0) else acc
                ms.append(f"v_mfma_f32_16x16x32_bf16 {acc}, {rg(CUF[p], 4*b, 4)}, {rg(CHF[p], 4*aa, 4)}, {c}")
    NP, NC = int(OPT.get("npub", 48)), int(OPT.get("nchk", 108))
    head = {0: [WAIT("cu1")], 2: [WAIT("cu3")], 8: [WAIT("ch1")], 15: [WAIT("cf0")]}
    head.update({b: [WAIT(f"cu{b}")] for b in (4, 5, 6, 7)})
    head.update({36 * m: [WAIT(f"cf{m}")] for m in (1, 2, 3)})
    head[NP] = head.get(NP, []) + [WAIT("h_st7"), stamp(6)] + publish(sF1, 0x100 if SPLIT else 1)
    head[NC] = head.get(NC, []) + [check(sPH, 7, 0xff), stamp(7)]
    rest = conv_reads(0)[NHEAD:]
    dummy = [DS(f"ds_read_b32 v0, v{vL8}")]
    dterm = [DS(f"ds_read_b128 {vr(96+4*j,4)}, v{vDT} offset:{(3-j)*512}", "dt") for j in range(4)]
    unp = [WAIT("dt"), f"v_lshlrev_b32 v{vDV}, 16, v{vDV}"]
    unp += [f"v_perm_b32 v{8+4*j+r}, v{96+4*j+3-r}, v{96+4*j+3-r}, v{vPS}" for j in range(4) for r in range(4)]
    streams = [(rest + conv_reads(1) + dummy, 0, len(rest) + 17), (conv_reads(2) + dummy + dummy, 36, 64), (conv_reads(3) + dummy, 72, 100),
               (wd_conv_stream(), int(OPT.get("wd0", 14)), int(OPT.get("wd1", 92))),
               (peek(sPH), NC - int(OPT.get("php", 34)), NC - int(OPT.get("php", 34)) + 1),
               CHAIN([([f"v_add_u32 v{6+p}, s{sHL+p}, v{vL16}" for p in range(2)], 28, 32), ([h_load(n) for n in range(NH - 1)], NC, 143)]), CHAIN([(dterm, 108, 113), (unp, 120, 140)])]
    fl, over = schedule(144, streams, 8, int(OPT.get("cmem", 2)))
    if over:
        print(f"conv: {over} left over", file=sys.stderr)
    a.weave([head.get(i, []) + [x] for i, x in enumerate(ms)], fl)
    a.put(stamp(8))


ACC2 = 128
XR, SR, XF, YV, PB = 32, 40, 8, 96, 64


def part_writes(p):
    return [DS(f"ds_write_b128 v{vPW+rq}, {vr(ACC2 + (p*2+u)*16 + 4*rq, 4)} offset:{PART[p] + u*128}", f"pw{p}")
            for u in range(2) for rq in range(4)]


def part_reads(p):
    pre = [f"v_add_u32 v{vPR+e}, {hx(PART[1] - PART[0])}, v{vPR+e}" for e in range(2)] if p else []
    return pre, [DS(f"ds_read_b128 {vr(PB + 8*w + 4*e, 4)}, v{vPR+e} offset:{w*WDW}", f"pr{p}") for w in range(4) for e in range(2)]


XN = 24


def gate_first():
    b, r = PB, []
    for o in (8, 16, 24):
        r += [f"v_add_f32 v{b+j}, v{b+j}, v{b+o+j}" for j in range(8)]
    r += [f"v_mul_f32 v{b+8+j}, {hx(f2u(-1.4426950408889634))}, v{b+j}" for j in range(8)]
    r += [f"v_exp_f32 v{b+8+j}, v{b+8+j}" for j in range(8)]
    r += [f"v_mul_f32 v{XN+j}, v{XN+j}, v{b+j}" for j in range(8)]
    r += [f"v_add_f32 v{b+8+j}, 1.0, v{b+8+j}" for j in range(8)]
    r += [f"v_rcp_f32 v{b+8+j}, v{b+8+j}" for j in range(8)]
    r += [f"v_mul_f32 v{XN+j}, v{XN+j}, v{b+8+j}" for j in range(8)]
    return r


def out_store(p, src, t=44):
    return [f"v_cvt_pk_bf16_f32 v{t+j}, v{src+2*j}, v{src+2*j+1}" for j in range(4)] + \
        [VM(f"buffer_store_dwordx4 {vr(t,4)}, v{vXO}, {srd(rOUT)}, s{sXO+p} offen {OPT.get('outpol', SC).replace('none', '')}")]


def finalize_last():
    b, r, E = PB, [], range(0, 8, 2)
    for j in E:
        r += [f"v_pk_add_f32 {vr(b+j,2)}, {vr(b+j,2)}, {vr(b+8+j,2)}", f"v_pk_add_f32 {vr(b+16+j,2)}, {vr(b+16+j,2)}, {vr(b+24+j,2)}"]
    r += [f"v_pk_add_f32 {vr(b+j,2)}, {vr(b+j,2)}, {vr(b+16+j,2)}" for j in E]
    r += [f"v_pk_mul_f32 {vr(b+8+j,2)}, {vr(b+j,2)}, v[4:5] op_sel_hi:[1,0]" for j in E]
    r += [f"v_exp_f32 v{b+8+j}, v{b+8+j}" for j in range(8)]
    r += [f"v_pk_mul_f32 {vr(b+j,2)}, {vr(b+j,2)}, {vr(YV+8+j,2)}" for j in E]
    r += [f"v_pk_add_f32 {vr(b+8+j,2)}, {vr(b+8+j,2)}, 1.0 op_sel_hi:[1,0]" for j in E]
    r += [f"v_rcp_f32 v{b+8+j}, v{b+8+j}" for j in range(8)]
    r += [f"v_pk_fma_f32 {vr(b+j,2)}, {vr(b+j,2)}, {vr(b+8+j,2)}, {vr(XF+8+j,2)}" for j in E]
    return r + out_store(1, b)


def gemm2(a):
    NT = int(OPT.get("ntail", 6))
    order = [(n, u) for n in range(56 - NT) for u in range(2)] + [(n, u) for u in range(2) for n in range(56 - NT, 56)]
    ms = []
    for n, u in order:
        st, ks = divmod(n, 28)
        acc = vr(ACC2 + (st * 2 + u) * 16, 16)
        m = f"v_mfma_f32_32x32x16_bf16 {acc}, {ar(ks*8+u*4,4)}, {vr(HR + 4*(n % NH), 4)}, {'0' if ks == 0 else acc}"
        w = [f"h{n}"] + ([f"wr{ks // 2}"] if st == 0 and ks >= 18 and ks % 2 == 0 else [])
        ms.append([WAIT(*w), m] if u == 0 else [m])
    budget = [20 if g + 1 < 112 and len(ms[g + 1]) > 1 else 24 for g in range(112)]
    NSPLIT = 8

    def exchange(half):
        return [([WAIT("wr8")] + [DS(f"ds_write_b128 v{vRW}, {vr(CACC+16*(1-half)+4*j,4)} offset:{j*1024}", "rw") for j in range(4)] +
                 [DS(f"ds_read_b32 v0, v{vL8}")], 0, NSPLIT),
                ([f"v_fma_f32 v{8+j}, v{8+j}, v{vDV}, v{CACC+16*half+j}" for j in range(16)], 2, NSPLIT)]

    last = int(OPT.get("hlast", 46))
    when = lambda n: 2 * n if n < NSPLIT // 2 else NSPLIT + (n - NSPLIT // 2) * (2 * last - NSPLIT) // (56 - NH - NSPLIT // 2)
    hl = [(h_load(n + NH - 1), when(n), when(n) + 1) for n in range(56 - NH + 1)]
    if SPLIT:
        k2, p2 = 28 - (NH - 1), int(OPT.get("ph2", 0))
        hl[p2] = (hl[p2][0] + peek(sPH),) + hl[p2][1:]
        hl[k2 - 1] = (hl[k2 - 1][0] + [check(sPH, 0x700)],) + hl[k2 - 1][1:]
    odd, join = a.label("odd"), a.label("join")
    a(f"s_cmp_eq_u32 s{sMH}, 0\ns_cbranch_scc0 {odd}")
    snap = (a.nvm, a.nds)
    for half, end in ((0, f"s_branch {join}\n{odd}:"), (1, f"{join}:")):
        a.nvm, a.nds = snap
        fl, over = schedule(NSPLIT, [CHAIN(hl[:NSPLIT // 2])] + exchange(half), budget, 3)
        a.weave(ms[:NSPLIT], fl)
        a(end)

    yfin = [ATOM((WAIT("rw"), "s_barrier"))] + [DS(f"ds_read_b128 {vr(96+4*j,4)}, v{vRR} offset:{j*1024}", "rr") for j in range(4)]
    yfin.append(DS(f"ds_read_b32 v0, v{vL8}"))
    yst = [WAIT("rr")]
    for j in range(4):
        yst += [f"v_add_f32 v{8+4*j+r}, v{8+4*j+r}, v{96+4*j+r}" for r in range(4)]
        yst += [f"v_cvt_pk_bf16_f32 v{24+2*j+k}, v{8+4*j+2*k}, v{9+4*j+2*k}" for k in range(2)]
        yst.append(VM(f"buffer_store_dwordx2 {vr(24+2*j,2)}, v{vL8}, {srd(rWS)}, s{sYS} offen offset:{j*512} {SC}", "y_st" if j == 3 else None))
    if "x_noyst" in OPT:
        yst = [x for x in yst if not (isinstance(x, tuple) and x[0] == "vm")] + [lambda e: e.tags.__setitem__("y_st", ("vm", e.nvm - 20))]
    xl = [VM(f"buffer_load_dwordx4 {vr(XR+4*p,4)}, v{vXO}, {srd(rX)}, s{sXO+p} offen") for p in range(2)]
    xl += [VM(f"buffer_load_dwordx2 {vr(SR+2*p,2)}, v{vSO}, {srd(rWS)}, s{sSO+p} offen {SC}", "xs" if p else None) for p in range(2)]
    xs = [WAIT("xs")]
    for p in range(2):
        xs.append(f"v_rcp_f32 v{SR+2*p+1}, v{SR+2*p+1}")
        for j in range(4):
            xs += [f"v_lshlrev_b32 v{XF+8*p+2*j}, 16, v{XR+4*p+j}", f"v_and_b32 v{XF+8*p+2*j+1}, 0xffff0000, v{XR+4*p+j}"]
        xs.append(f"v_mul_f32 v{SR+2*p}, v{SR+2*p}, v{SR+2*p+1}")
    xs += [f"v_fma_f32 v{XN+8*p+j}, v{XF+8*p+j}, v{SR+2*p+1}, -v{SR+2*p}" for p in range(2) for j in range(8)]
    xs += [f"v_mov_b32 v{YV+j}, 0" for j in range(16)] + [f"v_mov_b32 v4, {hx(f2u(-1.4426950408889634))}"]
    YLATE = "yearly" not in OPT
    NF, NY = int(OPT.get("nf", 22)), int(OPT.get("ny", 36 if YLATE else 30))
    LY = int(OPT.get("ly", 13 if YLATE else 10))
    pre1, rd1 = part_reads(1)
    pw1 = part_writes(1)
    dummy = [DS(f"ds_read_b32 v0, v{vL8}", "dm")]
    yend = [ATOM((WAIT("y_dma"), "s_barrier"))]
    yend += [DS(f"ds_read_u16_d16_hi v{YV+8*p+j}, v{vYG+p} offset:{j*128}", f"yg{p}") for p in range(2) for j in range(8)]
    yend += [WAIT("yg0")] + [f"v_fma_f32 v{XN+j}, v{XN+j}, v{YV+j}, v{XF+j}" for j in range(8)] + out_store(0, XN)
    yend += [WAIT("yg1")] + [f"v_mul_f32 v{YV+8+j}, v{YV+8+j}, v{XN+8+j}" for j in range(8)]
    streams = [
        hl[NSPLIT // 2:],
        [(yfin, 9, 12), (yst, 14, 24), (xs, 40, 60), (part_writes(0) + dummy + dummy, 60, 69),
         ([ATOM((WAIT("pw0"), "s_barrier"))] + part_reads(0)[1] + dummy, 71, 74),
         ([WAIT("pr0")] + pre1 + gate_first(), 78, 104 if YLATE else 96)] + ([] if YLATE else [(yend, int(OPT.get("ye", 97)), 108)]),
        [(xl, 8, 16), ([WAIT("wd13")] + sum((wd_reads(g) for g in range(10, 14)), []) + dummy, int(OPT.get("wr0", 28)), 40)],
        [([ATOM([WAIT("y_st")] + publish(sF2))], 2 * NF, 2 * NF + 1), (peek(sPY), 2 * NY, 2 * NY + 1),
         ([check(sPY, 16), f"s_mov_b32 m0, s{sYM}", f"s_add_u32 s4, s{sYD}, {8*KVP_COPY - YP}",
           VM(f"buffer_load_dwordx4 v{vYD}, {srd(rWS)}, s{sYD} offen {SC} lds"),
           VM(f"buffer_load_dwordx4 v{vYD}, {srd(rWS)}, s4 offen offset:{YP} {SC} lds", "y_dma")], 2 * (NY + LY), 2 * (NY + LY) + 3)],
        [([stamp(9)], 24, 25), ([stamp(12)], 56, 57), ([stamp(13)], 84, 85)]]
    def drop(pred):
        for st in streams:
            for k, (it, g0, g1) in enumerate(st):
                st[k] = ([x for x in flat(it) if not pred(x)], g0, g1)

    txt = lambda x: repr(x)
    if "x_nolds" in OPT:
        drop(lambda x: "ds_write_b128" in txt(x) or "pw0" in txt(x) or "pr0" in txt(x) or "ds_read_b128 v[6" in txt(x) or "ds_read_b128 v[7" in txt(x) or "ds_read_b128 v[8" in txt(x) or "ds_read_b128 v[92" in txt(x))
    if "x_noldy" in OPT:
        drop(lambda x: "p_y" in txt(x))
    if "x_noydma" in OPT:
        drop(lambda x: "y_dma" in txt(x) or f"dwordx4 v{vYD}," in txt(x))
    if "x_noout0" in OPT:
        drop(lambda x: "buffer_store_dwordx4" in txt(x))
    if "x_noph2" in OPT:
        drop(lambda x: "p_h2" in txt(x) and "wait" in txt(x))
    if "x_novalu" in OPT:
        drop(lambda x: isinstance(x, str) and x.startswith("v_"))
    streams = [CHAIN((it, g0 - NSPLIT, g1 - NSPLIT) for it, g0, g1 in st) for st in streams]
    fl, over = schedule(112 - NSPLIT, streams, budget[NSPLIT:], 3)
    if over:
        print(f"gemm2: {over} left over", file=sys.stderr)
    early = 4 if NT >= 6 else 0
    if early:
        g_last = 112 - NT - 1 - NSPLIT
        dist = sum(len(flat(fl[g])) + 1 for g in range(g_last, g_last + NT - 3))
        fl[-3] = ([f"s_nop {11 - dist}"] if dist < 12 else []) + pw1[:1] + fl[-3]
        fl[-2] = pw1[1:2] + fl[-2]
        fl[-1] = pw1[2:4] + fl[-1]
    a.weave(ms[NSPLIT:], fl)
    a.put([stamp(10), "s_nop 9"] + pw1[early:])
    if not YLATE:
        a.put([WAIT("pw1"), "s_barrier"] + rd1 + [WAIT("pr1")] + finalize_last())
        return
    fin, E = finalize_last(), range(0, 8, 2)
    k = [i for i, x in enumerate(fin) if str(x).startswith("v_exp")][-1] + 1
    a.put([WAIT("pw1", "y_dma"), "s_barrier"] + yend[1:9] + rd1 + yend[9:17])
    a.put([WAIT("yg0")] + [f"v_pk_fma_f32 {vr(XN+j,2)}, {vr(XN+j,2)}, {vr(YV+j,2)}, {vr(XF+j,2)}" for j in E] + out_store(0, XN, 40))
    a.put([WAIT("pr1")] + fin[:k])
    a.put([WAIT("yg1")] + [f"v_pk_mul_f32 {vr(YV+8+j,2)}, {vr(YV+8+j,2)}, {vr(XN+8+j,2)}" for j in E] + fin[k:])


def add_pads(a):
    import re, subprocess, tempfile, os
    probe = re.sub(r"L_page\w+", "L_return", a.text())
    d = tempfile.mkdtemp()
    open(d + "/p.s", "w").write(HEAD + probe)
    subprocess.run(["clang", "-x", "assembler", "-target", "amdgcn-amd-amdhsa", "-mcpu=gfx950", "-c",
                    d + "/p.s", "-o", d + "/p.o"], check=True)
    lst = subprocess.run(["llvm-objdump", "-d", "--mcpu=gfx950", d + "/p.o"], capture_output=True, text=True).stdout
    lst = lst[lst.index("<L_main>:"):]
    sizes = [4 * len(m.group(1).split()) for m in re.finditer(r"// [0-9A-F]{12}: ([0-9A-F ]+)", lst)]
    k = a.lines.index("L_main:") + 1
    out, off, pages, i = a.lines[:k], 0, [], 0
    region, lanes_off = "main", False
    for ln in a.lines[k:]:
        if ln in ("L_join:", "L_service:"):
            region = ln
        if ln.startswith("    "):
            if off >= 4096 * len(pages) and not lanes_off:
                out += [f"L_pad{len(pages)}:", "    s_cbranch_execz L_return"]
                pages.append(region)
                off += 4
            off += sizes[i]
            i += 1
            if "exec" in ln.split(",")[0]:
                lanes_off = ln.strip() == "s_mov_b64 exec, 0"
        out.append(ln)
    assert i == len(sizes)
    main = [p for p, r in enumerate(pages) if r != "L_service:"]
    groups = {"A": main[:4], "B": main[4:8], "S": [p for p, r in enumerate(pages) if r == "L_service:"],
              "C": [p for p, r in enumerate(pages) if r == "L_join:"]}
    assert len(main) <= 8 and all(len(g) <= 4 for g in groups.values()), pages
    text = "\n".join(out)
    for g, ps in groups.items():
        for w in range(4):
            text = text.replace(f"L_page{g}_{w}", f"L_pad{ps[w]}" if w < len(ps) else "L_return")
    a.lines = text.split("\n")


def build():
    a = Em()
    for k in OPT.get("x_skip", "").split(","):
        if k.startswith("wd"):
            gs = [f"{srd(rWD)}, s{GT[g]} " for g in range(int(k[2:].split("-")[0]), int(k.split("-")[1]))]
            a.skip.append(lambda t, gs=gs: any(g in t for g in gs))
        if k == "wr":
            a.skip.append(lambda t: t.startswith("ds_read_b64_tr") and (f"v{vDA} " in t or f"v{vDA+1} " in t))
        if k == "cr":
            a.skip.append(lambda t: t.startswith("ds_read_b128") and f"v{vUA} " in t)
        if k == "hall":
            a.skip.append(lambda t: (", v7, " in t or ", v6, " in t) and "dwordx4 v[" in t)
        if k == "ist":
            a.skip.append(lambda t: t.startswith(("buffer_store_dword v4", "buffer_store_dwordx2 v[44")))
        if k == "stl":
            a.skip.append(lambda t: ", v96, " in t)
        if k == "hand":
            a.skip.append(lambda t: f", v{vG1S}, " in t or f"s{sCS} offen" in t)
        if k == "ce":
            a.skip.append(lambda t: "s89 offen" in t)
        if k == "ifl":
            a.skip.append(lambda t: t.startswith("buffer_store_dword v47"))
        if k == "ics":
            a.skip.append(lambda t: t.startswith("buffer_store_dword v43"))
        if k == "iss":
            a.skip.append(lambda t: t.startswith("buffer_store_dwordx2 v[44"))
        if k == "hst":
            a.skip.append(lambda t: f", v{vHO}, " in t)
        if k == "hld":
            a.skip.append(lambda t: ", v7, " in t and "dwordx4 v[" in t)
        if k == "cv":
            a.skip.append(lambda t: f"dwordx4 v{vL16}, " in t and "lds" in t)
        if k == "x":
            a.skip.append(lambda t: any(f"dwordx4 v{vXD+j}, {srd(rX)}" in t for j in range(4, 8)))
        if k == "touch":
            a.skip.append(lambda t: "dword v47" in t or "ushort" in t)
    entry(a)
    a(f"s_cmp_ge_u32 s{sIDX}, 28\ns_cbranch_scc1 L_service")
    snap = (a.nvm, a.nds)
    gemm_role(a)
    keep = getattr(a, "pending", None)
    if keep != 5:
        stamp_flush(a)
    a("L_join:")
    conv(a)
    gemm2(a)
    if STAMP:
        a.put([stamp(11), WAIT("allvm"), stamp(15), "s_waitcnt lgkmcnt(0)"])
        stamp_flush(a)
        a(f"""
        s_add_u32 s{rWS}, s{rWS}, {WS_TS}
        s_addc_u32 s{rWS+1}, s{rWS+1}, 0
        s_lshl_b32 s4, s2, 2
        s_add_u32 s4, s4, s{sW}
        s_lshl_b32 s4, s4, 8
        s_getreg_b32 s5, hwreg(HW_REG_XCC_ID)
        s_getreg_b32 s6, hwreg(HW_REG_HW_ID)
        v_writelane_b32 v{vST}, s5, 32
        v_writelane_b32 v{vST}, s6, 33
        v_lshlrev_b32 v4, 2, v{vLANE}
        buffer_store_dword v{vST}, v4, {srd(rWS)}, s4 offen
        """)
    if "diag" in OPT:
        k = int(OPT["diag"])
        a(f"""
        v_readlane_b32 s4, v{vST}, 30
        v_readlane_b32 s5, v{vST}, {16 + k}
        s_nop 3
        s_cmp_eq_u32 s5, 0
        s_cselect_b32 s5, s4, s5
        s_cmp_eq_u32 s2, {OPT.get("diagwg", 40)}
        s_cselect_b32 s5, s5, s4
        s_add_u32 s5, s5, 4000
        L_diag:
        s_memrealtime s[94:95]
        s_waitcnt lgkmcnt(0)
        s_sub_u32 s6, s94, s5
        s_cmp_lt_i32 s6, 0
        s_cbranch_scc1 L_diag
        """)
    a("L_exit:\ns_endpgm\nL_service:")
    a.nvm, a.nds = snap
    service_role(a)
    if keep != 5:
        stamp_flush(a)
    a("s_branch L_join")
    for t in a.tail:
        a(t)
    a("L_end:\ns_endpgm")
    if WALK:
        add_pads(a)
    hdr = open("cdna_kernels/" + NAME + ".s.ref").read().split("; Override launch")[0]
    t = hdr + f"; @launch grid=(256,1,1) block=(256,1,1) lds={LDS_BYTES}\n" + HEAD + (".p2align 12\n" if WALK else "") + kernel_text(KERNEL, a.text())
    t += '.section .rodata,"a"\n' + descriptor(KERNEL, vgpr=512, accum=256)
    return t


if __name__ == "__main__":
    open(sys.argv[1], "w").write(build())
```

```python
import re
import sys
from common import (NAME, S, D, F, X_BYTES, W_BYTES, WS_H, WS_KV, WS_Y, WS_ST, WS_CS, WS_FL, WS_TS, LDS_BYTES, SLOT, KVP_COPY,
                    f2u, hx, vr, ar, spread, merge)
from asmlib import HEAD, kernel_text, descriptor
from emit import Em, VM, DS, WAIT, lines, schedule, ATOM, CHAIN, flat

OPT = dict(x[2:].split("=") if "=" in x else (x[2:], "1") for x in sys.argv if x.startswith("--"))
STAMP = "stamp" in OPT
KERNEL = NAME + "_kernel"
WS_BYTES = 16 << 20
SC = "sc1"
XLEAD = int(OPT.get("xlead", 1))
SPLIT = "nosplit" not in OPT

rX, rW, rWS, rWD, rSK, rOUT, rDBG, rV = 8, 12, 16, 20, 24, 28, 32, 36
pSD, pSH, pKV = 98, 42, 80
sXM, sWM, sXK, sWK, sHS = 44, 45, 46, 47, 48
sF1, sF2, sPH, sPY, sPK = 56, 57, 58, 59, 60
sDM = 61
sUM, sHM, sKVO, sSKO, sYS = 63, 64, 65, 66, 67
sYD, sYM, sXO, sSO, sHL, sG1S, sMH, sSPIN = 68, 69, 70, 72, 74, 76, 77, 78
sRB, sFS, sT2, sCT = 84, 85, 86, 87
GT = [62, 0, 1, 3, 39, 40, 50, 51, 52, 53, 54, 55, 80, 81]
sCS, sEM, sSP = 36, 41, 88
sXCD, sIDX, sW = 90, 91, 92
srd = lambda r: f"s[{r}:{r+3}]"

vLANE, vL16, vST = 1, 2, 3
vXD, vWD, vXA, vXB, vWA, vWB = 8, 16, 20, 22, 24, 28
vHO, vCA, vG1S, vCL, vH0, vPS, vDS = 32, 33, 34, 35, 36, 37, 43
vMS, vGC, vI2, vBM = 40, 8, 16, 64
vDD, vDA, vUA, vHA, vZU, vZH, vRW, vRR, vDT, vL8, vM0, vDV = 48, 52, 54, 55, 56, 57, 58, 59, 60, 61, 62, 63
vYD, vXO, vSO, vYG, vPW, vPR, vFH, vFY, vFK, vFD, vPOLL = 112, 113, 114, 115, 117, 121, 123, 124, 125, 126, 127
FR = [("v", 64), ("a", 160)]
ACC1 = 128
vDA4 = [vDA, vDA + 1, vM0, vFH]
rg = lambda kb, o, n: (vr if kb[0] == "v" else ar)(kb[1] + o, n)

US = 4640
CH_LDS = 4 * US + 4208 + 16
CONV_BASE = 2 * SLOT + 16
EB, ES = 3 * SLOT + 16, 4352
YB, YP = 3 * SLOT, 1040
CSL = 3 * SLOT + 12288
STL = LDS_BYTES - 64
WDW = 12288
KB, KVP = 0, 1056
VB = 9 * KVP
KVT = 18 * KVP
FL_H, FL_Y, FL_K = WS_FL, WS_FL + 131072, WS_FL + 262144

C1 = -2.0 * 0.7978845608028654 * 1.4426950408889634
C2 = C1 * 0.044715


def stamp(n, g1=False):
    mode = "g1" if "g1st" in OPT else ("ge" if "gest" in OPT else ("sv" if "svst" in OPT else ("g7" if "g7st" in OPT else False)))
    g1 = "g1" if g1 is True else g1
    if "lite" in OPT and n not in (0, 15):
        return None
    keep = (0, 1, 2, 15) if mode == "g1" else (0, 1, 2, 3, 4, 15)
    if not STAMP or (mode != g1 and (g1 or n not in keep)):
        return None

    def emit(a):
        stamp_flush(a, False)
        if n == 0:
            a(f"v_writelane_b32 v{vST}, s100, 14\nv_writelane_b32 v{vST}, s94, 30")
        a("s_memrealtime s[94:95]\ns_memtime s[96:97]")
        a.pending = n
    return emit


def stamp_flush(a, wait=True):
    n = getattr(a, "pending", None)
    if n is not None:
        a(("s_nop 15\ns_nop 15\n" if wait else "") + f"v_writelane_b32 v{vST}, s96, {n}\nv_writelane_b32 v{vST}, s94, {16 + n}")
    a.pending = None


LD_INIT = f"buffer_load_dword v{vPOLL}, v{vFD}, {srd(rDBG)}, 0 offen {SC}"
LD_KV = f"buffer_load_dword v{vPOLL}, v{vFK}, {srd(rWS)}, s{sPK} offen {SC}"


def publish(sf, inc=1):
    r = 79 if inc == 1 else 82
    return [f"s_mov_b32 s{r}, {inc}", f"s_atomic_add s{r}, s[{rWS}:{rWS+1}], s{sf}"]


def peek(sp):
    return ["s_mov_b32 s83, 0", f"s_atomic_add s83, s[{rWS}:{rWS+1}], s{sp} glc"]


def check(sp, want, mask=None):
    def emit(a):
        slow, back = a.label("slow"), a.label("back")
        test = (f"s_and_b32 s83, s83, {mask}\n" if mask else "") + f"s_cmp_ge_u32 s83, {want}"
        a("s_waitcnt lgkmcnt(0)")
        if ("x_noypoll" in OPT and sp == sPY) or ("x_nohpoll" in OPT and sp == sPH):
            return
        a(f"{test}\ns_cbranch_scc0 {slow}\n{back}:")
        a.tail.append(f"""
        {slow}:
        s_mov_b32 s{sSPIN}, 0x10000
        {slow}_l:
        s_mov_b32 s83, 0
        s_atomic_add s83, s[{rWS}:{rWS+1}], s{sp} glc
        s_sub_u32 s{sSPIN}, s{sSPIN}, 1
        s_cmp_eq_u32 s{sSPIN}, 0
        s_waitcnt lgkmcnt(0)
        s_cbranch_scc1 {back}
        {test}
        s_cbranch_scc0 {slow}_l
        s_branch {back}
        """)
    return emit


KVR = [44, 45, 46, 47, 42, 43, 98, 99]
S_INIT = [f"s_load_dword s{82+j}, s[{rDBG}:{rDBG+1}], {128*j}" for j in range(2)]
S_KV = [f"s_load_dword s{KVR[j]}, s[{rWS}:{rWS+1}], s{sPK} offset:{128*j}" for j in range(8)]


def scheck(loads, regs, want):
    def emit(a):
        slow, back = a.label("slow"), a.label("back")
        test = "\n".join(f"s_min_u32 s{regs[0]}, s{regs[0]}, s{r}" for r in regs[1:]) + f"\ns_cmp_ge_u32 s{regs[0]}, {want}"
        a("s_waitcnt lgkmcnt(0)")
        if "x_nokvpoll" in OPT and loads is S_KV:
            return
        a(f"{test}\ns_cbranch_scc0 {slow}\n{back}:")
        a.tail.append(f"""
        {slow}:
        s_mov_b32 s{sSPIN}, 0x10000
        {slow}_l:
        {LD_KV if loads is S_KV else LD_INIT}
        s_sub_u32 s{sSPIN}, s{sSPIN}, 1
        s_cmp_eq_u32 s{sSPIN}, 0
        s_waitcnt vmcnt(0)
        s_cbranch_scc1 {back}
        v_cmp_gt_u32 vcc, {want}, v{vPOLL}
        s_cbranch_vccnz {slow}_l
        s_branch {back}
        """)
    return emit


WALK = "nowalk" not in OPT


def visit(first, link=6):
    def emit(a):
        if not WALK:
            return
        done = a.label("visited")
        if link != 6:
            a(f"s_mov_b64 s[{link}:{link+1}], s[6:7]")
        a("s_mov_b64 exec, 0")
        for w in range(4):
            nxt = a.label("w")
            if w < 3:
                a(f"s_cmp_lg_u32 s{sW}, {w}\ns_cbranch_scc1 {nxt}")
            a(f"s_call_b64 s[6:7], L_page{first}_{w}")
            if w < 3:
                a(f"s_branch {done}\n{nxt}:")
        a(f"{done}:\ns_mov_b64 exec, -1")
        if link != 6:
            a(f"s_mov_b64 s[6:7], s[{link}:{link+1}]")
    return emit


def entry(a):
    if STAMP:
        a("s_memrealtime s[94:95]\ns_memtime s[100:101]")
    a(f"""
    s_load_dwordx2 s[{rX}:{rX+1}], s[0:1], 0
    s_load_dwordx4 s[36:39], s[0:1], 56
    s_load_dwordx2 s[{rWS}:{rWS+1}], s[0:1], 96
    s_load_dwordx4 s[{pKV}:{pKV+3}], s[0:1], 8
    s_getpc_b64 s[4:5]
    L_pc:
    s_cmp_ge_u32 s2, 256
    s_cbranch_scc1 L_exit
    s_lshr_b32 s{sIDX}, s2, 3
    v_lshrrev_b32 v4, 4, v0
    s_lshl_b32 s6, s{sIDX}, 11
    v_lshl_add_u32 v4, v4, 7, s6
    v_min_u32 v4, L_end-L_pc-4, v4
    v_mov_b32 v5, s5
    v_add_co_u32 v4, vcc, s4, v4
    v_lshrrev_b32 v6, 6, v0
    v_and_b32 v{vLANE}, 63, v0
    v_addc_co_u32 v5, vcc, 0, v5, vcc
    """)
    if "nocodepf" not in OPT:
        a.put(VM(f"global_load_dword v{vPOLL}, v[4:5], off"))
    a(f"""
    v_readfirstlane_b32 s{sW}, v6
    s_load_dwordx2 s[{rWD}:{rWD+1}], s[0:1], 72
    s_load_dwordx2 s[{rSK}:{rSK+1}], s[0:1], 32
    s_load_dwordx2 s[{rOUT}:{rOUT+1}], s[0:1], 80
    s_load_dwordx2 s[{rDBG}:{rDBG+1}], s[0:1], 88
    s_load_dwordx2 s[{pSD}:{pSD+1}], s[0:1], 40
    s_load_dwordx2 s[{pSH}:{pSH+1}], s[0:1], 24
    s_and_b32 s{sXCD}, s2, 7
    v_lshlrev_b32 v{vL16}, 4, v{vLANE}
    s_mov_b32 s{rX+2}, {X_BYTES}
    s_mov_b32 s{rX+3}, 0x20000
    s_mov_b32 s{rW+3}, 0x20000
    s_and_b32 s4, s{sXCD}, 1
    s_lshr_b32 s5, s{sXCD}, 1
    s_lshl_b32 s{sRB}, s4, 2
    s_add_u32 s{sT2}, s{sRB}, s5
    s_lshl_b32 s6, s{sT2}, 5
    s_add_u32 s6, s6, s{sIDX}
    s_lshl_b32 s6, s6, 2
    s_add_u32 s6, s6, s{sW}
    s_lshl_b32 s79, s6, 11
    v_lshrrev_b32 v4, 5, v{vLANE}
    v_and_b32 v5, 31, v{vLANE}
    v_lshlrev_b32 v96, 10, v4
    v_lshl_add_u32 v96, v5, 4, v96
    v_lshrrev_b32 v6, 3, v{vLANE}
    v_and_b32 v7, 7, v{vLANE}
    """)
    if STAMP:
        a(f"v_mov_b32 v{vST}, 0")


def stats_loads():
    return [VM(f"buffer_load_dwordx4 v[64:67], v96, {srd(rX)}, s79 offen"),
            VM(f"buffer_load_dwordx4 v[68:71], v96, {srd(rX)}, s79 offen offset:512", "stats_ld")]


def reduce32(v, t):
    r = []
    for ctl in ("quad_perm:[1,0,3,2]", "quad_perm:[2,3,0,1]", "row_half_mirror", "row_mirror"):
        r += ["s_nop 1", f"v_add_f32_dpp v{v}, v{v}, v{v} {ctl} row_mask:0xf bank_mask:0xf"]
    return r + [f"v_mov_b32 v{t}, v{v}", "s_nop 1", f"v_permlane16_swap_b32 v{t}, v{v}", "s_nop 0",
                f"v_add_f32 v{v}, v{t}, v{v}"]


def rnd(v):
    return [f"v_cvt_pk_bf16_f32 v{v}, v{v}, v{v}", f"v_and_b32 v{v}, 0xffff0000, v{v}"]


def stats_compute():
    r = [WAIT("stats_ld")]
    for j in range(8):
        r += [f"v_lshlrev_b32 v{72+2*j}, 16, v{64+j}", f"v_and_b32 v{73+2*j}, 0xffff0000, v{64+j}"]
    r.append("v_pk_add_f32 v[88:89], v[72:73], v[74:75]")
    r += [f"v_pk_add_f32 v[88:89], v[88:89], v[{72+2*j}:{73+2*j}]" for j in range(2, 8)]
    r += ["v_add_f32 v88, v88, v89"] + reduce32(88, 89) + [f"v_mul_f32 v88, {hx(f2u(1.0/512))}, v88"]
    r += [f"v_pk_add_f32 v[{72+2*j}:{73+2*j}], v[{72+2*j}:{73+2*j}], v[88:89] op_sel_hi:[1,0] neg_lo:[0,1] neg_hi:[0,1]"
          for j in range(8)]
    r.append("v_pk_mul_f32 v[90:91], v[72:73], v[72:73]")
    r += [f"v_pk_fma_f32 v[90:91], v[{72+2*j}:{73+2*j}], v[{72+2*j}:{73+2*j}], v[90:91]" for j in range(1, 8)]
    r += ["v_add_f32 v89, v90, v91"] + reduce32(89, 90) + [f"v_mul_f32 v89, {hx(f2u(1.0/512))}, v89"]
    r += rnd(88) + rnd(89) + [f"v_add_f32 v89, {hx(f2u(1e-5))}, v89"] + rnd(89) + ["v_sqrt_f32 v89, v89"]
    r += lines(f"""
    s_lshr_b32 s79, s79, 13
    s_lshl_b32 s79, s79, 7
    s_add_u32 s79, s79, {WS_ST}
    s_lshl_b32 s{sSPIN}, s{sW}, 4
    v_lshl_add_u32 v90, v4, 3, s{sSPIN}
    v_add_u32 v90, {STL}, v90
    v_and_b32 v46, 48, v{vL16}
    v_add_u32 v46, {STL}, v46
    v_or_b32 v47, s{sW}, v6
    v_min_u32 v47, 1, v47
    v_lshlrev_b32 v47, 31, v47
    v_or_b32 v47, v47, v{vL16}
    """) + rnd(89) + [DS("ds_write_b64 v90, v[88:89]", "st_w")]
    return r


def stats_publish(t):
    return (DS(f"ds_read_b128 {vr(t,4)}, v46", "st_r"),
            [WAIT("st_r"), VM(f"buffer_store_dwordx4 {vr(t,4)}, v47, {srd(rWS)}, s79 offen {SC}", "init_st")])


def init_signal():
    return lines(f"""
    s_and_b32 s4, s2, 1
    s_lshl_b32 s4, s4, 7
    """) + [ATOM((f"s_cmp_eq_u32 s{sW}, 0", "s_cselect_b32 s4, s4, 0x1000"))] + lines(f"""
    v_mov_b32 v4, 1
    v_add_u32 v5, s4, v{vM0}
    """) + [VM(f"buffer_atomic_add v4, v5, {srd(rDBG)}, 0 offen {SC}")]


def clear_counters(a):
    l1, l2 = a.label("clr"), a.label("clr")
    a(f"""
    s_mov_b32 s82, 0
    s_add_u32 s83, s{sIDX}, 4
    s_and_b32 s83, s83, 24
    s_cbranch_scc1 {l1}
    s_atomic_and s82, s[{rWS}:{rWS+1}], s{sF1}
    {l1}:
    s_and_b32 s83, s5, 15
    s_cbranch_scc1 {l2}
    s_atomic_and s82, s[{rWS}:{rWS+1}], s{sF2}
    {l2}:
    """)


def setup_common(part=None):
    r = setup_all()
    cut = r.index(f"s_add_u32 s{sF2}, s6, {FL_Y}") + 1
    if part != 1:
        r = r[:cut] + [clear_counters] + r[cut:]
    if part == 0:
        return r[:cut + 1]
    late, pre = r.index(f"v_lshlrev_b32 v{vFK}, 7, v6") + 1, []
    if False:
        late = r.index(f"s_add_u32 s89, s{sSKO}, 2") + 1
        pre = [f"s_lshr_b32 s4, s{sW}, 1", f"s_lshl_b32 s6, s{sMH}, 11"]
    if part == "early":
        return r[:late]
    if part == "late":
        return [re.sub(r"\bv(98|99|10[0-3])\b", lambda m: f"v{(int(m.group(1)) - 101) % 6 + 40}", x) for x in pre + r[late:]]
    if part == "wd":
        i0, i1 = r.index(f"s_mul_i32 s{sDM}, s{sW}, {WDW}"), r.index(f"s_mov_b32 s{GT[0]}, s93") + 1
        t0 = r.index("s_add_u32 s6, s93, 32768")
        return [f"v_lshrrev_b32 v98, 4, v{vLANE}"] + r[i0:i1] + r[t0:t0 + 6] + r[t0 + 3 * (G_AG - 1):t0 + 3 * (G_AG + 2)]
    if part == 1:
        redo = r.index(f"s_lshr_b32 s4, s{sW}, 1")
        return [f"v_lshrrev_b32 v4, 5, v{vLANE}", f"v_and_b32 v5, 31, v{vLANE}"] + r[redo:]
    return r


def setup_all():
    r = []
    for q, n in ((rWS, WS_BYTES), (rWD, W_BYTES), (rSK, X_BYTES), (rOUT, X_BYTES), (rDBG, 256)):
        r += [f"s_mov_b32 s{q+2}, {n}", f"s_mov_b32 s{q+3}, 0x20000"]
    table = "\n".join(f"s_add_u32 s6, s93, {g*32768}\ns_sub_u32 s7, s6, {14*32768}\ns_min_u32 s{GT[g]}, s6, s7" for g in range(1, 14))
    rot = f"""
    s_bfe_u32 s6, s{sT2}, 0x10001
    s_mul_i32 s6, s6, 3
    s_xor_b32 s7, s{sCT}, 3
    s_min_u32 s7, s7, {0 if "rot4" in OPT else 1}
    s_sub_u32 s7, 1, s7
    s_mul_i32 s6, s6, s7
    {f's_xor_b32 s93, s{sT2}, s{sCT}' if 'nohrot' not in OPT else f's_mov_b32 s93, s{sT2}'}
    s_and_b32 s93, s93, 1
    s_mul_i32 s93, s93, 7
    {"s_mul_i32 s93, s93, s7" if "rot1" in OPT else ""}
    s_add_u32 s6, s6, s93
    s_min_u32 s7, s{sXCD}, {int(OPT.get("xrot", 6))}
    s_add_u32 s93, s6, s7
    s_sub_u32 s7, s93, 14
    s_min_u32 s93, s93, s7
    s_lshl_b32 s93, s93, 15
    s_mov_b32 s{GT[0]}, s93
    """
    LEAD = int(OPT.get("lead", 0))
    lead = ""
    if LEAD:
        def entry_code(g):
            return (f"s_bfe_u32 s6, s{42 + g // 8}, {0x40000 + 4 * (g % 8)}\ns_lshl_b32 s6, s6, 15\ns_add_u32 s6, s6, s93\n"
                    f"s_sub_u32 s7, s6, {14*32768}\ns_min_u32 s{GT[g]}, s6, s7")
        lead = f"s_add_u32 s6, s{sT2}, s{sCT}\ns_and_b32 s6, s6, 3\n"
        for ph in range(4):
            perm = sorted(range(14), key=lambda g: g - (LEAD + 0.5) * (g % 4 == (ph + 1) % 4))
            w = sum(g << (4 * i) for i, g in enumerate(perm))
            if ph == 0:
                lead += f"s_mov_b32 s42, {hx(w)}\ns_mov_b32 s43, {hx(w >> 32)}\n"
            else:
                lead += f"s_cmp_eq_u32 s6, {ph} ; s_cmov_b32 s42, {hx(w)} ; s_cmov_b32 s43, {hx(w >> 32)}\n"
        lead += f"s_mul_i32 s93, s{sXCD}, {int(OPT.get('xl', 7))}\ns_lshr_b32 s93, s93, 2\ns_lshl_b32 s93, s93, 15\n" + entry_code(0)
        table = "\n".join(entry_code(g) for g in range(1, 14))
    r += lines(f"""
    v_cmp_eq_u32 vcc, 0, v{vLANE}
    s_lshl_b32 s{sT2}, s{sT2}, 2
    s_and_b32 s4, s{sIDX}, 3
    v_bfrev_b32 v{vM0}, 1
    v_lshlrev_b32 v{vL8}, 3, v{vLANE}
    v_cndmask_b32 v{vM0}, v{vM0}, 0, vcc
    s_add_u32 s{sT2}, s{sT2}, s4
    s_lshr_b32 s4, s{sIDX}, 2
    s_xor_b32 s{sCT}, s4, 4
    s_lshr_b32 s4, s4, 2
    s_and_b32 s5, s{sXCD}, 1
    s_lshl_b32 s5, s5, 1
    s_add_u32 s4, s4, s5
    s_lshl_b32 s4, s4, 2
    s_add_u32 s4, s4, s{sW}
    s_lshl_b32 s4, s4, 10
    s_add_u32 s{sPK}, s4, {FL_K}
    s_lshr_b32 s4, s{sW}, 1
    s_and_b32 s{sMH}, s{sW}, 1
    s_lshl_b32 s5, s{sXCD}, 5
    s_add_u32 s5, s5, s{sIDX}
    s_lshl_b32 s5, s5, 1
    s_add_u32 s5, s5, s4
    s_lshl_b32 s6, s{sMH}, 9
    s_add_u32 s6, s6, s5
    s_lshr_b32 s6, s6, 4
    s_lshl_b32 s6, s6, 7
    s_add_u32 s{sF2}, s6, {FL_Y}
    s_lshl_b32 s{sSKO}, s5, 12
    s_lshl_b32 s6, s{sMH}, 11
    s_mul_i32 s{sYS}, s5, {KVP_COPY}
    s_add_u32 s{sKVO}, s{sYS}, {WS_KV}
    s_add_u32 s{sYS}, s{sYS}, s6
    s_add_u32 s{sYS}, s{sYS}, {WS_Y}
    s_lshl_b32 s5, s5, 1
    v_mov_b32 v{vDV}, s5
    v_mov_b32 v{vH0}, s{sSKO}
    s_add_u32 s{sSKO}, s{sSKO}, s6
    s_add_u32 s89, s{sSKO}, 2
    s_mul_i32 s7, s4, {ES}
    s_add_u32 s7, s7, {EB}
    s_mul_i32 s4, s4, {CH_LDS}
    s_add_u32 s4, s4, {CONV_BASE}
    s_mul_i32 s5, s{sMH}, {2*US + 8}
    s_sub_u32 s{sUM}, s4, s5
    s_add_u32 s{sHM}, s4, s6
    s_add_u32 s{sHM}, s{sHM}, {4*US + 112}
    s_add_u32 s{sEM}, s7, s6
    s_add_u32 s{sEM}, s{sEM}, 116
    v_lshl_add_u32 v{vZU}, v{vLANE}, 2, s{sUM}
    s_sub_u32 s93, s7, s4
    s_sub_u32 s93, s93, {4*US}
    s_add_u32 s5, s{sMH}, 27
    v_min_u32 v{vZH}, s5, v{vLANE}
    s_mul_i32 s5, s{sMH}, s93
    s_add_u32 s5, s5, s4
    s_add_u32 s5, s5, {4*US}
    v_lshl_add_u32 v{vZH}, v{vZH}, 2, s5
    s_sub_u32 s5, s4, s6
    s_add_u32 s5, s5, {3*US + 4080 - 3*512}
    v_and_b32 v{vDT}, -16, v{vL8}
    v_sub_u32 v{vDT}, s5, v{vDT}
    s_lshl_b32 s5, s{sMH}, 8
    s_add_u32 s4, s4, s5
    s_add_u32 s7, s7, s5
    v_lshrrev_b32 v98, 4, v{vLANE}
    v_and_b32 v{vFK}, 3, v{vLANE}
    v_bfe_u32 v99, v{vLANE}, 2, 2
    v_mul_u32_u24 v{vUA}, {US}, v{vFK}
    v_lshlrev_b32 v100, 7, v99
    v_sub_u32 v{vUA}, v{vUA}, v100
    v_lshl_add_u32 v{vUA}, v98, 4, v{vUA}
    s_add_u32 s5, s4, {248*16 - 7*512}
    v_add_u32 v{vUA}, s5, v{vUA}
    v_and_b32 v{vFD}, 1, v{vLANE}
    v_mul_u32_u24 v{vHA}, s93, v{vFD}
    v_sub_u32 v{vHA}, s7, v{vHA}
    v_bfe_u32 v101, v{vLANE}, 1, 3
    v_add_u32 v101, v101, v98
    v_lshl_add_u32 v{vHA}, v101, 4, v{vHA}
    v_mul_u32_u24 v{vPS}, 0x202, v{vFD}
    v_sub_u32 v{vPS}, 0x302, v{vPS}
    v_lshlrev_b32 v{vPS}, 16, v{vPS}
    v_or_b32 v{vPS}, 0xc0c, v{vPS}
    v_lshlrev_b32 v{vFD}, 7, v4
    s_mul_i32 s{sDM}, s{sW}, {WDW}
    s_add_u32 s5, s{sDM}, {wd_off(RED_SLOT)}
    v_add_u32 v{vRW}, s5, v{vL16}
    s_xor_b32 s5, s{sW}, 1
    s_mul_i32 s5, s5, {WDW}
    s_add_u32 s5, s5, {wd_off(RED_SLOT)}
    v_add_u32 v{vRR}, s5, v{vL16}
    v_lshlrev_b32 v102, 1, v98
    v_xor_b32 v102, v7, v102
    v_lshlrev_b32 v102, 4, v102
    v_lshl_add_u32 v{vDD}, v6, 10, v102
    s_mul_i32 s6, s{sW}, {448*1024}
    s_lshl_b32 s5, s{sCT}, 7
    s_add_u32 s6, s6, s5
    v_add_u32 v{vDD}, s6, v{vDD}
    v_add_u32 v{vDD+1}, {8192-1024}, v{vDD}
    v_add_u32 v{vDD+2}, {2*(8192-1024)}, v{vDD}
    v_add_u32 v{vDD+3}, {3*(8192-1024)}, v{vDD}
    {lead if LEAD else rot}
    v_lshl_add_u32 v{vDA}, v98, 9, v100
    v_lshl_add_u32 v{vDA}, v{vFK}, 3, v{vDA}
    v_and_b32 v102, 3, v6
    v_lshl_add_u32 v{vDA}, v102, 5, v{vDA}
    v_add_u32 v{vDA}, s{sDM}, v{vDA}
    v_xor_b32 v{vDA4[1]}, 32, v{vDA}
    v_xor_b32 v{vDA4[2]}, 64, v{vDA}
    v_xor_b32 v{vDA4[3]}, 96, v{vDA}
    v_lshlrev_b32 v{vFK}, 7, v6
    s_lshl_b32 s{sSP}, s{sW}, 12
    s_add_u32 s{sSP}, s{sSP}, {3*SLOT}
    s_sub_u32 s6, s{sSP}, s{sDM}
    v_add_u32 v{vDS}, s6, v{vDA4[0]}
    v_add_u32 v{vDS+1}, s6, v{vDA4[1]}
    v_add_u32 v{vDS+2}, s6, v{vDA4[2]}
    v_add_u32 v{vDS+3}, s6, v{vDA4[3]}
    {table}
    s_lshl_b32 s5, s{sCT}, 7
    s_and_b32 s6, s{sCT}, {0 if SPLIT or 'nosto' in OPT else 1}
    s_lshl_b32 s7, s{sT2}, 1
    s_add_u32 s7, s7, s6
    s_lshl_b32 s{sXO}, s7, 15
    s_add_u32 s{sXO}, s{sXO}, s5
    s_xor_b32 s{sXO+1}, s{sXO}, 0x8000
    s_lshl_b32 s{sSO}, s7, 9
    s_add_u32 s{sSO}, s{sSO}, {WS_ST}
    s_xor_b32 s{sSO+1}, s{sSO}, 0x200
    s_mul_i32 s4, s{sW}, {14*1024}
    s_mul_i32 s{sHL}, s7, {112*1024}
    s_add_u32 s{sHL}, s{sHL}, s4
    s_add_u32 s{sHL+1}, s{sHL}, {56*1024}
    s_lshl_b32 s4, s{sW}, 3
    v_add_u32 v102, s4, v6
    v_add_lshl_u32 v{vSO}, s4, v102, 3
    v_lshlrev_b32 v103, 4, v7
    v_lshl_add_u32 v{vXO}, v102, 10, v103
    v_mul_u32_u24 v{vYD}, {KVP_COPY}, v6
    v_add_u32 v{vYD}, v{vYD}, v103
    s_lshl_b32 s4, s{sCT}, 2
    s_add_u32 s4, s4, s{sW}
    s_mul_i32 s{sYD}, s4, {16*KVP_COPY}
    s_lshl_b32 s7, s{sT2}, 7
    s_add_u32 s{sYD}, s{sYD}, s7
    s_add_u32 s{sYD}, s{sYD}, {WS_Y}
    s_lshl_b32 s{sPH}, s{sW}, 7
    s_lshl_b32 s7, s7, 2
    s_add_u32 s{sPH}, s{sPH}, s7
    s_add_u32 s{sPH}, s{sPH}, {FL_H}
    s_lshl_b32 s4, s4, 7
    s_lshr_b32 s7, s{sT2}, 4
    s_lshl_b32 s7, s7, 12
    s_add_u32 s4, s4, s7
    s_add_u32 s{sPY}, s4, {FL_Y}
    s_mul_i32 s{sYM}, s{sW}, {2*YP}
    s_add_u32 s{sYM}, s{sYM}, {YB}
    v_mul_u32_u24 v103, {YP}, v7
    v_and_b32 v101, 6, v6
    v_add_u32 v103, v103, v101
    v_and_b32 v101, 1, v6
    v_lshl_add_u32 v103, v101, 3, v103
    s_lshl_b32 s4, s{sW}, 4
    v_add_u32 v103, s4, v103
    s_lshl_b32 s6, s6, 6
    s_add_u32 s4, s6, {YB}
    v_add_u32 v{vYG}, s4, v103
    s_sub_u32 s4, {YB + 64}, s6
    v_add_u32 v{vYG+1}, s4, v103
    v_lshrrev_b32 v103, 4, v{vLANE}
    v_xor_b32 v103, v103, v7
    v_lshlrev_b32 v103, 4, v103
    v_and_b32 v101, 15, v{vLANE}
    v_lshl_add_u32 v103, v101, 8, v103
    v_add_u32 v{vPW}, s{sDM}, v103
    v_xor_b32 v{vPW+1}, 64, v{vPW}
    v_lshlrev_b32 v103, 1, v7
    v_xor_b32 v103, v103, v6
    v_lshlrev_b32 v103, 4, v103
    v_lshl_add_u32 v{vPR}, v102, 8, v103
    v_add_u32 v{vPR}, {PART[0]}, v{vPR}
    v_xor_b32 v{vPR+1}, 16, v{vPR}
    """)
    return [x.replace(" ; ", "\n") for x in r]


def param_loads():
    return [VM(f"global_load_ushort v{vDV}, v{vDV}, s[{pSD}:{pSD+1}]"), VM(f"buffer_load_ushort v{vH0}, v{vH0}, {srd(rSK)}, 0 offen")]


SPARE = 3 * SLOT
NPRE = int(OPT.get("npre", 3))
NB = int(OPT.get("nb", 2))
GPLAN = OPT.get("gplan", "x-------")
NGE = GPLAN.count("w")
G_AG, G_G1 = NPRE + 3, NPRE + 3 + NB
G_LD = G_G1 + NGE
EARLY_SVC = int(OPT.get("esvc", 2))
RED_SLOT = (8 - NPRE) % 6
PART = [SLOT, 0] if RED_SLOT < 3 else [0, SLOT]
WD_SLOT = {g: ("S" if g < NPRE else (g - NPRE) % 6) for g in range(14)}


def wd_off(slot):
    return 0 if slot == "S" else (slot // 3) * SLOT + (slot % 3) * 4096


def wd_dma(g, slot=None, pad=False):
    slot = WD_SLOT[g] if slot is None else slot
    r = []
    for j in range(4):
        it = [VM(f"buffer_load_dwordx4 v{vDD+j}, {srd(rWD)}, s{GT[g]} offen offset:{j*1024} lds", f"wd{g}" if j == 3 else None)]
        if j == 0:
            it = [f"s_mov_b32 m0, s{sSP}" if slot == "S" else f"s_add_u32 m0, s{sDM}, {wd_off(slot)}"] + ["s_nop 0"] * pad + it
        if j == 3:
            it = [ATOM((it[0], f"s_lshr_b32 s{GT[g]}, s{GT[g]}, 5"))]
        r.append(it)
    return r


def wd_reads(g, slot=None):
    slot = WD_SLOT[g] if slot is None else slot
    va = [vDS + u for u in range(4)] if slot == "S" else vDA4
    return [DS(f"ds_read_b64_tr_b16 {ar(16*g + 4*u + 2*e, 2)}, v{va[u]} offset:{wd_off(slot) + e*2048}",
               f"wr{g}" if (u, e) == (3, 1) else None) for u in range(4) for e in range(2)]


def conv_dma(pad=True):
    out = []
    for m0, rs, so, sc, n in ((f"s{sUM}, {3*US}", rWS, sKVO, SC, 4), (f"s{sUM}, {2*US - 4}", rWS, sKVO, SC, 4),
                              (f"s{sHM}, 0", rSK, sSKO, "", 2), (f"s{sEM}, 0", rSK, 89, "", 2)):
        r = []
        for j in range(n):
            it = [VM(f"buffer_load_dwordx4 v{vL16}, {srd(rs)}, s{so} offen offset:{j*1024} {sc} lds", "cv_dma")]
            if j == 0:
                it = [f"s_add_u32 m0, {m0}"] + ["s_nop 0"] * pad + it
            r.append(it)
        out.append(r)
    return out[0] + out[1], out[2], out[3]


def conv_zero(z):
    return [DS(f"ds_write2st64_b32 v4, v{z}, v{z} offset0:0 offset1:1"),
            DS(f"ds_write2st64_b32 v5, v{z}, v{z} offset0:0 offset1:1"),
            DS(f"ds_write_b32 v{vZH}, v{vH0}", "cv_zero")]


def conv_zero_addr():
    return [f"v_add_u32 v4, {3*US + 4096}, v{vZU}", f"v_add_u32 v5, {2*US + 4092}, v{vZU}",
            f"v_mul_u32_u24 v{vH0}, s{sMH}, v{vH0}", f"v_add_u32 v0, 4, v{vLANE}", "v_min_u32 v0, 32, v0",
            "v_lshrrev_b32 v0, 5, v0", f"v_mul_u32_u24 v{vH0}, v0, v{vH0}", f"v_lshlrev_b32 v{vH0}, 16, v{vH0}"]


XR, SR = 40, 124


def row_loads():
    xl = [VM(f"buffer_load_dwordx4 {vr(XR+4*p,4)}, v{vXO}, {srd(rX)}, s{sXO+p} offen") for p in range(2)]
    return xl + [VM(f"buffer_load_dwordx2 {vr(SR+2*p,2)}, v{vSO}, {srd(rWS)}, s{sSO+p} offen {SC}", "xs" if p else None) for p in range(2)]


CUF = [("v", 128), ("a", 160)]
CHF = [("v", 160), ("a", 192)]
CACC = 64


def conv_reads(m):
    p = m & 1
    u = [DS(f"ds_read_b128 {rg(CUF[p], 4*j, 4)}, v{vUA} offset:{64*m + 512*(7-j)}", f"cu{j}") for j in range(8)]
    h = [DS(f"ds_read_b128 {rg(CHF[p], 4*j, 4)}, v{vHA} offset:{64*m + 512*j}", f"cf{m}" if j == 7 else f"ch{j}") for j in range(8)]
    return h[:1] + u + h[1:]


NHEAD = int(OPT.get("nhead", 5))


def g1_dma_setup():
    r = lines(f"""
    s_and_b32 s6, s{sIDX}, 3
    s_add_u32 s{sRB}, s{sRB}, s6
    s_mul_i32 s{sFS}, s5, 7
    s_lshr_b32 s6, s{sIDX}, 2
    s_add_u32 s{sFS}, s{sFS}, s6
    v_lshrrev_b32 v98, 4, v{vLANE}
    s_lshr_b32 s4, s{sW}, 1
    s_and_b32 s6, s{sW}, 1
    v_and_b32 v99, 1, v98
    v_lshlrev_b32 v99, 1, v99
    v_xor_b32 v99, v7, v99
    v_mul_u32_u24 v100, {F*2}, v6
    v_lshl_add_u32 v99, v99, 4, v100
    s_mul_i32 s6, s6, {32*F*2}
    s_lshl_b32 s7, s{sFS}, 7
    s_add_u32 s6, s6, s7
    v_add_u32 v{vWD}, s6, v99
    v_xor_b32 v99, 64, v{vWD}
    v_add_u32 v{vWD+1}, {8*F*2 - 1024}, v99
    v_add_u32 v{vWD+2}, {2*(8*F*2 - 1024)}, v{vWD}
    v_add_u32 v{vWD+3}, {3*(8*F*2 - 1024)}, v99
    s_lshl_b32 s{sG1S}, s{sRB}, 2
    s_add_u32 s{sG1S}, s{sG1S}, s{sW}
    s_lshl_b32 s7, s{sG1S}, 16
    v_xor_b32 v99, v7, v98
    v_lshlrev_b32 v99, 4, v99
    v_lshl_add_u32 v99, v6, 10, v99
    v_add_u32 v{vXD}, s7, v99
    v_xor_b32 v99, 64, v{vXD}
    """)
    for j in range(1, 8):
        r.append(f"v_add_u32 v{vXD+j}, {j*8192 - (j%4)*1024}, v{99 if j & 1 else vXD}")
    xr = OPT.get("xr", "1")
    if xr == "1":
        rot = f"s_lshl_b32 s{sXK}, s{sRB}, 7"
    elif xr == "x6":
        rot = f"s_and_b32 s6, s{sRB}, 3\ns_lshl_b32 s{sXK}, s6, 8"
    elif xr == "x7":
        rot = f"s_and_b32 s6, s{sRB}, 3\ns_lshl_b32 s{sXK}, s6, 7"
    elif xr == "7":
        rot = f"s_and_b32 s6, s{sRB}, 3\ns_lshl_b32 s6, s6, 1\ns_lshr_b32 s7, s{sRB}, 2\ns_add_u32 s6, s6, s7\ns_lshl_b32 s{sXK}, s6, 7"
    elif xr == "2":
        rot = f"s_lshl_b32 s6, s{sFS}, 2\ns_add_u32 s6, s6, s{sRB}\ns_and_b32 s6, s6, 7\ns_lshl_b32 s{sXK}, s6, 7"
    else:
        par = f"s_xor_b32 s7, s{sXCD}, s5" if xr == "4" else f"s_mov_b32 s7, s{sXCD}"
        rot = (f"s_add_u32 s6, s{sFS}, s{sRB}\ns_and_b32 s6, s6, 3\ns_lshl_b32 s6, s6, 1\n{par}\ns_and_b32 s7, s7, 1\n"
               f"s_add_u32 s6, s6, s7\ns_lshl_b32 s{sXK}, s6, 7")
    r += lines(f"""
    s_lshl_b32 s{sXM}, s{sW}, 13
    s_lshl_b32 s{sWM}, s{sW}, 12
    s_add_u32 s{sWM}, s{sWM}, 32768
    {rot}
    s_mov_b32 s{rW+2}, {W_BYTES}
    s_cmp_eq_u32 s4, 0
    s_waitcnt lgkmcnt(0)
    s_cselect_b32 s{rW}, s36, s38
    s_cselect_b32 s{rW+1}, s37, s39
    """)
    return r


def g1_setup():
    r = []
    if XLEAD:
        r = lines(f"""
        s_mov_b32 s42, 0x76543210
        s_mov_b32 s43, s42
        s_lshl_b32 s4, s{sRB}, 2
        s_lshr_b64 s[42:43], s[42:43], s4
        s_and_b32 s4, s{sIDX}, 28
        s_add_u32 s4, s4, {4 * XLEAD}
        s_lshr_b32 s5, s42, 4
        s_xor_b32 s5, s5, s42
        s_lshr_b32 s5, s5, s4
        s_and_b32 s5, s5, 7
        s_mul_i32 s5, s5, 17
        s_lshl_b32 s5, s5, s4
        s_cmp_lt_u32 s4, 28
        s_cselect_b32 s5, s5, 0
        s_xor_b32 s42, s42, s5
        """)
    r += lines(f"""
    v_lshrrev_b32 v102, 4, v{vLANE}
    v_and_b32 v103, 15, v{vLANE}
    v_bfe_u32 v98, v{vLANE}, 1, 3
    v_xor_b32 v98, v102, v98
    v_lshlrev_b32 v98, 4, v98
    v_lshl_add_u32 v98, v103, 7, v98
    s_lshl_b32 s4, s{sW}, 13
    v_add_u32 v{vXB}, s4, v98
    v_xor_b32 v{vXB+1}, 64, v{vXB}
    v_add_u32 v{vXA}, {2*SLOT}, v{vXB}
    v_add_u32 v{vXA+1}, {2*SLOT}, v{vXB+1}
    v_and_b32 v99, 3, v6
    v_bfe_u32 v100, v{vLANE}, 2, 2
    v_lshlrev_b32 v98, 10, v102
    v_lshl_add_u32 v98, v100, 7, v98
    v_and_b32 v101, 3, v{vLANE}
    v_lshl_add_u32 v98, v101, 3, v98
    v_lshl_add_u32 v98, v99, 5, v98
    v_add_u32 v{vWB}, 32768, v98
    v_xor_b32 v{vWB+1}, 32, v{vWB}
    v_xor_b32 v{vWB+2}, 64, v{vWB}
    v_xor_b32 v{vWB+3}, 96, v{vWB}
    v_add_u32 v{vWA}, {2*SLOT}, v{vWB}
    v_add_u32 v{vWA+1}, {2*SLOT}, v{vWB+1}
    v_add_u32 v{vWA+2}, {2*SLOT}, v{vWB+2}
    v_add_u32 v{vWA+3}, {2*SLOT}, v{vWB+3}
    s_lshl_b32 s4, s{sW}, 5
    v_xor_b32 v{vCL}, s4, v{vWB}
    s_lshl_b32 s4, s{sG1S}, 2
    s_lshr_b32 s5, s{sXCD}, 1
    s_add_u32 s4, s4, s5
    s_lshl_b32 s4, s4, 7
    s_add_u32 s{sF1}, s4, {FL_H}
    s_lshl_b32 s5, s{sFS}, 1
    s_mul_i32 s4, s{sG1S}, 224
    s_add_u32 s4, s4, s5
    s_lshl_b32 s{sHS}, s4, 10
    s_add_u32 s{sHS+1}, s{sHS}, {112*1024}
    v_add_u32 v{vHO}, {56*1024}, v{vL16}
    s_lshl_b32 s{sG1S}, s{sG1S}, 10
    s_add_u32 s{sG1S}, s{sG1S}, {WS_ST}
    v_and_b32 v98, 8, v103
    v_add_lshl_u32 v{vG1S}, v98, v103, 3
    v_lshlrev_b32 v{vCA}, 31, v4
    v_lshl_add_u32 v{vCA}, v5, 2, v{vCA}
    s_lshl_b32 s6, s{sFS}, 12
    s_add_u32 s6, s6, {WS_CS}
    s_lshl_b32 s4, s{sW}, 10
    s_add_u32 s{sCS}, s6, s4
    s_add_u32 s{sCS+2}, s4, {CSL}
    s_lshl_b32 s4, s{sRB}, 7
    s_add_u32 s{sCS+1}, s{sCS}, s4
    """)
    return r


def g1_acc(j, t, mat):
    return ACC1 + (2 * j + (t >> 1)) * 16 + 8 * mat + 4 * (t & 1)


def g1_reads(step):
    st, k2, fr = step >> 1, step & 1, FR[step & 1]
    slot = (st + 1) % 3
    xa, wa, o = (vXA, vWA, 0) if slot == 2 else (vXB, vWB, slot * SLOT)
    x = [DS(f"ds_read_b128 {rg(fr, 4*j, 4)}, v{xa+k2} offset:{o + j*2048}") for j in range(4)]
    w = [DS(f"ds_read_b64_tr_b16 {rg(fr, 16 + 4*q + 2*e, 2)}, v{wa+(q>>1)} offset:{o + (q&1)*8192 + k2*4096 + e*512}", f"g1f{step}")
         for q in range(8) for e in range(2)]
    return w[:2] + x + w[2:]


def g1_mfmas(step):
    fr, m = FR[step & 1], []
    for q in range(8):
        for j in range(4):
            acc = vr(g1_acc(j, q >> 1, q & 1), 4)
            m.append(f"v_mfma_f32_16x16x32_bf16 {acc}, {rg(fr, 16 + 4*q, 4)}, {rg(fr, 4*j, 4)}, {'0' if step == 0 else acc}")
    return m


def g1_dmas(st):
    slot = ((st + 1) % 3) * SLOT
    d = []
    for j in range(4):
        pre = [f"s_add_u32 m0, s{sWM}, {slot}", f"s_mul_i32 s{sWK}, s{sXK}, {F}"] if j == 0 else []
        post = [f"s_add_u32 m0, s{sXM}, {slot}"] if j == 3 else []
        d.append(pre + [VM(f"buffer_load_dwordx4 v{vWD+j}, {srd(rW)}, s{sWK} offen offset:{j*1024} lds", f"w{st}" if j == 3 else None)] + post)
    for j in range(8):
        post = [f"s_add_u32 m0, s{sXM}, {slot + 4096}"] if j == 3 else []
        if j == 7:
            post = [f"s_add_u32 s{sXK}, s{sXK}, 128", f"s_and_b32 s{sXK}, s{sXK}, 1023"]
            if XLEAD and st < 7:
                post = [f"s_bfe_u32 s{sXK}, s42, {0x30000 + 4 * (st + 1)}", f"s_lshl_b32 s{sXK}, s{sXK}, 7"]
        d.append([VM(f"buffer_load_dwordx4 v{vXD+j}, {srd(rX)}, s{sXK} offen offset:{(j%4)*1024} lds", f"st{st}" if j == 7 else None)] + post)
    return d


def colsum():
    T, ONE, R = 128, 144, 148
    r = [f"v_mov_b32 v{ONE+j}, 0x3f803f80" for j in range(4)] + [WAIT("w0"), "s_barrier"]
    r += [DS(f"ds_read_b64_tr_b16 {vr(T+4*q+2*e, 2)}, v{vCL} offset:{SLOT + q*4096 + e*512}", "csr") for q in range(4) for e in range(2)]
    m = [WAIT("csr")]
    m += [f"v_mfma_f32_16x16x32_bf16 {vr(R+4*(q>>1),4)}, {vr(ONE,4)}, {vr(T+4*q,4)}, {vr(R+4*(q>>1),4) if q & 1 else '0'}" for q in range(4)]
    f = lines(f"""
    v_cmp_gt_u32 s[4:5], 16, v{vLANE}
    v_and_b32 v{vCL}, 15, v{vLANE}
    v_lshlrev_b32 v{vCL}, 2, v{vCL}
    v_lshl_add_u32 v{vCL}, v4, 9, v{vCL}
    v_bfe_u32 v{R+2}, v{vLANE}, 4, 1
    v_lshl_add_u32 v{vCL}, v{R+2}, 7, v{vCL}
    v_add_u32 v{vCL}, {CSL}, v{vCL}
    v_cndmask_b32 v{R}, v{R+4}, v{R}, s[4:5]
    v_cvt_pk_bf16_f32 v{R+1}, v{R}, v{R}
    v_and_b32 v{R+1}, 0xffff0000, v{R+1}
    v_sub_f32 v{R+1}, v{R}, v{R+1}
    v_cvt_pk_bf16_f32 v44, v{R}, v{R+1}
    """) + [VM(f"buffer_store_dword v44, v{vCA}, {srd(rWS)}, s{sCS+1} offen {SC}")]
    return r, m, f


def need_setup(a, dests):
    for d in dests:
        assert any(x.split()[1:2] == [d] for x in a.lines), d


def gemm_role(a):
    a.put(g1_dma_setup())
    a.put(stamp(0))
    d0, d1 = g1_dmas(0), g1_dmas(1)
    n_first = int(OPT.get("nfirst", 5))
    n_late = int(OPT.get("nlate", 0))
    head = [x + ["s_nop 0"] if isinstance(x[-1], str) else x for x in d0[:n_first]]
    sp = int(OPT.get("stpos", 0))
    a.put(head[:sp] + stats_loads() + head[sp:])
    DEFER = OPT.get("defer", "ramp")
    su = g1_setup() + setup_common(None if DEFER == "no" else "early")
    cut = int(OPT.get("sucut", 190))
    a.put(su[:cut])
    a.put(stamp(1))
    rest = d0[n_first:] + d1[:12 - n_late]
    sc, (c_r, c_m, c_f) = stats_compute(), colsum()
    w0, w1 = int(OPT.get("walk0", 0)), int(OPT.get("walk1", 34))
    VSTEP = int(OPT.get("vstep", -1))
    vis = [[visit("A")], [visit("B")]] if VSTEP < 0 else [[visit("Z")], []]
    fill = su[cut:] + sc[:w0] + vis[0] + sc[w0:w1] + vis[1] + sc[w1:50] + [c_r] + sc[50:66] + [c_m] + sc[66:] + c_f[:-1]
    st_r, st_s = stats_publish(40)
    init_st = c_f[-1:] + st_s
    SIG = int(OPT.get("sig", 3))
    assert SIG == 3
    if "startup" in OPT:
        parts = {"u": su[cut:], "A": [visit("A")], "B": [visit("B")], "a": sc[:34], "b": sc[34:50], "r": [c_r], "c": sc[50:66],
                 "m": [c_m], "d": sc[66:-1], "f": c_f[:-1]}
        rest = [x + ["s_nop 0"] if isinstance(x[-1], str) and " m0," in x[-1] else x for x in rest]
        for ch in OPT["startup"]:
            if ch.isdigit():
                a.put([rest.pop(0) for _ in range(int(ch))])
            else:
                a.put(parts.pop(ch))
        assert not rest and not parts and SIG > 1
    else:
        a.weave(rest, spread(fill, len(rest), 0, len(rest) - 1))
    if WALK:
        a("s_branch L_main\nL_return:\ns_setpc_b64 s[6:7]\n.p2align 12\nL_main:")
    a.put([WAIT("st0", "st_w"), "s_barrier", stamp(2), st_r])
    a.put(g1_reads(0))

    cu, co, ce = conv_dma(pad=False)
    EBAR = int(OPT.get("ebar", 11)) if NPRE else 0
    CF = 224
    handed = [[VM(f"buffer_load_dwordx2 {vr(vMS+2*j,2)}, v{vG1S}, {srd(rWS)}, s{sG1S} offen offset:{256*j} {SC}", "g1st") for j in range(4)] +
              [f"s_mov_b32 m0, s{sCS+2}", VM(f"buffer_load_dwordx4 v{vL16}, {srd(rWS)}, s{sCS} offen {SC} lds", "csf")]]
    queue = [(x, 0, None) for x in d1[12 - n_late:]] + ([(init_st, 0, None)] if SIG == 3 else [])

    def push(items, earliest, g=None):
        queue.extend((x, earliest, g if i == len(items) - 1 else None) for i, x in enumerate(items))

    prepos = [int(c) for c in OPT.get("prepos", "345")]
    assert len(prepos) == NPRE
    for k in range(1, 8):
        if k > 1:
            push(g1_dmas(k), max(0, 2 * k - 5))
        if SIG > 3 and k == (SIG - 1) // 2:
            push([init_st], 0)
        g = prepos.index(k) if k in prepos else -1
        if 0 <= g < NPRE:
            w = wd_dma(g)
            w[0] = [lambda e, g=g: need_setup(e, [f"s{GT[g]},", f"s{sSP},", f"v{vDD+3},"])] + w[0]
            if g:
                w[0] = [WAIT(f"wr{g-1}")] + w[0]
            push(w, 0, g)
            if g == 0:
                push([[f"v_lshrrev_b32 v47, 2, v{vLANE}", "v_lshlrev_b32 v47, 7, v47",
                       VM(f"buffer_load_dword v47, v47, {srd(rSK)}, s{sSKO} offen")] + param_loads()], 0)
        if k == int(OPT.get("epos", 7)) and EBAR < 13:
            push(ce + ([] if NPRE else [param_loads()]), EBAR)
    for g in range(NPRE, G_G1 + 1):
        if g == NPRE + int(OPT.get("hpos", 2)):
            push(handed + (ce if EBAR == 13 else []), 13)
        if g < G_G1:
            push(wd_dma(g), 11 if g < NPRE + 3 else 13, g)
    push(co, 15)
    push(cu, 16)
    plan = [int(c, 16) for c in OPT.get("plan", "8887878777766666f")]
    lag = int(OPT.get("rlag", 8))
    for i, (_, _, g) in enumerate(list(queue)):
        if g is not None and g < NPRE + 3:
            nr = int(OPT.get("rn", 4))
            for k in range(nr):
                pos = min(i + (int(OPT.get("rlag0", lag)) if g == 0 else lag), len(queue) - nr) + k
                it, e, g2 = queue[pos]
                if k == 0 and g == 0 and NPRE:
                    it = it + [lambda e, g=g: need_setup(e, [f"s{GT[1]},"])]
                queue[pos] = ([WAIT(f"wd{g}")] * (k == 0) + wd_reads(g)[8//nr*k:8//nr*(k+1)] + it, e, g2)

    def take(step):
        items = []
        while queue and len(items) < plan[step] and queue[0][1] <= step:
            items.append(queue.pop(0)[0])
        return items

    for step in range(16):
        st = step >> 1
        if step >= 11:
            a.put(stamp({11: 5, 12: 6, 13: 7, 14: 9, 15: 12}[step], "g7"))
        if step == 15:
            a.put([WAIT("g1f15", "csf"), stamp(13, "g7"), "s_barrier", stamp(10, "g7")])
        elif step & 1:
            wt = [f"st{st+1}", f"g1f{step}"] + ([f"wr{NPRE-1}"] if step == EBAR and NPRE else [])
            a.put([WAIT(*wt), "s_barrier", stamp([3, 4, 5, 6, 7, 8, 9][st], True)])
        else:
            a.put(WAIT(f"g1f{step}"))
        if step == 13:
            a.put([scheck(S_INIT, [82, 83], 0x80), stamp(8, "g7")])
        if step == 13 and NPRE:
            assert f"wr{NPRE-1}" in a.tags
        streams = []
        if step < 15:
            dummy = [DS(f"ds_read_b32 v0, v{vL8}")] if SIG <= step <= 9 else []
            streams.append((g1_reads(step + 1) + dummy, 0, 26))
        else:
            cr = [f"v_add_u32 v{vCA}, 64, v{vCL}"]
            cr += [DS(f"ds_read2st64_b32 {ar(CF+2*q,2)}, v{vCA if q & 1 else vCL} offset0:{4*(q>>1)} offset1:{4*(q>>1)+1}") for q in range(8)]
            streams.append((cr, 0, 26))
            c = [WAIT("g1st")]
            for j in range(4):
                c += [f"v_cvt_pk_bf16_f32 v{vBM+2*j}, -v{vMS+2*j}, -v{vMS+2*j}", f"v_mov_b32 v{vBM+2*j+1}, v{vBM+2*j}"]
            streams.append((c + conv_zero_addr() + ["v_mov_b32 v6, 0"], 8, 28))
        mine = take(step)
        streams.append((mine, 0, 31))
        if step == SIG:
            skip = a.label("sig")
            streams.append((["s_and_b32 s83, s2, 1", "s_lshl_b32 s83, s83, 7", "s_mov_b32 s79, 1",
                             ATOM((f"s_cmp_lg_u32 s{sW}, 0", f"s_cbranch_scc1 {skip}", f"s_atomic_add s79, s[{rDBG}:{rDBG+1}], s83", f"{skip}:"))], 0, 6))
        if step == 12:
            streams.append((S_INIT, 0, 2))
        if step == 15:
            streams.append((S_KV, int(OPT.get("pkv", 2)), int(OPT.get("pkv", 2)) + 8))
        chunk = spread(setup_common("late"), 16, int(OPT.get("df0", 2)), int(OPT.get("df1", 11)))[step]
        if DEFER == "sh":
            streams.append((chunk, 0, 30))
        fl, over = schedule(32, streams, 8, 2 if len(flat(mine)) > 14 else 1)
        if DEFER == "end":
            fl[15] = fl[15] + chunk
        if DEFER == "ramp":
            w = [int(v) for v in OPT.get("ramp", "0,1,1,1").split(",")]
            late = setup_common("late")
            lo = sum(w[:step]) * len(late) // sum(w)
            part = late[lo:sum(w[:step + 1]) * len(late) // sum(w)]
            g0 = 0
            if step == 0:
                g0 = 1 + max(g for g in range(32) if "init_st" in repr(fl[g]))
            ng = int(OPT.get("rampn", 1))
            if part:
                for k, c in enumerate(spread(part, ng)):
                    g = min(31, max(g0, int(OPT.get("rampg", 0))) + k * (32 - g0) // ng)
                    fl[g] = fl[g] + c
        if over:
            print(f"step {step}: {over} left over", file=sys.stderr)
        a.weave(g1_mfmas(step), fl)
        if step == VSTEP:
            a.put(visit("D", 82))
        if "x_idle" in OPT:
            for seg in OPT["x_idle"].split(","):
                lo, hi, amt = (int(v) for v in seg.split(":"))
                if lo <= step <= hi:
                    a(f"s_sleep {amt}")
    a.put([stamp(11, "g7"), scheck(S_KV, KVR, 1), "s_barrier", stamp(3), stamp(12, True)])
    c = []
    for j in range(4):
        den, c1 = vMS + 2 * j + 1, vGC + 2 * j
        c += lines(f"""
        v_rcp_f32 v{c1}, v{den}
        v_mul_f32 v{vI2+j}, v{den}, v{den}
        v_mul_f32 v{c1+1}, v{c1}, v{c1}
        v_mul_f32 v{c1+1}, v{c1+1}, v{c1}
        v_mul_f32 v{c1}, {hx(f2u(C1))}, v{c1}
        v_mul_f32 v{c1+1}, {hx(f2u(C2))}, v{c1+1}
        """)
    ms = []
    for j in range(4):
        for q in range(8):
            acc = vr(g1_acc(j, q >> 1, q & 1), 4)
            ms.append(f"v_mfma_f32_16x16x16_bf16 {acc}, {ar(CF+2*q,2)}, {vr(vBM+2*j,2)}, {acc}")
    last = take(16)
    fl, over = schedule(32, [(conv_zero(6), 0, 28), (last, 0, 31), (c, 0, 28)], 8, 2)
    assert not queue
    a.weave(ms, fl)
    a.put(stamp(4))
    plan = GPLAN
    extra = {"-": [[], [], [], []], "x": [[x] for x in row_loads()]}
    for n in range(8):
        jt, tp = n >> 1, n & 1
        c1, acc, T = vGC + 2 * jt, ACC1 + n * 16, 96 + 8 * tp
        i2, hi = vr(vI2 + (jt & 2), 2), jt & 1
        ex = wd_dma(G_G1 + plan[:n].count("w"), None, True) if plan[n] == "w" else extra[plan[n]]
        ex = [list(flat([list(y) if isinstance(y, ATOM) else y for y in x])) for x in ex]
        if n == 7:
            ex = [[], [], [], [WAIT("cv_dma"), "s_barrier"] + conv_reads(0)[:NHEAD]]
        E = range(0, 8, 2)
        if n == (0 if plan[0] == "w" else 1):
            a.put(WAIT("allds"))
        a.put([f"v_pk_mul_f32 {vr(T+j,2)}, {vr(acc+j,2)}, {vr(acc+j,2)}" for j in E])
        a.put([f"v_pk_fma_f32 {vr(T+j,2)}, {vr(T+j,2)}, {vr(c1,2)}, {vr(c1,2)} op_sel:[0,1,0] op_sel_hi:[1,1,0]" for j in E])
        a.put([f"v_pk_mul_f32 {vr(T+j,2)}, {vr(T+j,2)}, {vr(acc+j,2)}" for j in E] + ex[0])
        a.put([f"v_exp_f32 v{T+j}, v{T+j}" for j in range(8)] + ex[1])
        a.put([f"v_pk_mul_f32 {vr(acc+j,2)}, {vr(acc+j,2)}, {vr(acc+8+j,2)}" for j in E])
        a.put([f"v_pk_fma_f32 {vr(T+j,2)}, {vr(T+j,2)}, {i2}, {i2} op_sel:[0,{hi},{hi}] op_sel_hi:[1,{hi},{hi}]" for j in E] + ex[2])
        a.put([f"v_rcp_f32 v{T+j}, v{T+j}" for j in range(8)] + ex[3])
        a.put([f"v_pk_mul_f32 {vr(acc+j,2)}, {vr(acc+j,2)}, {vr(T+j,2)}" for j in E])
        a.put([f"v_cvt_pk_bf16_f32 v{acc+8+j}, v{acc+2*j}, v{acc+2*j+1}" for j in range(4)])
        a.put(VM(f"buffer_store_dwordx4 {vr(acc+8,4)}, v{vHO if jt & 1 else vL16}, {srd(rWS)}, s{sHS+(jt>>1)} offen offset:{tp*1024} {SC}", f"h_st{n}"))
        if SPLIT and n == int(OPT.get("pub1", 7)):
            a.put([WAIT("h_st3")] + publish(sF1))
        a.put(stamp([5, 6, 7, 8, 9, 12, 13, 11][n], "ge"))

    a.put(stamp(5))


def service_role(a):
    TAPB = 8 * KVT
    a.put(lines(f"""
    s_sub_u32 s{sFS}, s2, 224
    s_lshl_b32 s6, s{sFS}, 16
    s_lshr_b32 s7, s{sW}, 1
    s_and_b32 s4, s{sW}, 1
    v_lshlrev_b32 v8, 10, v6
    v_lshl_add_u32 v8, v7, 4, v8
    v_add_u32 v8, s6, v8
    v_subrev_u32 v12, 8192, v8
    s_mul_i32 s5, s4, 3
    s_add_u32 s5, s5, 5
    s_cmp_eq_u32 s{sFS}, 0
    s_cselect_b32 s5, 8, s5
    v_cmp_le_u32 vcc, s5, v6
    v_add_u32 v9, {8192 - KVP}, v8
    v_bfrev_b32 v29, 1
    v_cndmask_b32 v12, v29, v12, vcc
    v_add_u32 v10, {2*(8192 - KVP)}, v8
    s_mul_i32 s{sXM}, s{sW}, {VB}
    s_lshl_b32 s{sXK}, s7, 7
    s_mov_b32 s{rW+2}, {X_BYTES}
    s_lshl_b32 s5, s{sW}, 10
    v_add_u32 v13, s5, v{vL16}
    s_add_u32 m0, s5, {TAPB}
    s_cmp_eq_u32 s4, 0
    s_waitcnt lgkmcnt(0)
    s_cselect_b32 s{rW}, s{pKV}, s{pKV+2}
    s_cselect_b32 s{rW+1}, s{pKV+1}, s{pKV+3}
    """))
    a.put(stamp(0))
    nt = OPT.get("kvpol", "nt").replace("none", "")

    def tile_dma(tag):
        r = [[f"s_mov_b32 m0, s{sXM}", f"s_add_u32 s{sWM}, s{sXK}, {3*8192}",
              VM(f"buffer_load_dwordx4 v12, {srd(rW)}, s{sXK} offen lds")]]
        for j in range(8):
            q, pre = j % 3, []
            so = sXK if j < 3 else sWM
            if q == 0:
                pre = [f"s_add_u32 m0, s{sXM}, {(j+1)*KVP}", f"s_add_u32 s{sWM}, s{sWM}, {3*8192}" if j == 6 else "s_nop 0"]
            r.append(pre + [VM(f"buffer_load_dwordx4 v{8+q}, {srd(rW)}, s{so} offen offset:{q*KVP} {nt} lds", tag)])
        r[-1] += [f"s_add_u32 s{sXM}, s{sXM}, {2*KVT}", f"s_add_u32 s{sXK}, s{sXK}, 256"]
        return r

    if "x_nold" in OPT:
        a("v_mov_b32 v8, v29\nv_mov_b32 v9, v29\nv_mov_b32 v10, v29\nv_mov_b32 v12, v29")
    d0, n0 = tile_dma("kv0"), 5
    a.put(stats_loads() + [VM(f"global_load_lds_dwordx4 v13, s[{pSH}:{pSH+1}]")] + d0[:n0])
    a("L_service_rest:")
    a.put(lines(f"""
    s_lshl_b32 s5, s{sW}, 3
    v_add_u32 v11, s5, v6
    v_lshlrev_b32 v14, 5, v11
    v_add_u32 v14, {TAPB}, v14
    v_sub_u32 v13, 7, v7
    v_mul_u32_u24 v13, {KVP}, v13
    v_lshl_add_u32 v13, v6, 3, v13
    s_mul_i32 s5, s7, {KVT}
    s_lshl_b32 s4, s4, 6
    s_add_u32 s5, s5, s4
    v_add_u32 v13, s5, v13
    v_mul_u32_u24 v15, {4*KVP_COPY}, v11
    v_lshl_add_u32 v15, v7, 4, v15
    s_lshl_b32 s5, s{sFS}, 7
    s_sub_u32 s{sHS}, {WS_KV + 4096 - 128}, s5
    s_lshl_b32 s4, s{sW}, 12
    s_add_u32 s4, s4, s5
    s_add_u32 s{sF1}, s4, {FL_K}
    """))
    a.put(setup_common(0) + (setup_common("wd") if EARLY_SVC else []) + [visit("S")])
    d01 = d0[n0:] + tile_dma("kv1")
    a.weave(d01, spread(stats_compute(), len(d01), 0, int(OPT.get("svs", 6))))
    a.put(stamp(2))
    RAW, TR, TP, UNP, U, OUT = 64, 16, 32, 128, 172, 192

    def tile_reads():
        r = [DS(f"ds_read_b128 {vr(TR+4*h,4)}, v14 offset:{16*h}") for h in range(2)]
        for jj in range(19):
            rho, base = (5 + jj, KB) if jj < 11 else (jj - 3, VB)
            r.append(DS(f"ds_read_b64 {vr(RAW+2*jj,2)}, v13 offset:{base + (rho >> 3) * KVP + (rho & 7) * 128}"))
        return r + [f"v_add_u32 v13, {2*KVT}, v13", "v_add_u32 v14, 1024, v14"]

    def pair(h):
        r = []
        for j in range(10):
            for ch in range(2):
                r.append(f"v_perm_b32 v{UNP+2*j+ch}, v{RAW+2*j+h}, v{RAW+2*(j+1)+h}, s{80+ch}")
        for j in range(11, 19):
            r += [f"v_lshlrev_b32 v{UNP+2*j}, 16, v{RAW+2*j+h}", f"v_and_b32 v{UNP+2*j+1}, s83, v{RAW+2*j+h}"]
        if h:
            r += [f"v_pk_mov_b32 {vr(TP+2*ch,2)}, {vr(TR+4+2*ch,2)}, {vr(TR+4+2*ch,2)} op_sel:[0,1]" for ch in range(2)]
        tp = TP if h else TR
        m = [f"v_dot2_f32_bf16 v{U+2*jj+ch}, v{UNP+2*jj+ch}, v{tp+2*ch+1}, 0" for jj in range(8) for ch in range(2)]
        m += [f"v_dot2_f32_bf16 v{U+2*jj+ch}, v{UNP+2*(jj+2)+ch}, v{tp+2*ch}, v{U+2*jj+ch}" for jj in range(8) for ch in range(2)]
        m += [f"v_pk_mul_f32 {vr(U+2*jj,2)}, {vr(U+2*jj,2)}, {vr(UNP+2*(11+jj),2)}" for jj in range(8)]
        st = []
        for ch in range(2):
            o = OUT + 8 * h + 4 * ch
            m += [f"v_cvt_pk_bf16_f32 v{o+e}, v{U+2*(7-2*e)+ch}, v{U+2*(6-2*e)+ch}" for e in range(4)]
            st.append([VM(f"buffer_store_dwordx4 {vr(o,4)}, v15, {srd(rWS)}, s{sHS} offen {SC}", "kv_st"),
                       f"s_add_u32 s{sHS}, s{sHS}, {KVP_COPY if 2*h+ch < 3 else 125*KVP_COPY}"])
        return r, m, st

    def mix(alu, mem):
        g = spread(alu, len(mem) + 1)
        a.put(g[0])
        a.weave(mem, g[1:])

    (u0, m0_, st0), (u1, m1_, st1) = pair(0), pair(1)
    pad = lines(f"""
    s_mov_b32 s83, 0xffff0000
    s_mov_b32 s80, 0x05040100
    s_mov_b32 s81, 0x07060302
    """)
    st_r, st_s = stats_publish(40)
    a.put([WAIT("kv0", "st_w"), "s_barrier", st_r] + tile_reads() + pad + st_s)
    for it in range(4):
        dm = tile_dma(f"kv{it+2}") if it < 2 else []
        if it >= 2 and EARLY_SVC:
            ew = [[y[0] if isinstance(y, ATOM) else y for y in x] for g in range(EARLY_SVC) for x in wd_dma(g, g, True)]
            k = int(OPT.get("esplit", 8))
            dm = ew[:k] if it == 2 else ew[k:]
            if it == 2 and "nostouch" not in OPT:
                dm = [lines(f"""
                s_lshl_b32 s4, s{sXCD}, 5
                s_add_u32 s4, s4, s{sIDX}
                s_lshl_b32 s4, s4, 2
                s_add_u32 s4, s4, s{sW}
                s_lshl_b32 s4, s4, 11
                v_lshrrev_b32 v27, 2, v{vLANE}
                v_lshlrev_b32 v27, 7, v27
                """) + [VM(f"buffer_load_dword v27, v27, {srd(rSK)}, s4 offen")] + dm[0]] + dm[1:]
        elif it == 2:
            dm = [[]]
            if "svt" in OPT:
                a.put(lines(f"""
                s_lshl_b32 s4, s{sFS}, 2
                s_add_u32 s4, s4, s{sW}
                s_mul_i32 s4, s4, {112*128}
                v_min_u32 v27, 55, v{vLANE}
                v_lshlrev_b32 v27, 7, v27
                s_add_u32 s5, s4, {56*128}
                """))
                dm += [[VM(f"buffer_load_dword v25, v27, {srd(rWD)}, s4 offen")], [], [], [], [],
                       [VM(f"buffer_load_dword v26, v27, {srd(rWD)}, s5 offen")]]
        a.put([WAIT("allds"), stamp([5, 7, 9, 13][it], "sv")])
        mix(u0 + m0_, (st1 if it else []) + dm[:5])
        mix(u1, st0 + dm[5:6])
        a.put(stamp([6, 8, 12, 10][it], "sv"))
        if it < 3:
            a.put([WAIT(*([f"kv{it+1}"] + ["init_st"] * (it == 1))), "s_barrier"] + tile_reads())
        if it == 1:
            a.put(init_signal())
        mix(m1_, dm[6:])
    a.put(st1)
    a.put(stamp(3))
    su = setup_common(1)
    bg = list(range(G_AG, min(G_LD, G_AG + 3)))
    bd = [[y[0] if isinstance(y, ATOM) else y for y in x] for g in bg for x in wd_dma(g, None, True)]
    sb = int(OPT.get("sb", 4)) if EARLY_SVC else 0
    su = [x for x in su if not (sb and x.split()[1] in [f"v{vDD+j}," for j in range(4)])]
    mix(su[:105], bd[:sb])
    a.put([WAIT("kv_st"), stamp(1)] + publish(sF1) + S_INIT)
    mix(su[105:], bd[sb:] if sb else [])
    a.put(["s_barrier", stamp(4)])
    cu, co, ce = conv_dma()
    early = EARLY_SVC
    a.put(param_loads() + co + ce + [wd_dma(g, g, True) for g in range(early, 3)] + [visit("C")] + ([] if sb else bd))
    a.put([f"s_lshr_b32 s{GT[g]}, s{GT[g]}, 5" for g in list(range(early)) + bg])
    for g in range(3):
        a.put([WAIT(f"wd{g}")] + wd_reads(g, g))
    a.put([scheck(S_INIT, [82, 83], 0x80)] + S_KV + [wd_dma(g, g - 3, True) for g in range(3, min(6, G_AG))])
    a.put([scheck(S_KV, KVR, 1), "s_barrier"])
    a.put(cu + (row_loads() if "x" in GPLAN else []) + conv_zero_addr() + ["v_mov_b32 v12, 0"] + conv_zero(12))
    for g in range(3, G_AG):
        a.put([WAIT(f"wd{g}")] + wd_reads(g, g % 3))
        if g + 3 < G_AG:
            a.put([WAIT("allds")] + wd_dma(g + 3, g % 3, True))
    a.put([WAIT("allds")] + [wd_dma(g, None, True) for g in range(G_AG + 3, G_LD)])
    a.put([WAIT("allvm", "allds"), "s_barrier"] + conv_reads(0)[:NHEAD])
    a.put(stamp(5))


HR, NH = 192, 16
HPOL = OPT.get("x_hpol", SC).replace("none", "")


assert SPLIT
NPF = int(OPT.get("npf", NH - 1))
G2_ORDER = [(0, jj, g) for g in range(14) for jj in range(2)] + [(1, jj, g) for jj in range(2) for g in range(14)]


def h_load(n):
    p, jj, g = G2_ORDER[n]
    post = [f"v_add_u32 v{6+jj}, {112*1024}, v{6+jj}"] if n in (26, 27) else []
    return [VM(f"buffer_load_dwordx4 {vr(HR + 4*(n % NH), 4)}, v{6+jj}, {srd(rWS)}, s{GT[g]} offen {HPOL}", f"h{n}", after=f"wd{g}")] + post


def wd_conv_stream():
    items = [wd_dma(g) for g in range(G_LD, 14)]
    pos = {g: 4 * (g - G_LD) for g in range(G_LD, 14)}
    q = sum(items, [])
    pre = [[] for _ in range(len(q) + 1)]
    slot = 0
    for g in range(G_AG, 10):
        lo = pos[g] + 3 + 7 if g >= G_LD else 0
        assert g + 6 >= G_LD
        hi = pos[g + 6] - 1 if g + 6 < 14 else len(q)
        slot = min(max(slot, lo), max(hi - 1, 0))
        assert g < G_LD or slot > pos[g] + 3
        rd = wd_reads(g)
        pre[slot] += [WAIT(f"wd{g}")] + rd[:4]
        slot = min(slot + 1, max(hi, slot))
        pre[slot] += rd[4:]
        if g + 6 < 14:
            pre[pos[g + 6]].append(WAIT(f"wr{g}"))
        slot += 1
    return sum((pre[i] + (q[i] if i < len(q) else []) for i in range(len(q) + 1)), [])


def conv(a):
    ms = []
    for m in range(4):
        p = m & 1
        for aa in range(8):
            for b in range(8 - aa):
                acc = vr(CACC + 4 * (aa + b), 4)
                c = "0" if (m == 0 and aa == 0) else acc
                ms.append(f"v_mfma_f32_16x16x32_bf16 {acc}, {rg(CUF[p], 4*b, 4)}, {rg(CHF[p], 4*aa, 4)}, {c}")
    NP, NC = int(OPT.get("npub", 48)), int(OPT.get("nchk", 96))
    head = {0: [WAIT("cu1")], 2: [WAIT("cu3")], 8: [WAIT("ch1")], 15: [WAIT("cf0")]}
    head.update({b: [WAIT(f"cu{b}")] for b in (4, 5, 6, 7)})
    head.update({36 * m: [WAIT(f"cf{m}")] for m in (1, 2, 3)})
    head[NP] = head.get(NP, []) + [WAIT("h_st7"), stamp(6)] + publish(sF1, 0x100 if SPLIT else 1)
    head[NC] = head.get(NC, []) + [check(sPH, 7, 0xff), stamp(7)]
    rest = conv_reads(0)[NHEAD:]
    dummy = [DS(f"ds_read_b32 v0, v{vL8}")]
    dterm = [DS(f"ds_read_b128 {vr(96+4*j,4)}, v{vDT} offset:{(3-j)*512}", "dt") for j in range(4)]
    unp = [WAIT("dt"), f"v_lshlrev_b32 v{vDV}, 16, v{vDV}"]
    unp += [f"v_perm_b32 v{8+4*j+r}, v{96+4*j+3-r}, v{96+4*j+3-r}, v{vPS}" for j in range(4) for r in range(4)]
    streams = [(rest + conv_reads(1) + dummy, 0, len(rest) + 17), (conv_reads(2) + dummy + dummy, 36, 64), (conv_reads(3) + dummy, 72, 100),
               (wd_conv_stream(), int(OPT.get("wd0", 14)), int(OPT.get("wd1", 84))),
               (peek(sPH), NC - int(OPT.get("php", 34)), NC - int(OPT.get("php", 34)) + 1),
               CHAIN([([f"v_add_u32 v{6+p}, s{sHL+p}, v{vL16}" for p in range(2)], 28, 32), ([h_load(n) for n in range(NPF)], NC, 143)]), CHAIN([(dterm, 108, 113), (unp, 120, 140)])]
    fl, over = schedule(144, streams, 8, int(OPT.get("cmem", 2)))
    if over:
        print(f"conv: {over} left over", file=sys.stderr)
    a.weave([head.get(i, []) + [x] for i, x in enumerate(ms)], fl)
    a.put(stamp(8))


ACC2 = 128
XF, YV, PB = 8, 96, 64


def part_writes(p):
    return [DS(f"ds_write_b128 v{vPW+(u&1)}, {vr(ACC2 + (p*8+jj*4+u)*4, 4)} offset:{PART[p] + jj*4096 + (u>>1)*128}", f"pw{p}")
            for jj in range(2) for u in range(4)]


def part_reads(p):
    pre = [f"v_add_u32 v{vPR+e}, {hx(PART[1] - PART[0])}, v{vPR+e}" for e in range(2)] if p else []
    return pre, [DS(f"ds_read_b128 {vr(PB + 8*w + 4*e, 4)}, v{vPR+e} offset:{w*WDW}", f"pr{p}") for w in range(4) for e in range(2)]


XN = 24


def gate_first():
    b, r = PB, []
    for o in (8, 16, 24):
        r += [f"v_add_f32 v{b+j}, v{b+j}, v{b+o+j}" for j in range(8)]
    r += [f"v_mul_f32 v{b+8+j}, {hx(f2u(-1.4426950408889634))}, v{b+j}" for j in range(8)]
    r += [f"v_exp_f32 v{b+8+j}, v{b+8+j}" for j in range(8)]
    r += [f"v_mul_f32 v{XN+j}, v{XN+j}, v{b+j}" for j in range(8)]
    r += [f"v_add_f32 v{b+8+j}, 1.0, v{b+8+j}" for j in range(8)]
    r += [f"v_rcp_f32 v{b+8+j}, v{b+8+j}" for j in range(8)]
    r += [f"v_mul_f32 v{XN+j}, v{XN+j}, v{b+8+j}" for j in range(8)]
    return r


def out_store(p, src, t=44):
    return [f"v_cvt_pk_bf16_f32 v{t+j}, v{src+2*j}, v{src+2*j+1}" for j in range(4)] + \
        [VM(f"buffer_store_dwordx4 {vr(t,4)}, v{vXO}, {srd(rOUT)}, s{sXO+p} offen {OPT.get('outpol', SC).replace('none', '')}")]


def finalize_last():
    b, r, E = PB, [], range(0, 8, 2)
    for j in E:
        r += [f"v_pk_add_f32 {vr(b+j,2)}, {vr(b+j,2)}, {vr(b+8+j,2)}", f"v_pk_add_f32 {vr(b+16+j,2)}, {vr(b+16+j,2)}, {vr(b+24+j,2)}"]
    r += [f"v_pk_add_f32 {vr(b+j,2)}, {vr(b+j,2)}, {vr(b+16+j,2)}" for j in E]
    r += [f"v_pk_mul_f32 {vr(b+8+j,2)}, {vr(b+j,2)}, v[4:5] op_sel_hi:[1,0]" for j in E]
    r += [f"v_exp_f32 v{b+8+j}, v{b+8+j}" for j in range(8)]
    r += [f"v_pk_mul_f32 {vr(b+j,2)}, {vr(b+j,2)}, {vr(YV+8+j,2)}" for j in E]
    r += [f"v_pk_add_f32 {vr(b+8+j,2)}, {vr(b+8+j,2)}, 1.0 op_sel_hi:[1,0]" for j in E]
    r += [f"v_rcp_f32 v{b+8+j}, v{b+8+j}" for j in range(8)]
    r += [f"v_pk_fma_f32 {vr(b+j,2)}, {vr(b+j,2)}, {vr(b+8+j,2)}, {vr(XF+8+j,2)}" for j in E]
    return r + out_store(1, b)


def gemm2(a):
    ms = []
    for n, (p, jj, g) in enumerate(G2_ORDER):
        for u in range(4):
            acc = vr(ACC2 + (p * 8 + jj * 4 + u) * 4, 4)
            m = f"v_mfma_f32_16x16x32_bf16 {acc}, {ar(16*g + 4*u, 4)}, {vr(HR + 4*(n % NH), 4)}, {'0' if g == 0 else acc}"
            w = [f"h{n}"] + ([f"wr{g}"] if p == 0 and jj == 0 and g >= 9 else [])
            ms.append([WAIT(*w), m] if u == 0 else [m])
    NG = 224
    budget = [4 if g % 4 == 3 else 8 for g in range(NG)]
    NSPLIT = int(OPT.get("nsplit", 24))
    NS = NSPLIT // 4

    def exchange(half):
        return [([WAIT("wr8")] + [DS(f"ds_write_b128 v{vRW}, {vr(CACC+16*(1-half)+4*j,4)} offset:{j*1024}", "rw") for j in range(4)] +
                 [DS(f"ds_read_b32 v0, v{vL8}")], 2, NSPLIT - 6),
                ([f"v_fma_f32 v{8+j}, v{8+j}, v{vDV}, v{CACC+16*half+j}" for j in range(16)], 5, NSPLIT)]

    last = int(OPT.get("hlast", 48))
    when = lambda n: 4 * n if n < NS else NSPLIT + (n - NS) * (4 * last - NSPLIT) // (55 - NPF - NS)
    if "hpause" in OPT:
        k0, g1 = (int(v) for v in OPT["hpause"].split(":"))
        when = lambda n: 4 * n if n < k0 else 4 * g1 + (n - k0) * (4 * last - 4 * g1) // (55 - NPF - k0)
        assert k0 >= NS
    assert all(4 * (n + NPF - 3) > when(n) >= 4 * (n + NPF - NH + 1) for n in range(56 - NPF))
    hl = [(h_load(n + NPF), when(n), when(n) + 1) for n in range(56 - NPF)]
    if SPLIT:
        k2, p2 = 28 - NPF, int(OPT.get("ph2", 0))
        hl[p2] = (hl[p2][0] + peek(sPH),) + hl[p2][1:]
        hl[k2 - 1] = (hl[k2 - 1][0] + [check(sPH, 0x700)],) + hl[k2 - 1][1:]
    odd, join = a.label("odd"), a.label("join")
    a(f"s_cmp_eq_u32 s{sMH}, 0\ns_cbranch_scc0 {odd}")
    snap = (a.nvm, a.nds)
    for half, end in ((0, f"s_branch {join}\n{odd}:"), (1, f"{join}:")):
        a.nvm, a.nds = snap
        fl, over = schedule(NSPLIT, [CHAIN(hl[:NS])] + exchange(half), budget, 2)
        a.weave(ms[:NSPLIT], fl)
        a(end)

    yfin = [ATOM((WAIT("rw"), "s_barrier"))] + [DS(f"ds_read_b128 {vr(96+4*j,4)}, v{vRR} offset:{j*1024}", "rr") for j in range(4)]
    yfin.append(DS(f"ds_read_b32 v0, v{vL8}"))
    yst = [WAIT("rr")]
    for j in range(4):
        yst += [f"v_add_f32 v{8+4*j+r}, v{8+4*j+r}, v{96+4*j+r}" for r in range(4)]
        yst += [f"v_cvt_pk_bf16_f32 v{24+2*j+k}, v{8+4*j+2*k}, v{9+4*j+2*k}" for k in range(2)]
        yst.append(VM(f"buffer_store_dwordx2 {vr(24+2*j,2)}, v{vL8}, {srd(rWS)}, s{sYS} offen offset:{j*512} {SC}", "y_st" if j == 3 else None))
    if "yburst" in OPT:
        yst = [x for x in yst if not (isinstance(x, tuple) and x[0] == "vm")] + [x for x in yst if isinstance(x, tuple) and x[0] == "vm"]
    if "x_noyst" in OPT:
        yst = [x for x in yst if not (isinstance(x, tuple) and x[0] == "vm")] + [lambda e: e.tags.__setitem__("y_st", ("vm", e.nvm - 20))]
    xl = [] if "x" in GPLAN else row_loads()
    xs = [WAIT("xs")]
    for p in range(2):
        xs.append(f"v_rcp_f32 v{SR+2*p+1}, v{SR+2*p+1}")
        for j in range(4):
            xs += [f"v_lshlrev_b32 v{XF+8*p+2*j}, 16, v{XR+4*p+j}", f"v_and_b32 v{XF+8*p+2*j+1}, 0xffff0000, v{XR+4*p+j}"]
        xs.append(f"v_mul_f32 v{SR+2*p}, v{SR+2*p}, v{SR+2*p+1}")
    xs += [f"v_fma_f32 v{XN+8*p+j}, v{XF+8*p+j}, v{SR+2*p+1}, -v{SR+2*p}" for p in range(2) for j in range(8)]
    xs += [f"v_mov_b32 v{YV+j}, 0" for j in range(16)] + [f"v_mov_b32 v4, {hx(f2u(-1.4426950408889634))}"]
    YLATE = "yearly" not in OPT
    NF, NY = int(OPT.get("nf", 24)), int(OPT.get("ny", 36 if YLATE else 30))
    LY = int(OPT.get("ly", 13 if YLATE else 10))
    pre1, rd1 = part_reads(1)
    pw1 = part_writes(1)
    dummy = [DS(f"ds_read_b32 v0, v{vL8}", "dm")]
    yend = [ATOM((WAIT("y_dma"), "s_barrier"))]
    yend += [DS(f"ds_read_u16_d16_hi v{YV+8*p+j}, v{vYG+p} offset:{j*128}", f"yg{p}") for p in range(2) for j in range(8)]
    yend += [WAIT("yg0")] + [f"v_fma_f32 v{XN+j}, v{XN+j}, v{YV+j}, v{XF+j}" for j in range(8)] + out_store(0, XN)
    yend += [WAIT("yg1")] + [f"v_mul_f32 v{YV+8+j}, v{YV+8+j}, v{XN+8+j}" for j in range(8)]
    assert YLATE
    streams = [
        hl[NS:],
        [(yfin, NSPLIT, NSPLIT + 5), (yst, NSPLIT + 10, NSPLIT + int(OPT.get("ysw", 30))), (xs, 80, 116), (part_writes(0) + dummy + dummy, 118, 140),
         ([ATOM((WAIT("pw0"), "s_barrier"))] + part_reads(0)[1] + dummy, 143, 152),
         ([WAIT("pr0")] + pre1 + gate_first(), 157, 216)],
        [(xl, NSPLIT, NSPLIT + 12), ([WAIT("wd13")] + sum((wd_reads(g) for g in range(10, 14)), []) + dummy, int(OPT.get("wr0", 56)), 90),
         (pw1[:4], 176, 220)],
        [([WAIT("y_st")] + publish(sF2), 4 * NF, 4 * NF + 2), (peek(sPY), 4 * NY, 4 * NY + 1),
         ([check(sPY, 16), f"s_mov_b32 m0, s{sYM}", f"s_add_u32 s4, s{sYD}, {8*KVP_COPY - YP}",
           VM(f"buffer_load_dwordx4 v{vYD}, {srd(rWS)}, s{sYD} offen {SC} lds"),
           VM(f"buffer_load_dwordx4 v{vYD}, {srd(rWS)}, s4 offen offset:{YP} {SC} lds", "y_dma")], 4 * (NY + LY), 4 * (NY + LY) + 6)],
        [([stamp(9)], 48, 49), ([stamp(12)], 112, 113), ([stamp(13)], 168, 169)]]

    if "x_noychain" in OPT:
        streams[3] = [(streams[3][2][0][1:], 4 * 40, 4 * 40 + 6)]

    def drop(pred):
        for st in streams:
            for k, (it, g0, g1) in enumerate(st):
                st[k] = ([x for x in flat(it) if not pred(x)], g0, g1)

    txt = lambda x: repr(x)
    if "x_nolds" in OPT:
        drop(lambda x: "ds_write_b128" in txt(x) or "pw0" in txt(x) or "pr0" in txt(x) or "ds_read_b128 v[6" in txt(x) or "ds_read_b128 v[7" in txt(x) or "ds_read_b128 v[8" in txt(x) or "ds_read_b128 v[92" in txt(x))
    if "x_noldy" in OPT:
        drop(lambda x: "p_y" in txt(x))
    if "x_noydma" in OPT:
        drop(lambda x: "y_dma" in txt(x) or f"dwordx4 v{vYD}," in txt(x))
    if "x_noout0" in OPT:
        drop(lambda x: "buffer_store_dwordx4" in txt(x))
    if "x_noph2" in OPT:
        drop(lambda x: "p_h2" in txt(x) and "wait" in txt(x))
    if "x_novalu" in OPT:
        drop(lambda x: isinstance(x, str) and x.startswith("v_"))
    streams = [CHAIN((it, g0 - NSPLIT, g1 - NSPLIT) for it, g0, g1 in st) for st in streams]
    fl, over = schedule(NG - NSPLIT, streams, budget[NSPLIT:], 2)
    if over:
        print(f"gemm2: {over} left over", file=sys.stderr)
    a.weave(ms[NSPLIT:], fl)
    a.put([stamp(10), "s_nop 4"] + pw1[4:])
    fin, E = finalize_last(), range(0, 8, 2)
    k = [i for i, x in enumerate(fin) if str(x).startswith("v_exp")][-1] + 1
    a.put([WAIT("pw1", "y_dma"), "s_barrier"] + yend[1:9] + rd1 + yend[9:17])
    a.put([WAIT("yg0")] + [f"v_pk_fma_f32 {vr(XN+j,2)}, {vr(XN+j,2)}, {vr(YV+j,2)}, {vr(XF+j,2)}" for j in E] + out_store(0, XN, 40))
    a.put([WAIT("pr1")] + fin[:k])
    a.put([WAIT("yg1")] + [f"v_pk_mul_f32 {vr(YV+8+j,2)}, {vr(YV+8+j,2)}, {vr(XN+8+j,2)}" for j in E] + fin[k:])


def add_pads(a):
    import re, subprocess, tempfile, os
    probe = re.sub(r"L_page\w+", "L_return", a.text())
    d = tempfile.mkdtemp()
    open(d + "/p.s", "w").write(HEAD + probe)
    subprocess.run(["clang", "-x", "assembler", "-target", "amdgcn-amd-amdhsa", "-mcpu=gfx950", "-c",
                    d + "/p.s", "-o", d + "/p.o"], check=True)
    lst = subprocess.run(["llvm-objdump", "-d", "--mcpu=gfx950", d + "/p.o"], capture_output=True, text=True).stdout
    lst = lst[lst.index("<L_main>:"):]
    sizes = [4 * len(m.group(1).split()) for m in re.finditer(r"// [0-9A-F]{12}: ([0-9A-F ]+)", lst)]
    k = a.lines.index("L_main:") + 1
    out, off, pages, i = a.lines[:k], 0, [], 0
    region, lanes_off = "main", False
    for ln in a.lines[k:]:
        if ln in ("L_join:", "L_service:"):
            region = ln
        if ln.startswith("    "):
            if off >= 4096 * len(pages) and not lanes_off:
                out += [f"L_pad{len(pages)}:", "    s_cbranch_execz L_return"]
                pages.append(region)
                off += 4
            off += sizes[i]
            i += 1
            if "exec" in ln.split(",")[0]:
                lanes_off = ln.strip() == "s_mov_b64 exec, 0"
        out.append(ln)
    assert i == len(sizes)
    main = [p for p, r in enumerate(pages) if r != "L_service:"]
    groups = {"A": main[:4], "B": main[4:8], "Z": main[:1] + main[5:8], "D": main[1:5], "S": [p for p, r in enumerate(pages) if r == "L_service:"],
              "C": [p for p, r in enumerate(pages) if r == "L_join:"]}
    assert len(main) <= 8 and all(len(g) <= 4 for g in groups.values()), pages
    text = "\n".join(out)
    for g, ps in groups.items():
        for w in range(4):
            text = text.replace(f"L_page{g}_{w}", f"L_pad{ps[w]}" if w < len(ps) else "L_return")
    a.lines = text.split("\n")


def build():
    a = Em()
    for k in OPT.get("x_skip", "").split(","):
        if k.startswith("wd"):
            gs = [f"{srd(rWD)}, s{GT[g]} " for g in range(int(k[2:].split("-")[0]), int(k.split("-")[1]))]
            a.skip.append(lambda t, gs=gs: any(g in t for g in gs))
        if k == "wr":
            a.skip.append(lambda t: t.startswith("ds_read_b64_tr") and (f"v{vDA} " in t or f"v{vDA+1} " in t))
        if k == "cr":
            a.skip.append(lambda t: t.startswith("ds_read_b128") and f"v{vUA} " in t)
        if k == "hall":
            a.skip.append(lambda t: (", v7, " in t or ", v6, " in t) and "dwordx4 v[" in t)
        if k == "ist":
            a.skip.append(lambda t: t.startswith(("buffer_store_dword v4", "buffer_store_dwordx2 v[44")))
        if k == "stl":
            a.skip.append(lambda t: ", v96, " in t)
        if k == "hand":
            a.skip.append(lambda t: f", v{vG1S}, " in t or f"s{sCS} offen" in t)
        if k == "ce":
            a.skip.append(lambda t: "s89 offen" in t)
        if k == "ifl":
            a.skip.append(lambda t: t.startswith("buffer_store_dword v47"))
        if k == "ics":
            a.skip.append(lambda t: t.startswith("buffer_store_dword v43"))
        if k == "iss":
            a.skip.append(lambda t: t.startswith("buffer_store_dwordx2 v[44"))
        if k == "hst":
            a.skip.append(lambda t: f", v{vHO}, " in t)
        if k == "hld":
            a.skip.append(lambda t: ", v7, " in t and "dwordx4 v[" in t)
        if k == "cv":
            a.skip.append(lambda t: f"dwordx4 v{vL16}, " in t and "lds" in t)
        if k == "x":
            a.skip.append(lambda t: any(f"dwordx4 v{vXD+j}, {srd(rX)}" in t for j in range(4, 8)))
        if k == "touch":
            a.skip.append(lambda t: "dword v47" in t or "ushort" in t)
    entry(a)
    a(f"s_cmp_ge_u32 s{sIDX}, 28\ns_cbranch_scc1 L_service")
    snap = (a.nvm, a.nds)
    gemm_role(a)
    keep = getattr(a, "pending", None)
    if keep != 5:
        stamp_flush(a)
    a("L_join:")
    conv(a)
    gemm2(a)
    if STAMP:
        a.put([stamp(11), WAIT("allvm"), stamp(15), "s_waitcnt lgkmcnt(0)"])
        stamp_flush(a)
        a(f"""
        s_add_u32 s{rWS}, s{rWS}, {WS_TS}
        s_addc_u32 s{rWS+1}, s{rWS+1}, 0
        s_lshl_b32 s4, s2, 2
        s_add_u32 s4, s4, s{sW}
        s_lshl_b32 s4, s4, 8
        s_getreg_b32 s5, hwreg(HW_REG_XCC_ID)
        s_getreg_b32 s6, hwreg(HW_REG_HW_ID)
        v_writelane_b32 v{vST}, s5, 32
        v_writelane_b32 v{vST}, s6, 33
        v_lshlrev_b32 v4, 2, v{vLANE}
        buffer_store_dword v{vST}, v4, {srd(rWS)}, s4 offen
        """)
    if "diag" in OPT:
        k = int(OPT["diag"])
        a(f"""
        v_readlane_b32 s4, v{vST}, 30
        v_readlane_b32 s5, v{vST}, {16 + k}
        s_nop 3
        s_cmp_eq_u32 s5, 0
        s_cselect_b32 s5, s4, s5
        s_cmp_eq_u32 s2, {OPT.get("diagwg", 40)}
        s_cselect_b32 s5, s5, s4
        s_add_u32 s5, s5, 4000
        L_diag:
        s_memrealtime s[94:95]
        s_waitcnt lgkmcnt(0)
        s_sub_u32 s6, s94, s5
        s_cmp_lt_i32 s6, 0
        s_cbranch_scc1 L_diag
        """)
    a("L_exit:\ns_endpgm\nL_service:")
    a.nvm, a.nds = snap
    service_role(a)
    if keep != 5:
        stamp_flush(a)
    a("s_branch L_join")
    for t in a.tail:
        a(t)
    a("L_end:\ns_endpgm")
    if "nearsvc" in OPT:
        i0, i1 = a.lines.index("L_service:"), a.lines.index("L_service_rest:")
        k = a.lines.index("    s_cbranch_scc1 L_service")
        a.lines = (a.lines[:k] + ["    s_cbranch_scc0 L_gemm"] + a.lines[i0 + 1:i1] + ["    s_branch L_service", "L_gemm:"] +
                   a.lines[k + 1:i0 + 1] + a.lines[i1 + 1:])
    if WALK:
        add_pads(a)
    hdr = open("cdna_kernels/" + NAME + ".s.ref").read().split("; Override launch")[0]
    t = hdr + f"; @launch grid=(256,1,1) block=(256,1,1) lds={LDS_BYTES}\n" + HEAD + (".p2align 12\n" if WALK else "") + kernel_text(KERNEL, a.text())
    t += '.section .rodata,"a"\n' + descriptor(KERNEL, vgpr=512, accum=256)
    return t


if __name__ == "__main__":
    open(sys.argv[1], "w").write(build())
```

```python
import re
import sys
from common import (NAME, S, D, F, X_BYTES, W_BYTES, WS_H, WS_KV, WS_Y, WS_ST, WS_CS, WS_FL, WS_TS, LDS_BYTES, SLOT, KVP_COPY,
                    f2u, hx, vr, ar, spread, merge)
from asmlib import HEAD, kernel_text, descriptor
from emit import Em, VM, DS, WAIT, lines, schedule, ATOM, CHAIN, flat

OPT = dict(x[2:].split("=") if "=" in x else (x[2:], "1") for x in sys.argv if x.startswith("--"))
STAMP = "stamp" in OPT
KERNEL = NAME + "_kernel"
WS_BYTES = 16 << 20
SC = "sc1"
XLEAD = int(OPT.get("xlead", 1))
SPLIT = "nosplit" not in OPT

rX, rW, rWS, rWD, rSK, rOUT, rDBG, rV = 8, 12, 16, 20, 24, 28, 32, 36
pSD, pSH, pKV = 98, 42, 80
sXM, sWM, sXK, sWK, sHS = 44, 45, 46, 47, 48
sF1, sF2, sPH, sPY, sPK = 56, 57, 58, 59, 60
sDM = 61
sUM, sHM, sKVO, sSKO, sYS = 63, 64, 65, 66, 67
sYD, sYM, sXO, sSO, sHL, sG1S, sMH, sSPIN = 68, 69, 70, 72, 74, 76, 77, 78
sRB, sFS, sT2, sCT = 84, 85, 86, 87
GT = [62, 0, 1, 3, 39, 40, 50, 51, 52, 53, 54, 55, 80, 81]
sCS, sEM, sSP = 36, 41, 88
sXCD, sIDX, sW = 90, 91, 92
srd = lambda r: f"s[{r}:{r+3}]"

vLANE, vL16, vST = 1, 2, 3
vXD, vWD, vXA, vXB, vWA, vWB = 8, 16, 20, 22, 24, 28
vHO, vCA, vG1S, vCL, vH0, vPS, vDS = 32, 33, 34, 35, 36, 37, 43
vMS, vGC, vI2, vBM = 40, 8, 16, 64
vDD, vDA, vUA, vHA, vZU, vZH, vRW, vRR, vDT, vL8, vM0, vDV = 48, 52, 54, 55, 56, 57, 58, 59, 60, 61, 62, 63
vYD, vXO, vSO, vYG, vPW, vPR, vFH, vFY, vFK, vFD, vPOLL = 112, 113, 114, 115, 117, 121, 123, 124, 125, 126, 127
FR = [("v", 64), ("a", 160)]
ACC1 = 128
vDA4 = [vDA, vDA + 1, vM0, vFH]
rg = lambda kb, o, n: (vr if kb[0] == "v" else ar)(kb[1] + o, n)

US = 4640
CH_LDS = 4 * US + 4208 + 16
CONV_BASE = 2 * SLOT + 16
EB, ES = 3 * SLOT + 16, 4352
YB, YP = 3 * SLOT, 1040
CSL = 3 * SLOT + 12288
STL = 3 * SLOT
WDW = 12288
KB, KVP = 0, 1056
VB = 9 * KVP
KVT = 18 * KVP
FL_H, FL_Y, FL_K = WS_FL, WS_FL + 131072, WS_FL + 262144

C1 = -2.0 * 0.7978845608028654 * 1.4426950408889634
C2 = C1 * 0.044715


def stamp(n, g1=False):
    mode = "g1" if "g1st" in OPT else ("ge" if "gest" in OPT else ("sv" if "svst" in OPT else ("g7" if "g7st" in OPT else False)))
    g1 = "g1" if g1 is True else g1
    if "lite" in OPT and n not in (0, 15):
        return None
    keep = (0, 1, 2, 15) if mode == "g1" else (0, 1, 2, 3, 4, 15)
    if not STAMP or (mode != g1 and (g1 or n not in keep)):
        return None

    def emit(a):
        stamp_flush(a, False)
        if n == 0:
            a(f"v_writelane_b32 v{vST}, s100, 14\nv_writelane_b32 v{vST}, s94, 30")
        a("s_memrealtime s[94:95]\ns_memtime s[96:97]")
        a.pending = n
    return emit


def stamp_flush(a, wait=True):
    n = getattr(a, "pending", None)
    if n is not None:
        a(("s_nop 15\ns_nop 15\n" if wait else "") + f"v_writelane_b32 v{vST}, s96, {n}\nv_writelane_b32 v{vST}, s94, {16 + n}")
    a.pending = None


LD_INIT = f"buffer_load_dword v{vPOLL}, v{vFD}, {srd(rDBG)}, 0 offen {SC}"
LD_KV = f"buffer_load_dword v{vPOLL}, v{vFK}, {srd(rWS)}, s{sPK} offen {SC}"


def publish(sf, inc=1):
    r = 79 if inc == 1 else 82
    return [f"s_mov_b32 s{r}, {inc}", f"s_atomic_add s{r}, s[{rWS}:{rWS+1}], s{sf}"]


def peek(sp):
    return ["s_mov_b32 s83, 0", f"s_atomic_add s83, s[{rWS}:{rWS+1}], s{sp} glc"]


def check(sp, want, mask=None):
    def emit(a):
        slow, back = a.label("slow"), a.label("back")
        test = (f"s_and_b32 s83, s83, {mask}\n" if mask else "") + f"s_cmp_ge_u32 s83, {want}"
        a("s_waitcnt lgkmcnt(0)")
        if ("x_noypoll" in OPT and sp == sPY) or ("x_nohpoll" in OPT and sp == sPH):
            return
        a(f"{test}\ns_cbranch_scc0 {slow}\n{back}:")
        a.tail.append(f"""
        {slow}:
        s_mov_b32 s{sSPIN}, 0x10000
        {slow}_l:
        s_mov_b32 s83, 0
        s_atomic_add s83, s[{rWS}:{rWS+1}], s{sp} glc
        s_sub_u32 s{sSPIN}, s{sSPIN}, 1
        s_cmp_eq_u32 s{sSPIN}, 0
        s_waitcnt lgkmcnt(0)
        s_cbranch_scc1 {back}
        {test}
        s_cbranch_scc0 {slow}_l
        s_branch {back}
        """)
    return emit


KVR = [44, 45, 46, 47, 42, 43, 98, 99]
S_INIT = [f"s_load_dword s{82+j}, s[{rDBG}:{rDBG+1}], {128*j}" for j in range(2)]
S_KV = [f"s_load_dword s{KVR[j]}, s[{rWS}:{rWS+1}], s{sPK} offset:{128*j}" for j in range(8)]


def scheck(loads, regs, want):
    def emit(a):
        slow, back = a.label("slow"), a.label("back")
        test = "\n".join(f"s_min_u32 s{regs[0]}, s{regs[0]}, s{r}" for r in regs[1:]) + f"\ns_cmp_ge_u32 s{regs[0]}, {want}"
        a("s_waitcnt lgkmcnt(0)")
        if "x_nokvpoll" in OPT and loads is S_KV:
            return
        a(f"{test}\ns_cbranch_scc0 {slow}\n{back}:")
        a.tail.append(f"""
        {slow}:
        s_mov_b32 s{sSPIN}, 0x10000
        {slow}_l:
        {LD_KV if loads is S_KV else LD_INIT}
        s_sub_u32 s{sSPIN}, s{sSPIN}, 1
        s_cmp_eq_u32 s{sSPIN}, 0
        s_waitcnt vmcnt(0)
        s_cbranch_scc1 {back}
        v_cmp_gt_u32 vcc, {want}, v{vPOLL}
        s_cbranch_vccnz {slow}_l
        s_branch {back}
        """)
    return emit


WALK = "nowalk" not in OPT


def visit(first, link=6):
    def emit(a):
        if not WALK:
            return
        done = a.label("visited")
        if link != 6:
            a(f"s_mov_b64 s[{link}:{link+1}], s[6:7]")
        a("s_mov_b64 exec, 0")
        for w in range(4):
            nxt = a.label("w")
            if w < 3:
                a(f"s_cmp_lg_u32 s{sW}, {w}\ns_cbranch_scc1 {nxt}")
            a(f"s_call_b64 s[6:7], L_page{first}_{w}")
            if w < 3:
                a(f"s_branch {done}\n{nxt}:")
        a(f"{done}:\ns_mov_b64 exec, -1")
        if link != 6:
            a(f"s_mov_b64 s[6:7], s[{link}:{link+1}]")
    return emit


def x_delay(point):
    def emit(a):
        for spec in OPT.get("x_delay", "").split(","):
            if spec.startswith(point + ":"):
                _, mask, val = spec.split(":")
                skip = a.label("dly")
                a(f"s_and_b32 s{sSPIN}, s2, {mask}\ns_cmp_lg_u32 s{sSPIN}, {val}\ns_cbranch_scc1 {skip}\n" + "s_sleep 127\n" * 3 + f"{skip}:")
    return emit


def entry(a):
    if STAMP:
        a("s_memrealtime s[94:95]\ns_memtime s[100:101]")
    a(f"""
    s_load_dwordx2 s[{rX}:{rX+1}], s[0:1], 0
    s_load_dwordx4 s[36:39], s[0:1], 56
    s_load_dwordx2 s[{rWS}:{rWS+1}], s[0:1], 96
    s_load_dwordx4 s[{pKV}:{pKV+3}], s[0:1], 8
    s_getpc_b64 s[4:5]
    L_pc:
    s_cmp_ge_u32 s2, 256
    s_cbranch_scc1 L_exit
    s_lshr_b32 s{sIDX}, s2, 3
    v_lshrrev_b32 v4, 4, v0
    s_lshl_b32 s6, s{sIDX}, 11
    v_lshl_add_u32 v4, v4, 7, s6
    v_min_u32 v4, L_end-L_pc-4, v4
    v_mov_b32 v5, s5
    v_add_co_u32 v4, vcc, s4, v4
    v_lshrrev_b32 v6, 6, v0
    v_and_b32 v{vLANE}, 63, v0
    v_addc_co_u32 v5, vcc, 0, v5, vcc
    """)
    if "nocodepf" not in OPT:
        a.put(VM(f"global_load_dword v{vPOLL}, v[4:5], off"))
    a(f"""
    v_readfirstlane_b32 s{sW}, v6
    s_load_dwordx2 s[{rWD}:{rWD+1}], s[0:1], 72
    s_load_dwordx2 s[{rSK}:{rSK+1}], s[0:1], 32
    s_load_dwordx2 s[{rOUT}:{rOUT+1}], s[0:1], 80
    s_load_dwordx2 s[{rDBG}:{rDBG+1}], s[0:1], 88
    s_load_dwordx2 s[{pSD}:{pSD+1}], s[0:1], 40
    s_load_dwordx2 s[{pSH}:{pSH+1}], s[0:1], 24
    s_and_b32 s{sXCD}, s2, 7
    v_lshlrev_b32 v{vL16}, 4, v{vLANE}
    s_mov_b32 s{rX+2}, {X_BYTES}
    s_mov_b32 s{rX+3}, 0x20000
    s_mov_b32 s{rW+3}, 0x20000
    s_and_b32 s4, s{sXCD}, 1
    s_lshr_b32 s5, s{sXCD}, 1
    s_lshl_b32 s{sRB}, s4, 2
    s_add_u32 s{sT2}, s{sRB}, s5
    s_lshl_b32 s6, s{sT2}, 5
    s_add_u32 s6, s6, s{sIDX}
    s_lshl_b32 s6, s6, 2
    s_add_u32 s6, s6, s{sW}
    s_lshl_b32 s79, s6, 11
    v_lshrrev_b32 v4, 5, v{vLANE}
    v_and_b32 v5, 31, v{vLANE}
    v_lshlrev_b32 v96, 10, v4
    v_lshl_add_u32 v96, v5, 4, v96
    v_lshrrev_b32 v6, 3, v{vLANE}
    v_and_b32 v7, 7, v{vLANE}
    """)
    if STAMP:
        a(f"v_mov_b32 v{vST}, 0")


def stats_loads():
    return [VM(f"buffer_load_dwordx4 v[64:67], v96, {srd(rX)}, s79 offen"),
            VM(f"buffer_load_dwordx4 v[68:71], v96, {srd(rX)}, s79 offen offset:512", "stats_ld")]


def reduce32(v, t):
    r = []
    for ctl in ("quad_perm:[1,0,3,2]", "quad_perm:[2,3,0,1]", "row_half_mirror", "row_mirror"):
        r += ["s_nop 1", f"v_add_f32_dpp v{v}, v{v}, v{v} {ctl} row_mask:0xf bank_mask:0xf"]
    return r + [f"v_mov_b32 v{t}, v{v}", "s_nop 1", f"v_permlane16_swap_b32 v{t}, v{v}", "s_nop 0",
                f"v_add_f32 v{v}, v{t}, v{v}"]


def rnd(v):
    return [f"v_cvt_pk_bf16_f32 v{v}, v{v}, v{v}", f"v_and_b32 v{v}, 0xffff0000, v{v}"]


def stats_compute():
    r = [WAIT("stats_ld")]
    for j in range(8):
        r += [f"v_lshlrev_b32 v{72+2*j}, 16, v{64+j}", f"v_and_b32 v{73+2*j}, 0xffff0000, v{64+j}"]
    r.append("v_pk_add_f32 v[88:89], v[72:73], v[74:75]")
    r += [f"v_pk_add_f32 v[88:89], v[88:89], v[{72+2*j}:{73+2*j}]" for j in range(2, 8)]
    r += ["v_add_f32 v88, v88, v89"] + reduce32(88, 89) + [f"v_mul_f32 v88, {hx(f2u(1.0/512))}, v88"]
    r += [f"v_pk_add_f32 v[{72+2*j}:{73+2*j}], v[{72+2*j}:{73+2*j}], v[88:89] op_sel_hi:[1,0] neg_lo:[0,1] neg_hi:[0,1]"
          for j in range(8)]
    r.append("v_pk_mul_f32 v[90:91], v[72:73], v[72:73]")
    r += [f"v_pk_fma_f32 v[90:91], v[{72+2*j}:{73+2*j}], v[{72+2*j}:{73+2*j}], v[90:91]" for j in range(1, 8)]
    r += ["v_add_f32 v89, v90, v91"] + reduce32(89, 90) + [f"v_mul_f32 v89, {hx(f2u(1.0/512))}, v89"]
    r += rnd(88) + rnd(89) + [f"v_add_f32 v89, {hx(f2u(1e-5))}, v89"] + rnd(89) + ["v_sqrt_f32 v89, v89"]
    r += lines(f"""
    s_lshr_b32 s79, s79, 13
    s_lshl_b32 s79, s79, 7
    s_add_u32 s79, s79, {WS_ST}
    s_lshl_b32 s{sSPIN}, s{sW}, 4
    v_lshl_add_u32 v90, v4, 3, s{sSPIN}
    v_add_u32 v90, {STL}, v90
    v_and_b32 v46, 48, v{vL16}
    v_add_u32 v46, {STL}, v46
    v_or_b32 v47, s{sW}, v6
    v_min_u32 v47, 1, v47
    v_lshlrev_b32 v47, 31, v47
    v_or_b32 v47, v47, v{vL16}
    """) + rnd(89) + [DS("ds_write_b64 v90, v[88:89]", "st_w")]
    return r


def stats_publish(t):
    return (DS(f"ds_read_b128 {vr(t,4)}, v46", "st_r"),
            [WAIT("st_r"), VM(f"buffer_store_dwordx4 {vr(t,4)}, v47, {srd(rWS)}, s79 offen {SC}", "init_st")])


def init_signal():
    return lines(f"""
    s_and_b32 s4, s2, 1
    s_lshl_b32 s4, s4, 7
    """) + [ATOM((f"s_cmp_eq_u32 s{sW}, 0", "s_cselect_b32 s4, s4, 0x1000"))] + lines(f"""
    v_mov_b32 v4, 1
    v_add_u32 v5, s4, v{vM0}
    """) + [VM(f"buffer_atomic_add v4, v5, {srd(rDBG)}, 0 offen {SC}")]


def clear_counters(a):
    l1, l2 = a.label("clr"), a.label("clr")
    a(f"""
    s_mov_b32 s82, 0
    s_add_u32 s83, s{sIDX}, 4
    s_and_b32 s83, s83, 24
    s_cbranch_scc1 {l1}
    s_atomic_and s82, s[{rWS}:{rWS+1}], s{sF1}
    {l1}:
    s_and_b32 s83, s5, 15
    s_cbranch_scc1 {l2}
    s_atomic_and s82, s[{rWS}:{rWS+1}], s{sF2}
    {l2}:
    """)


def setup_common(part=None):
    r = setup_all()
    cut = r.index(f"s_add_u32 s{sF2}, s6, {FL_Y}") + 1
    if part != 1:
        r = r[:cut] + [clear_counters] + r[cut:]
    if part == 0:
        return r[:cut + 1]
    late, pre = r.index(f"v_lshlrev_b32 v{vFK}, 7, v6") + 1, []
    if False:
        late = r.index(f"s_add_u32 s89, s{sSKO}, 2") + 1
        pre = [f"s_lshr_b32 s4, s{sW}, 1", f"s_lshl_b32 s6, s{sMH}, 11"]
    if part == "early":
        return r[:late]
    if part == "late":
        return [re.sub(r"\bv(98|99|10[0-3])\b", lambda m: f"v{(int(m.group(1)) - 101) % 6 + 40}", x) for x in pre + r[late:]]
    if part == "wd":
        i0, i1 = r.index(f"s_mul_i32 s{sDM}, s{sW}, {WDW}"), r.index(f"s_mov_b32 s{GT[0]}, s93") + 1
        t0 = r.index("s_add_u32 s6, s93, 32768")
        return [f"v_lshrrev_b32 v98, 4, v{vLANE}"] + r[i0:i1] + r[t0:t0 + 6] + r[t0 + 3 * (G_AG - 1):t0 + 3 * (G_AG + 2)]
    if part == 1:
        redo = r.index(f"s_lshr_b32 s4, s{sW}, 1")
        return [f"v_lshrrev_b32 v4, 5, v{vLANE}", f"v_and_b32 v5, 31, v{vLANE}"] + r[redo:]
    return r


def setup_all():
    r = []
    for q, n in ((rWS, WS_BYTES), (rWD, W_BYTES), (rSK, X_BYTES), (rOUT, X_BYTES), (rDBG, 256)):
        r += [f"s_mov_b32 s{q+2}, {n}", f"s_mov_b32 s{q+3}, 0x20000"]
    table = "\n".join(f"s_add_u32 s6, s93, {g*32768}\ns_sub_u32 s7, s6, {14*32768}\ns_min_u32 s{GT[g]}, s6, s7" for g in range(1, 14))
    rot = f"""
    s_bfe_u32 s6, s{sT2}, 0x10001
    s_mul_i32 s6, s6, 3
    s_xor_b32 s7, s{sCT}, 3
    s_min_u32 s7, s7, {0 if "rot4" in OPT else 1}
    s_sub_u32 s7, 1, s7
    s_mul_i32 s6, s6, s7
    {f's_xor_b32 s93, s{sT2}, s{sCT}' if 'nohrot' not in OPT else f's_mov_b32 s93, s{sT2}'}
    s_and_b32 s93, s93, 1
    s_mul_i32 s93, s93, 7
    {"s_mul_i32 s93, s93, s7" if "rot1" in OPT else ""}
    s_add_u32 s6, s6, s93
    s_min_u32 s7, s{sXCD}, {int(OPT.get("xrot", 6))}
    s_add_u32 s93, s6, s7
    s_sub_u32 s7, s93, 14
    s_min_u32 s93, s93, s7
    s_lshl_b32 s93, s93, 15
    s_mov_b32 s{GT[0]}, s93
    """
    LEAD = int(OPT.get("lead", 0))
    lead = ""
    if LEAD:
        def entry_code(g):
            return (f"s_bfe_u32 s6, s{42 + g // 8}, {0x40000 + 4 * (g % 8)}\ns_lshl_b32 s6, s6, 15\ns_add_u32 s6, s6, s93\n"
                    f"s_sub_u32 s7, s6, {14*32768}\ns_min_u32 s{GT[g]}, s6, s7")
        lead = f"s_add_u32 s6, s{sT2}, s{sCT}\ns_and_b32 s6, s6, 3\n"
        for ph in range(4):
            perm = sorted(range(14), key=lambda g: g - (LEAD + 0.5) * (g % 4 == (ph + 1) % 4))
            w = sum(g << (4 * i) for i, g in enumerate(perm))
            if ph == 0:
                lead += f"s_mov_b32 s42, {hx(w)}\ns_mov_b32 s43, {hx(w >> 32)}\n"
            else:
                lead += f"s_cmp_eq_u32 s6, {ph} ; s_cmov_b32 s42, {hx(w)} ; s_cmov_b32 s43, {hx(w >> 32)}\n"
        lead += f"s_mul_i32 s93, s{sXCD}, {int(OPT.get('xl', 7))}\ns_lshr_b32 s93, s93, 2\ns_lshl_b32 s93, s93, 15\n" + entry_code(0)
        table = "\n".join(entry_code(g) for g in range(1, 14))
    r += lines(f"""
    v_cmp_eq_u32 vcc, 0, v{vLANE}
    s_lshl_b32 s{sT2}, s{sT2}, 2
    s_and_b32 s4, s{sIDX}, 3
    v_bfrev_b32 v{vM0}, 1
    v_lshlrev_b32 v{vL8}, 3, v{vLANE}
    v_cndmask_b32 v{vM0}, v{vM0}, 0, vcc
    s_add_u32 s{sT2}, s{sT2}, s4
    s_lshr_b32 s4, s{sIDX}, 2
    s_xor_b32 s{sCT}, s4, 4
    s_lshr_b32 s4, s4, 2
    s_and_b32 s5, s{sXCD}, 1
    s_lshl_b32 s5, s5, 1
    s_add_u32 s4, s4, s5
    s_lshl_b32 s4, s4, 2
    s_add_u32 s4, s4, s{sW}
    s_lshl_b32 s4, s4, 10
    s_add_u32 s{sPK}, s4, {FL_K}
    s_lshr_b32 s4, s{sW}, 1
    s_and_b32 s{sMH}, s{sW}, 1
    s_lshl_b32 s5, s{sXCD}, 5
    s_add_u32 s5, s5, s{sIDX}
    s_lshl_b32 s5, s5, 1
    s_add_u32 s5, s5, s4
    s_lshl_b32 s6, s{sMH}, 9
    s_add_u32 s6, s6, s5
    s_lshr_b32 s6, s6, 4
    s_lshl_b32 s6, s6, 7
    s_add_u32 s{sF2}, s6, {FL_Y}
    s_lshl_b32 s{sSKO}, s5, 12
    s_lshl_b32 s6, s{sMH}, 11
    s_mul_i32 s{sYS}, s5, {KVP_COPY}
    s_add_u32 s{sKVO}, s{sYS}, {WS_KV}
    s_add_u32 s{sYS}, s{sYS}, s6
    s_add_u32 s{sYS}, s{sYS}, {WS_Y}
    s_lshl_b32 s5, s5, 1
    v_mov_b32 v{vDV}, s5
    v_mov_b32 v{vH0}, s{sSKO}
    s_add_u32 s{sSKO}, s{sSKO}, s6
    s_add_u32 s89, s{sSKO}, 2
    s_mul_i32 s7, s4, {ES}
    s_add_u32 s7, s7, {EB}
    s_mul_i32 s4, s4, {CH_LDS}
    s_add_u32 s4, s4, {CONV_BASE}
    s_mul_i32 s5, s{sMH}, {2*US + 8}
    s_sub_u32 s{sUM}, s4, s5
    s_add_u32 s{sHM}, s4, s6
    s_add_u32 s{sHM}, s{sHM}, {4*US + 112}
    s_add_u32 s{sEM}, s7, s6
    s_add_u32 s{sEM}, s{sEM}, 116
    v_lshl_add_u32 v{vZU}, v{vLANE}, 2, s{sUM}
    s_sub_u32 s93, s7, s4
    s_sub_u32 s93, s93, {4*US}
    s_add_u32 s5, s{sMH}, 27
    v_min_u32 v{vZH}, s5, v{vLANE}
    s_mul_i32 s5, s{sMH}, s93
    s_add_u32 s5, s5, s4
    s_add_u32 s5, s5, {4*US}
    v_lshl_add_u32 v{vZH}, v{vZH}, 2, s5
    s_sub_u32 s5, s4, s6
    s_add_u32 s5, s5, {3*US + 4080 - 3*512}
    v_and_b32 v{vDT}, -16, v{vL8}
    v_sub_u32 v{vDT}, s5, v{vDT}
    s_lshl_b32 s5, s{sMH}, 8
    s_add_u32 s4, s4, s5
    s_add_u32 s7, s7, s5
    v_lshrrev_b32 v98, 4, v{vLANE}
    v_and_b32 v{vFK}, 3, v{vLANE}
    v_bfe_u32 v99, v{vLANE}, 2, 2
    v_mul_u32_u24 v{vUA}, {US}, v{vFK}
    v_lshlrev_b32 v100, 7, v99
    v_sub_u32 v{vUA}, v{vUA}, v100
    v_lshl_add_u32 v{vUA}, v98, 4, v{vUA}
    s_add_u32 s5, s4, {248*16 - 7*512}
    v_add_u32 v{vUA}, s5, v{vUA}
    v_and_b32 v{vFD}, 1, v{vLANE}
    v_mul_u32_u24 v{vHA}, s93, v{vFD}
    v_sub_u32 v{vHA}, s7, v{vHA}
    v_bfe_u32 v101, v{vLANE}, 1, 3
    v_add_u32 v101, v101, v98
    v_lshl_add_u32 v{vHA}, v101, 4, v{vHA}
    v_mul_u32_u24 v{vPS}, 0x202, v{vFD}
    v_sub_u32 v{vPS}, 0x302, v{vPS}
    v_lshlrev_b32 v{vPS}, 16, v{vPS}
    v_or_b32 v{vPS}, 0xc0c, v{vPS}
    v_lshlrev_b32 v{vFD}, 7, v4
    s_mul_i32 s{sDM}, s{sW}, {WDW}
    s_add_u32 s5, s{sDM}, {wd_off(RED_SLOT)}
    v_add_u32 v{vRW}, s5, v{vL16}
    s_xor_b32 s5, s{sW}, 1
    s_mul_i32 s5, s5, {WDW}
    s_add_u32 s5, s5, {wd_off(RED_SLOT)}
    v_add_u32 v{vRR}, s5, v{vL16}
    v_lshlrev_b32 v102, 1, v98
    v_xor_b32 v102, v7, v102
    v_lshlrev_b32 v102, 4, v102
    v_lshl_add_u32 v{vDD}, v6, 10, v102
    s_mul_i32 s6, s{sW}, {448*1024}
    s_lshl_b32 s5, s{sCT}, 7
    s_add_u32 s6, s6, s5
    v_add_u32 v{vDD}, s6, v{vDD}
    v_add_u32 v{vDD+1}, {8192-1024}, v{vDD}
    v_add_u32 v{vDD+2}, {2*(8192-1024)}, v{vDD}
    v_add_u32 v{vDD+3}, {3*(8192-1024)}, v{vDD}
    {lead if LEAD else rot}
    v_lshl_add_u32 v{vDA}, v98, 9, v100
    v_lshl_add_u32 v{vDA}, v{vFK}, 3, v{vDA}
    v_and_b32 v102, 3, v6
    v_lshl_add_u32 v{vDA}, v102, 5, v{vDA}
    v_add_u32 v{vDA}, s{sDM}, v{vDA}
    v_xor_b32 v{vDA4[1]}, 32, v{vDA}
    v_xor_b32 v{vDA4[2]}, 64, v{vDA}
    v_xor_b32 v{vDA4[3]}, 96, v{vDA}
    s_lshl_b32 s{sSP}, s{sW}, 12
    s_add_u32 s{sSP}, s{sSP}, {3*SLOT}
    v_lshlrev_b32 v{vFK}, 7, v6
    s_sub_u32 s6, s{sSP}, s{sDM}
    v_add_u32 v{vDS}, s6, v{vDA4[0]}
    v_add_u32 v{vDS+1}, s6, v{vDA4[1]}
    v_add_u32 v{vDS+2}, s6, v{vDA4[2]}
    v_add_u32 v{vDS+3}, s6, v{vDA4[3]}
    {table}
    s_lshl_b32 s5, s{sCT}, 7
    s_and_b32 s6, s{sCT}, {0 if SPLIT or 'nosto' in OPT else 1}
    s_lshl_b32 s7, s{sT2}, 1
    s_add_u32 s7, s7, s6
    s_lshl_b32 s{sXO}, s7, 15
    s_add_u32 s{sXO}, s{sXO}, s5
    s_xor_b32 s{sXO+1}, s{sXO}, 0x8000
    s_lshl_b32 s{sSO}, s7, 9
    s_add_u32 s{sSO}, s{sSO}, {WS_ST}
    s_xor_b32 s{sSO+1}, s{sSO}, 0x200
    s_mul_i32 s4, s{sW}, {14*1024}
    s_mul_i32 s{sHL}, s7, {112*1024}
    s_add_u32 s{sHL}, s{sHL}, s4
    s_add_u32 s{sHL+1}, s{sHL}, {56*1024}
    s_lshl_b32 s4, s{sW}, 3
    v_add_u32 v102, s4, v6
    v_add_lshl_u32 v{vSO}, s4, v102, 3
    v_lshlrev_b32 v103, 4, v7
    v_lshl_add_u32 v{vXO}, v102, 10, v103
    v_mul_u32_u24 v{vYD}, {KVP_COPY}, v6
    v_add_u32 v{vYD}, v{vYD}, v103
    s_lshl_b32 s4, s{sCT}, 2
    s_add_u32 s4, s4, s{sW}
    s_mul_i32 s{sYD}, s4, {16*KVP_COPY}
    s_lshl_b32 s7, s{sT2}, 7
    s_add_u32 s{sYD}, s{sYD}, s7
    s_add_u32 s{sYD}, s{sYD}, {WS_Y}
    s_lshl_b32 s{sPH}, s{sW}, 7
    s_lshl_b32 s7, s7, 2
    s_add_u32 s{sPH}, s{sPH}, s7
    s_add_u32 s{sPH}, s{sPH}, {FL_H}
    s_lshl_b32 s4, s4, 7
    s_lshr_b32 s7, s{sT2}, 4
    s_lshl_b32 s7, s7, 12
    s_add_u32 s4, s4, s7
    s_add_u32 s{sPY}, s4, {FL_Y}
    s_mul_i32 s{sYM}, s{sW}, {2*YP}
    s_add_u32 s{sYM}, s{sYM}, {YB}
    v_mul_u32_u24 v103, {YP}, v7
    v_and_b32 v101, 6, v6
    v_add_u32 v103, v103, v101
    v_and_b32 v101, 1, v6
    v_lshl_add_u32 v103, v101, 3, v103
    s_lshl_b32 s4, s{sW}, 4
    v_add_u32 v103, s4, v103
    s_lshl_b32 s6, s6, 6
    s_add_u32 s4, s6, {YB}
    v_add_u32 v{vYG}, s4, v103
    s_sub_u32 s4, {YB + 64}, s6
    v_add_u32 v{vYG+1}, s4, v103
    v_lshrrev_b32 v103, 4, v{vLANE}
    v_xor_b32 v103, v103, v7
    v_lshlrev_b32 v103, 4, v103
    v_and_b32 v101, 15, v{vLANE}
    v_lshl_add_u32 v103, v101, 8, v103
    v_add_u32 v{vPW}, s{sDM}, v103
    v_xor_b32 v{vPW+1}, 64, v{vPW}
    v_lshlrev_b32 v103, 1, v7
    v_xor_b32 v103, v103, v6
    v_lshlrev_b32 v103, 4, v103
    v_lshl_add_u32 v{vPR}, v102, 8, v103
    v_add_u32 v{vPR}, {PART[0]}, v{vPR}
    v_xor_b32 v{vPR+1}, 16, v{vPR}
    """)
    return [x.replace(" ; ", "\n") for x in r]


def param_loads():
    return [VM(f"global_load_ushort v{vDV}, v{vDV}, s[{pSD}:{pSD+1}]"), VM(f"buffer_load_ushort v{vH0}, v{vH0}, {srd(rSK)}, 0 offen")]


SPARE = 3 * SLOT
NPRE = int(OPT.get("npre", 3))
NB = int(OPT.get("nb", 2))
GPLAN = OPT.get("gplan", "x-------")
NGE = GPLAN.count("w")
G_AG, G_G1 = NPRE + 3, NPRE + 3 + NB
G_LD = G_G1 + NGE
EARLY_SVC = int(OPT.get("esvc", 2))
RED_SLOT = (8 - NPRE) % 6
PART = [SLOT, 0] if RED_SLOT < 3 else [0, SLOT]
WD_SLOT = {g: ("S" if g < NPRE else (g - NPRE) % 6) for g in range(14)}


def wd_off(slot):
    return 0 if slot == "S" else (slot // 3) * SLOT + (slot % 3) * 4096


def wd_dma(g, slot=None, pad=False):
    slot = WD_SLOT[g] if slot is None else slot
    r = []
    for j in range(4):
        it = [VM(f"buffer_load_dwordx4 v{vDD+j}, {srd(rWD)}, s{GT[g]} offen offset:{j*1024} lds", f"wd{g}" if j == 3 else None)]
        if j == 0:
            it = [f"s_mov_b32 m0, s{sSP}" if slot == "S" else f"s_add_u32 m0, s{sDM}, {wd_off(slot)}"] + ["s_nop 0"] * pad + it
        if j == 3:
            it = [ATOM((it[0], f"s_lshr_b32 s{GT[g]}, s{GT[g]}, 5"))]
        r.append(it)
    return r


def wd_reads(g, slot=None):
    slot = WD_SLOT[g] if slot is None else slot
    va = [vDS + u for u in range(4)] if slot == "S" else vDA4
    return [DS(f"ds_read_b64_tr_b16 {ar(16*g + 4*u + 2*e, 2)}, v{va[u]} offset:{wd_off(slot) + e*2048}",
               f"wr{g}" if (u, e) == (3, 1) else None) for u in range(4) for e in range(2)]


def conv_dma(pad=True):
    out = []
    for m0, rs, so, sc, n in ((f"s{sUM}, {3*US}", rWS, sKVO, SC, 4), (f"s{sUM}, {2*US - 4}", rWS, sKVO, SC, 4),
                              (f"s{sHM}, 0", rSK, sSKO, "", 2), (f"s{sEM}, 0", rSK, 89, "", 2)):
        r = []
        for j in range(n):
            it = [VM(f"buffer_load_dwordx4 v{vL16}, {srd(rs)}, s{so} offen offset:{j*1024} {sc} lds", "cv_dma")]
            if j == 0:
                it = [f"s_add_u32 m0, {m0}"] + ["s_nop 0"] * pad + it
            r.append(it)
        out.append(r)
    return out[0] + out[1], out[2], out[3]


def conv_zero(z):
    return [DS(f"ds_write2st64_b32 v4, v{z}, v{z} offset0:0 offset1:1"),
            DS(f"ds_write2st64_b32 v5, v{z}, v{z} offset0:0 offset1:1"),
            DS(f"ds_write_b32 v{vZH}, v{vH0}", "cv_zero")]


def conv_zero_addr():
    return [f"v_add_u32 v4, {3*US + 4096}, v{vZU}", f"v_add_u32 v5, {2*US + 4092}, v{vZU}",
            f"v_mul_u32_u24 v{vH0}, s{sMH}, v{vH0}", f"v_add_u32 v0, 4, v{vLANE}", "v_min_u32 v0, 32, v0",
            "v_lshrrev_b32 v0, 5, v0", f"v_mul_u32_u24 v{vH0}, v0, v{vH0}", f"v_lshlrev_b32 v{vH0}, 16, v{vH0}"]


XR, SR = 40, 124


def row_loads():
    xl = [VM(f"buffer_load_dwordx4 {vr(XR+4*p,4)}, v{vXO}, {srd(rX)}, s{sXO+p} offen") for p in range(2)]
    return xl + [VM(f"buffer_load_dwordx2 {vr(SR+2*p,2)}, v{vSO}, {srd(rWS)}, s{sSO+p} offen {SC}", "xs" if p else None) for p in range(2)]


CUF = [("v", 128), ("a", 160)]
CHF = [("v", 160), ("a", 192)]
CACC = 64


def conv_reads(m):
    p = m & 1
    u = [DS(f"ds_read_b128 {rg(CUF[p], 4*j, 4)}, v{vUA} offset:{64*m + 512*(7-j)}", f"cu{j}") for j in range(8)]
    h = [DS(f"ds_read_b128 {rg(CHF[p], 4*j, 4)}, v{vHA} offset:{64*m + 512*j}", f"cf{m}" if j == 7 else f"ch{j}") for j in range(8)]
    return h[:1] + u + h[1:]


NHEAD = int(OPT.get("nhead", 5))


def g1_dma_setup():
    r = lines(f"""
    s_and_b32 s6, s{sIDX}, 3
    s_add_u32 s{sRB}, s{sRB}, s6
    s_mul_i32 s{sFS}, s5, 7
    s_lshr_b32 s6, s{sIDX}, 2
    s_add_u32 s{sFS}, s{sFS}, s6
    v_lshrrev_b32 v98, 4, v{vLANE}
    s_lshr_b32 s4, s{sW}, 1
    s_and_b32 s6, s{sW}, 1
    v_and_b32 v99, 1, v98
    v_lshlrev_b32 v99, 1, v99
    v_xor_b32 v99, v7, v99
    v_mul_u32_u24 v100, {F*2}, v6
    v_lshl_add_u32 v99, v99, 4, v100
    s_mul_i32 s6, s6, {32*F*2}
    s_lshl_b32 s7, s{sFS}, 7
    s_add_u32 s6, s6, s7
    v_add_u32 v{vWD}, s6, v99
    v_xor_b32 v99, 64, v{vWD}
    v_add_u32 v{vWD+1}, {8*F*2 - 1024}, v99
    v_add_u32 v{vWD+2}, {2*(8*F*2 - 1024)}, v{vWD}
    v_add_u32 v{vWD+3}, {3*(8*F*2 - 1024)}, v99
    s_lshl_b32 s{sG1S}, s{sRB}, 2
    s_add_u32 s{sG1S}, s{sG1S}, s{sW}
    s_lshl_b32 s7, s{sG1S}, 16
    v_xor_b32 v99, v7, v98
    v_lshlrev_b32 v99, 4, v99
    v_lshl_add_u32 v99, v6, 10, v99
    v_add_u32 v{vXD}, s7, v99
    v_xor_b32 v99, 64, v{vXD}
    """)
    for j in range(1, 8):
        r.append(f"v_add_u32 v{vXD+j}, {j*8192 - (j%4)*1024}, v{99 if j & 1 else vXD}")
    xr = OPT.get("xr", "1")
    if xr == "1":
        rot = f"s_lshl_b32 s{sXK}, s{sRB}, 7"
    elif xr == "x6":
        rot = f"s_and_b32 s6, s{sRB}, 3\ns_lshl_b32 s{sXK}, s6, 8"
    elif xr == "x7":
        rot = f"s_and_b32 s6, s{sRB}, 3\ns_lshl_b32 s{sXK}, s6, 7"
    elif xr == "7":
        rot = f"s_and_b32 s6, s{sRB}, 3\ns_lshl_b32 s6, s6, 1\ns_lshr_b32 s7, s{sRB}, 2\ns_add_u32 s6, s6, s7\ns_lshl_b32 s{sXK}, s6, 7"
    elif xr == "2":
        rot = f"s_lshl_b32 s6, s{sFS}, 2\ns_add_u32 s6, s6, s{sRB}\ns_and_b32 s6, s6, 7\ns_lshl_b32 s{sXK}, s6, 7"
    else:
        par = f"s_xor_b32 s7, s{sXCD}, s5" if xr == "4" else f"s_mov_b32 s7, s{sXCD}"
        rot = (f"s_add_u32 s6, s{sFS}, s{sRB}\ns_and_b32 s6, s6, 3\ns_lshl_b32 s6, s6, 1\n{par}\ns_and_b32 s7, s7, 1\n"
               f"s_add_u32 s6, s6, s7\ns_lshl_b32 s{sXK}, s6, 7")
    r += lines(f"""
    s_lshl_b32 s{sXM}, s{sW}, 13
    s_lshl_b32 s{sWM}, s{sW}, 12
    s_add_u32 s{sWM}, s{sWM}, 32768
    {rot}
    s_mov_b32 s{rW+2}, {W_BYTES}
    s_cmp_eq_u32 s4, 0
    s_waitcnt lgkmcnt(0)
    s_cselect_b32 s{rW}, s36, s38
    s_cselect_b32 s{rW+1}, s37, s39
    """)
    return r


def g1_setup():
    r = []
    if XLEAD:
        r = lines(f"""
        s_mov_b32 s42, 0x76543210
        s_mov_b32 s43, s42
        s_lshl_b32 s4, s{sRB}, 2
        s_lshr_b64 s[42:43], s[42:43], s4
        s_and_b32 s4, s{sIDX}, 28
        s_add_u32 s4, s4, {4 * XLEAD}
        s_lshr_b32 s5, s42, 4
        s_xor_b32 s5, s5, s42
        s_lshr_b32 s5, s5, s4
        s_and_b32 s5, s5, 7
        s_mul_i32 s5, s5, 17
        s_lshl_b32 s5, s5, s4
        s_cmp_lt_u32 s4, 28
        s_cselect_b32 s5, s5, 0
        s_xor_b32 s42, s42, s5
        """)
    r += lines(f"""
    v_lshrrev_b32 v102, 4, v{vLANE}
    v_and_b32 v103, 15, v{vLANE}
    v_bfe_u32 v98, v{vLANE}, 1, 3
    v_xor_b32 v98, v102, v98
    v_lshlrev_b32 v98, 4, v98
    v_lshl_add_u32 v98, v103, 7, v98
    s_lshl_b32 s4, s{sW}, 13
    v_add_u32 v{vXB}, s4, v98
    v_xor_b32 v{vXB+1}, 64, v{vXB}
    v_add_u32 v{vXA}, {2*SLOT}, v{vXB}
    v_add_u32 v{vXA+1}, {2*SLOT}, v{vXB+1}
    v_and_b32 v99, 3, v6
    v_bfe_u32 v100, v{vLANE}, 2, 2
    v_lshlrev_b32 v98, 10, v102
    v_lshl_add_u32 v98, v100, 7, v98
    v_and_b32 v101, 3, v{vLANE}
    v_lshl_add_u32 v98, v101, 3, v98
    v_lshl_add_u32 v98, v99, 5, v98
    v_add_u32 v{vWB}, 32768, v98
    v_xor_b32 v{vWB+1}, 32, v{vWB}
    v_xor_b32 v{vWB+2}, 64, v{vWB}
    v_xor_b32 v{vWB+3}, 96, v{vWB}
    v_add_u32 v{vWA}, {2*SLOT}, v{vWB}
    v_add_u32 v{vWA+1}, {2*SLOT}, v{vWB+1}
    v_add_u32 v{vWA+2}, {2*SLOT}, v{vWB+2}
    v_add_u32 v{vWA+3}, {2*SLOT}, v{vWB+3}
    s_lshl_b32 s4, s{sW}, 5
    v_xor_b32 v{vCL}, s4, v{vWB}
    s_lshl_b32 s4, s{sG1S}, 2
    s_lshr_b32 s5, s{sXCD}, 1
    s_add_u32 s4, s4, s5
    s_lshl_b32 s4, s4, 7
    s_add_u32 s{sF1}, s4, {FL_H}
    s_lshl_b32 s5, s{sFS}, 1
    s_mul_i32 s4, s{sG1S}, 224
    s_add_u32 s4, s4, s5
    s_lshl_b32 s{sHS}, s4, 10
    s_add_u32 s{sHS+1}, s{sHS}, {112*1024}
    v_add_u32 v{vHO}, {56*1024}, v{vL16}
    s_lshl_b32 s{sG1S}, s{sG1S}, 10
    s_add_u32 s{sG1S}, s{sG1S}, {WS_ST}
    v_and_b32 v98, 8, v103
    v_add_lshl_u32 v{vG1S}, v98, v103, 3
    v_lshlrev_b32 v{vCA}, 31, v4
    v_lshl_add_u32 v{vCA}, v5, 2, v{vCA}
    s_lshl_b32 s6, s{sFS}, 12
    s_add_u32 s6, s6, {WS_CS}
    s_lshl_b32 s4, s{sW}, 10
    s_add_u32 s{sCS}, s6, s4
    s_add_u32 s{sCS+2}, s4, {CSL}
    s_lshl_b32 s4, s{sRB}, 7
    s_add_u32 s{sCS+1}, s{sCS}, s4
    """)
    return r


def g1_acc(j, t, mat):
    return ACC1 + (2 * j + (t >> 1)) * 16 + 8 * mat + 4 * (t & 1)


def g1_reads(step):
    st, k2, fr = step >> 1, step & 1, FR[step & 1]
    slot = (st + 1) % 3
    xa, wa, o = (vXA, vWA, 0) if slot == 2 else (vXB, vWB, slot * SLOT)
    x = [DS(f"ds_read_b128 {rg(fr, 4*j, 4)}, v{xa+k2} offset:{o + j*2048}") for j in range(4)]
    w = [DS(f"ds_read_b64_tr_b16 {rg(fr, 16 + 4*q + 2*e, 2)}, v{wa+(q>>1)} offset:{o + (q&1)*8192 + k2*4096 + e*512}", f"g1f{step}")
         for q in range(8) for e in range(2)]
    return w[:2] + x + w[2:]


def g1_mfmas(step):
    fr, m = FR[step & 1], []
    for q in range(8):
        for j in range(4):
            acc = vr(g1_acc(j, q >> 1, q & 1), 4)
            m.append(f"v_mfma_f32_16x16x32_bf16 {acc}, {rg(fr, 16 + 4*q, 4)}, {rg(fr, 4*j, 4)}, {'0' if step == 0 else acc}")
    return m


def g1_dmas(st):
    slot = ((st + 1) % 3) * SLOT
    d = []
    for j in range(4):
        pre = [f"s_add_u32 m0, s{sWM}, {slot}", f"s_mul_i32 s{sWK}, s{sXK}, {F}"] if j == 0 else []
        post = [f"s_add_u32 m0, s{sXM}, {slot}"] if j == 3 else []
        d.append(pre + [VM(f"buffer_load_dwordx4 v{vWD+j}, {srd(rW)}, s{sWK} offen offset:{j*1024} lds", f"w{st}" if j == 3 else None)] + post)
    for j in range(8):
        post = [f"s_add_u32 m0, s{sXM}, {slot + 4096}"] if j == 3 else []
        if j == 7:
            post = [f"s_add_u32 s{sXK}, s{sXK}, 128", f"s_and_b32 s{sXK}, s{sXK}, 1023"]
            if XLEAD and st < 7:
                post = [f"s_bfe_u32 s{sXK}, s42, {0x30000 + 4 * (st + 1)}", f"s_lshl_b32 s{sXK}, s{sXK}, 7"]
        d.append([VM(f"buffer_load_dwordx4 v{vXD+j}, {srd(rX)}, s{sXK} offen offset:{(j%4)*1024} lds", f"st{st}" if j == 7 else None)] + post)
    return d


def colsum():
    T, ONE, R = 128, 144, 148
    r = [f"v_mov_b32 v{ONE+j}, 0x3f803f80" for j in range(4)] + [WAIT("w0"), "s_barrier"]
    r += [DS(f"ds_read_b64_tr_b16 {vr(T+4*q+2*e, 2)}, v{vCL} offset:{SLOT + q*4096 + e*512}", "csr") for q in range(4) for e in range(2)]
    m = [WAIT("csr")]
    m += [f"v_mfma_f32_16x16x32_bf16 {vr(R+4*(q>>1),4)}, {vr(ONE,4)}, {vr(T+4*q,4)}, {vr(R+4*(q>>1),4) if q & 1 else '0'}" for q in range(4)]
    f = lines(f"""
    v_cmp_gt_u32 s[4:5], 16, v{vLANE}
    v_and_b32 v{vCL}, 15, v{vLANE}
    v_lshlrev_b32 v{vCL}, 2, v{vCL}
    v_lshl_add_u32 v{vCL}, v4, 9, v{vCL}
    v_bfe_u32 v{R+2}, v{vLANE}, 4, 1
    v_lshl_add_u32 v{vCL}, v{R+2}, 7, v{vCL}
    v_add_u32 v{vCL}, {CSL}, v{vCL}
    v_cndmask_b32 v{R}, v{R+4}, v{R}, s[4:5]
    v_cvt_pk_bf16_f32 v{R+1}, v{R}, v{R}
    v_and_b32 v{R+1}, 0xffff0000, v{R+1}
    v_sub_f32 v{R+1}, v{R}, v{R+1}
    v_cvt_pk_bf16_f32 v44, v{R}, v{R+1}
    """) + [VM(f"buffer_store_dword v44, v{vCA}, {srd(rWS)}, s{sCS+1} offen {SC}")]
    return r, m, f


def need_setup(a, dests):
    for d in dests:
        assert any(x.split()[1:2] == [d] for x in a.lines), d


def gemm_role(a):
    a.put(g1_dma_setup())
    a.put(stamp(0))
    d0, d1 = g1_dmas(0), g1_dmas(1)
    n_first = int(OPT.get("nfirst", 5))
    n_late = int(OPT.get("nlate", 0))
    head = [x + ["s_nop 0"] if isinstance(x[-1], str) else x for x in d0[:n_first]]
    sp = int(OPT.get("stpos", 0))
    a.put(head[:sp] + (stats_loads() if sp <= n_first else []) + head[sp:])
    DEFER = OPT.get("defer", "ramp")
    su = g1_setup() + setup_common(None if DEFER == "no" else "early")
    cut = int(OPT.get("sucut", 190))
    a.put(su[:cut])
    a.put(stamp(1))
    rest = d0[n_first:] + d1[:12 - n_late]
    sc, (c_r, c_m, c_f) = stats_compute(), colsum()
    w0, w1 = int(OPT.get("walk0", 0)), int(OPT.get("walk1", 34))
    VSTEP = int(OPT.get("vstep", -1))
    vis = [[visit("A")], [visit("B")]] if VSTEP < 0 else [[visit("Z")], []]
    fill = su[cut:] + sc[:w0] + vis[0] + sc[w0:w1] + vis[1] + sc[w1:50] + [c_r] + sc[50:66] + [c_m] + sc[66:] + c_f[:-1]
    st_r, st_s = stats_publish(40)
    init_st = c_f[-1:] + st_s
    SIG = int(OPT.get("sig", 3))
    assert SIG == 3
    if "x_nofill" in OPT:
        fill = su[cut:] + vis[0] + vis[1] + [x for x in sc[66:] + c_f[:7] if "v88" not in repr(x) and "v89" not in repr(x) or "ds_write" in repr(x)] + ["v_mov_b32 v44, 0"]
        fill = ["v_mov_b32 v88, 0", "v_mov_b32 v89, 0x3d4ccccd"] + fill
        rest = [x + ["s_nop 0"] if isinstance(x[-1], str) and " m0," in x[-1] else x for x in rest]
        if sp > n_first:
            sl = [VM(x[1].replace('v[64:67]', 'a[0:3]').replace('v[68:71]', 'a[4:7]')) for x in stats_loads()]
            rest = rest[:sp - n_first] + [sl] + rest[sp - n_first:]
        a.put(fill + rest)
    elif "startup" in OPT:
        parts = {"u": su[cut:], "A": [visit("A")], "B": [visit("B")], "a": sc[:34], "b": sc[34:50], "r": [c_r], "c": sc[50:66],
                 "m": [c_m], "d": sc[66:-1], "f": c_f[:-1]}
        rest = [x + ["s_nop 0"] if isinstance(x[-1], str) and " m0," in x[-1] else x for x in rest]
        for ch in OPT["startup"]:
            if ch.isdigit():
                a.put([rest.pop(0) for _ in range(int(ch))])
            else:
                a.put(parts.pop(ch))
        assert not rest and not parts and SIG > 1
    else:
        a.weave(rest, spread(fill, len(rest), 0, len(rest) - 1))
    if WALK:
        a("s_branch L_main\nL_return:\ns_setpc_b64 s[6:7]\n.p2align 12\nL_main:")
    a.put([WAIT("st0", "st_w"), "s_barrier", stamp(2), st_r])
    a.put(g1_reads(0))

    cu, co, ce = conv_dma(pad=False)
    EBAR = int(OPT.get("ebar", 11)) if NPRE else 0
    CF = 224
    handed = [[VM(f"buffer_load_dwordx2 {vr(vMS+2*j,2)}, v{vG1S}, {srd(rWS)}, s{sG1S} offen offset:{256*j} {SC}", "g1st") for j in range(4)] +
              [f"s_mov_b32 m0, s{sCS+2}", VM(f"buffer_load_dwordx4 v{vL16}, {srd(rWS)}, s{sCS} offen {SC} lds", "csf")]]
    queue = [(x, 0, None) for x in d1[12 - n_late:]] + ([(init_st, 0, None)] if SIG == 3 else [])

    def push(items, earliest, g=None):
        queue.extend((x, earliest, g if i == len(items) - 1 else None) for i, x in enumerate(items))

    prepos = [int(c) for c in OPT.get("prepos", "345")]
    assert len(prepos) == NPRE
    for k in range(1, 8):
        if k > 1:
            push(g1_dmas(k), max(0, 2 * k - 5))
        if SIG > 3 and k == (SIG - 1) // 2:
            push([init_st], 0)
        g = prepos.index(k) if k in prepos else -1
        if 0 <= g < NPRE:
            w = wd_dma(g)
            w[0] = [lambda e, g=g: need_setup(e, [f"s{GT[g]},", f"s{sSP},", f"v{vDD+3},"])] + w[0]
            if g:
                w[0] = [WAIT(f"wr{g-1}")] + w[0]
            push(w, 0, g)
            if g == 0:
                push([[f"v_lshrrev_b32 v47, 2, v{vLANE}", "v_lshlrev_b32 v47, 7, v47",
                       VM(f"buffer_load_dword v47, v47, {srd(rSK)}, s{sSKO} offen")] + param_loads()], 0)
        if k == int(OPT.get("epos", 7)) and EBAR < 13:
            push(ce + ([] if NPRE else [param_loads()]), EBAR)
    for g in range(NPRE, G_G1 + 1):
        if g == NPRE + int(OPT.get("hpos", 2)):
            push(handed + (ce if EBAR == 13 else []), 13)
        if g < G_G1:
            push(wd_dma(g), 11 if g < NPRE + 3 else 13, g)
    push(co, 15)
    push(cu, 16)
    plan = [int(c, 16) for c in OPT.get("plan", "8887878777766666f")]
    lag = int(OPT.get("rlag", 8))
    for i, (_, _, g) in enumerate(list(queue)):
        if g is not None and g < NPRE + 3:
            nr = int(OPT.get("rn", 4))
            for k in range(nr):
                pos = min(i + (int(OPT.get("rlag0", lag)) if g == 0 else lag), len(queue) - nr) + k
                it, e, g2 = queue[pos]
                chk = [lambda e, g=g: need_setup(e, [f"s{GT[1]},"])] * (k == 0 and g == 0 and NPRE > 0)
                queue[pos] = (chk + [WAIT(f"wd{g}")] * (k == 0) + wd_reads(g)[8//nr*k:8//nr*(k+1)] + it, e, g2)

    def take(step):
        items = []
        while queue and len(items) < plan[step] and queue[0][1] <= step:
            items.append(queue.pop(0)[0])
        return items

    for step in range(16):
        st = step >> 1
        if step >= 11:
            a.put(stamp({11: 5, 12: 6, 13: 7, 14: 9, 15: 12}[step], "g7"))
        if step == 15:
            a.put([WAIT("g1f15", "csf"), stamp(13, "g7"), "s_barrier", stamp(10, "g7")])
        elif step & 1:
            wt = [f"st{st+1}", f"g1f{step}"] + ([f"wr{NPRE-1}"] if step == EBAR and NPRE else [])
            a.put([WAIT(*wt), "s_barrier", stamp([3, 4, 5, 6, 7, 8, 9][st], True)])
        else:
            a.put(WAIT(f"g1f{step}"))
        if step == 13:
            a.put([scheck(S_INIT, [82, 83], 0x80), stamp(8, "g7")])
        if step == 13 and NPRE:
            assert f"wr{NPRE-1}" in a.tags
        streams = []
        if step < 15:
            dummy = [DS(f"ds_read_b32 v0, v{vL8}")] if SIG <= step <= 9 else []
            streams.append((g1_reads(step + 1) + dummy, 0, 26))
        else:
            cr = [f"v_add_u32 v{vCA}, 64, v{vCL}"]
            cr += [DS(f"ds_read2st64_b32 {ar(CF+2*q,2)}, v{vCA if q & 1 else vCL} offset0:{4*(q>>1)} offset1:{4*(q>>1)+1}") for q in range(8)]
            streams.append((cr, 0, 26))
            c = [WAIT("g1st")]
            for j in range(4):
                c += [f"v_cvt_pk_bf16_f32 v{vBM+2*j}, -v{vMS+2*j}, -v{vMS+2*j}", f"v_mov_b32 v{vBM+2*j+1}, v{vBM+2*j}"]
            streams.append((c + conv_zero_addr() + ["v_mov_b32 v6, 0"], 8, 28))
        mine = take(step)
        streams.append((mine, 0, 31))
        if step == SIG:
            skip = a.label("sig")
            streams.append((["s_and_b32 s83, s2, 1", "s_lshl_b32 s83, s83, 7", "s_mov_b32 s79, 1",
                             ATOM((f"s_cmp_lg_u32 s{sW}, 0", f"s_cbranch_scc1 {skip}", f"s_atomic_add s79, s[{rDBG}:{rDBG+1}], s83", f"{skip}:"))], 0, 6))
        if step == 12:
            streams.append((S_INIT, 0, 2))
        if step == 15:
            streams.append((S_KV, int(OPT.get("pkv", 2)), int(OPT.get("pkv", 2)) + 8))
        chunk = spread(setup_common("late"), 16, int(OPT.get("df0", 2)), int(OPT.get("df1", 11)))[step]
        if DEFER == "sh":
            streams.append((chunk, 0, 30))
        fl, over = schedule(32, streams, 8, 2 if len(flat(mine)) > 14 else 1)
        if DEFER == "end":
            fl[15] = fl[15] + chunk
        if DEFER == "ramp":
            w = [int(v) for v in OPT.get("ramp", "0,1,1,1").split(",")]
            late = setup_common("late")
            lo = sum(w[:step]) * len(late) // sum(w)
            part = late[lo:sum(w[:step + 1]) * len(late) // sum(w)]
            g0 = 0
            if step == 0:
                g0 = 1 + max(g for g in range(32) if "init_st" in repr(fl[g]))
            ng = int(OPT.get("rampn", 1))
            if part:
                for k, c in enumerate(spread(part, ng)):
                    g = min(31, max(g0, int(OPT.get("rampg", 0))) + k * (32 - g0) // ng)
                    fl[g] = fl[g] + c
        if over:
            print(f"step {step}: {over} left over", file=sys.stderr)
        a.weave(g1_mfmas(step), fl)
        if step == VSTEP:
            a.put(visit("D", 82))
        if "x_idle" in OPT:
            for seg in OPT["x_idle"].split(","):
                lo, hi, amt = (int(v) for v in seg.split(":"))
                if lo <= step <= hi:
                    a(f"s_sleep {amt}")
    a.put([stamp(11, "g7"), scheck(S_KV, KVR, 1), "s_barrier", stamp(3), stamp(12, True)])
    c = []
    for j in range(4):
        den, c1 = vMS + 2 * j + 1, vGC + 2 * j
        c += lines(f"""
        v_rcp_f32 v{c1}, v{den}
        v_mul_f32 v{vI2+j}, v{den}, v{den}
        v_mul_f32 v{c1+1}, v{c1}, v{c1}
        v_mul_f32 v{c1+1}, v{c1+1}, v{c1}
        v_mul_f32 v{c1}, {hx(f2u(C1))}, v{c1}
        v_mul_f32 v{c1+1}, {hx(f2u(C2))}, v{c1+1}
        """)
    ms = []
    for j in range(4):
        for q in range(8):
            acc = vr(g1_acc(j, q >> 1, q & 1), 4)
            ms.append(f"v_mfma_f32_16x16x16_bf16 {acc}, {ar(CF+2*q,2)}, {vr(vBM+2*j,2)}, {acc}")
    last = take(16)
    fl, over = schedule(32, [(conv_zero(6), 0, 28), (last, 0, 31), (c, 0, 28)], 8, 2)
    assert not queue
    a.weave(ms, fl)
    a.put(stamp(4))
    plan = GPLAN
    extra = {"-": [[], [], [], []], "x": [[x] for x in row_loads()]}
    for n in range(8):
        jt, tp = n >> 1, n & 1
        a.put(x_delay(f"gelu{n}"))
        c1, acc, T = vGC + 2 * jt, ACC1 + n * 16, 96 + 8 * tp
        i2, hi = vr(vI2 + (jt & 2), 2), jt & 1
        ex = wd_dma(G_G1 + plan[:n].count("w"), None, True) if plan[n] == "w" else extra[plan[n]]
        ex = [list(flat([list(y) if isinstance(y, ATOM) else y for y in x])) for x in ex]
        if n == 7:
            ex = [[], [], [], [WAIT("cv_dma"), "s_barrier"] + conv_reads(0)[:NHEAD]]
        E = range(0, 8, 2)
        if n == (0 if plan[0] == "w" else 1):
            a.put(WAIT("allds"))
        a.put([f"v_pk_mul_f32 {vr(T+j,2)}, {vr(acc+j,2)}, {vr(acc+j,2)}" for j in E])
        a.put([f"v_pk_fma_f32 {vr(T+j,2)}, {vr(T+j,2)}, {vr(c1,2)}, {vr(c1,2)} op_sel:[0,1,0] op_sel_hi:[1,1,0]" for j in E])
        a.put([f"v_pk_mul_f32 {vr(T+j,2)}, {vr(T+j,2)}, {vr(acc+j,2)}" for j in E] + ex[0])
        a.put([f"v_exp_f32 v{T+j}, v{T+j}" for j in range(8)] + ex[1])
        a.put([f"v_pk_mul_f32 {vr(acc+j,2)}, {vr(acc+j,2)}, {vr(acc+8+j,2)}" for j in E])
        a.put([f"v_pk_fma_f32 {vr(T+j,2)}, {vr(T+j,2)}, {i2}, {i2} op_sel:[0,{hi},{hi}] op_sel_hi:[1,{hi},{hi}]" for j in E] + ex[2])
        a.put([f"v_rcp_f32 v{T+j}, v{T+j}" for j in range(8)] + ex[3])
        a.put([f"v_pk_mul_f32 {vr(acc+j,2)}, {vr(acc+j,2)}, {vr(T+j,2)}" for j in E])
        a.put([f"v_cvt_pk_bf16_f32 v{acc+8+j}, v{acc+2*j}, v{acc+2*j+1}" for j in range(4)])
        a.put(VM(f"buffer_store_dwordx4 {vr(acc+8,4)}, v{vHO if jt & 1 else vL16}, {srd(rWS)}, s{sHS+(jt>>1)} offen offset:{tp*1024} {SC}", f"h_st{n}"))
        if SPLIT and n == int(OPT.get("pub1", 7)):
            a.put([WAIT("h_st3")] + publish(sF1))
        a.put(stamp([5, 6, 7, 8, 9, 12, 13, 11][n], "ge"))

    a.put(stamp(5))


def service_role(a):
    TAPB = 8 * KVT
    a.put(lines(f"""
    s_sub_u32 s{sFS}, s2, 224
    s_lshl_b32 s6, s{sFS}, 16
    s_lshr_b32 s7, s{sW}, 1
    s_and_b32 s4, s{sW}, 1
    v_lshlrev_b32 v8, 10, v6
    v_lshl_add_u32 v8, v7, 4, v8
    v_add_u32 v8, s6, v8
    v_subrev_u32 v12, 8192, v8
    s_mul_i32 s5, s4, 3
    s_add_u32 s5, s5, 5
    s_cmp_eq_u32 s{sFS}, 0
    s_cselect_b32 s5, 8, s5
    v_cmp_le_u32 vcc, s5, v6
    v_add_u32 v9, {8192 - KVP}, v8
    v_bfrev_b32 v29, 1
    v_cndmask_b32 v12, v29, v12, vcc
    v_add_u32 v10, {2*(8192 - KVP)}, v8
    s_mul_i32 s{sXM}, s{sW}, {VB}
    s_lshl_b32 s{sXK}, s7, 7
    s_mov_b32 s{rW+2}, {X_BYTES}
    s_lshl_b32 s5, s{sW}, 10
    v_add_u32 v13, s5, v{vL16}
    s_add_u32 m0, s5, {TAPB}
    s_cmp_eq_u32 s4, 0
    s_waitcnt lgkmcnt(0)
    s_cselect_b32 s{rW}, s{pKV}, s{pKV+2}
    s_cselect_b32 s{rW+1}, s{pKV+1}, s{pKV+3}
    """))
    a.put(stamp(0))
    nt = OPT.get("kvpol", "nt").replace("none", "")

    def tile_dma(tag):
        r = [[f"s_mov_b32 m0, s{sXM}", f"s_add_u32 s{sWM}, s{sXK}, {3*8192}",
              VM(f"buffer_load_dwordx4 v12, {srd(rW)}, s{sXK} offen lds")]]
        for j in range(8):
            q, pre = j % 3, []
            so = sXK if j < 3 else sWM
            if q == 0:
                pre = [f"s_add_u32 m0, s{sXM}, {(j+1)*KVP}", f"s_add_u32 s{sWM}, s{sWM}, {3*8192}" if j == 6 else "s_nop 0"]
            r.append(pre + [VM(f"buffer_load_dwordx4 v{8+q}, {srd(rW)}, s{so} offen offset:{q*KVP} {nt} lds", tag)])
        r[-1] += [f"s_add_u32 s{sXM}, s{sXM}, {2*KVT}", f"s_add_u32 s{sXK}, s{sXK}, 256"]
        return r

    if "x_nold" in OPT:
        a("v_mov_b32 v8, v29\nv_mov_b32 v9, v29\nv_mov_b32 v10, v29\nv_mov_b32 v12, v29")
    d0, n0 = tile_dma("kv0"), 5
    a.put(stats_loads() + [VM(f"global_load_lds_dwordx4 v13, s[{pSH}:{pSH+1}]")] + d0[:n0])
    a("L_service_rest:")
    a.put(lines(f"""
    s_lshl_b32 s5, s{sW}, 3
    v_add_u32 v11, s5, v6
    v_lshlrev_b32 v14, 5, v11
    v_add_u32 v14, {TAPB}, v14
    v_sub_u32 v13, 7, v7
    v_mul_u32_u24 v13, {KVP}, v13
    v_lshl_add_u32 v13, v6, 3, v13
    s_mul_i32 s5, s7, {KVT}
    s_lshl_b32 s4, s4, 6
    s_add_u32 s5, s5, s4
    v_add_u32 v13, s5, v13
    v_mul_u32_u24 v15, {4*KVP_COPY}, v11
    v_lshl_add_u32 v15, v7, 4, v15
    s_lshl_b32 s5, s{sFS}, 7
    s_sub_u32 s{sHS}, {WS_KV + 4096 - 128}, s5
    s_lshl_b32 s4, s{sW}, 12
    s_add_u32 s4, s4, s5
    s_add_u32 s{sF1}, s4, {FL_K}
    """))
    a.put(setup_common(0) + (setup_common("wd") if EARLY_SVC else []) + [visit("S")])
    d01 = d0[n0:] + tile_dma("kv1")
    a.weave(d01, spread(stats_compute(), len(d01), 0, int(OPT.get("svs", 6))))
    a.put(stamp(2))
    RAW, TR, TP, UNP, U, OUT = 64, 16, 32, 128, 172, 192

    def tile_reads():
        r = [DS(f"ds_read_b128 {vr(TR+4*h,4)}, v14 offset:{16*h}") for h in range(2)]
        for jj in range(19):
            rho, base = (5 + jj, KB) if jj < 11 else (jj - 3, VB)
            r.append(DS(f"ds_read_b64 {vr(RAW+2*jj,2)}, v13 offset:{base + (rho >> 3) * KVP + (rho & 7) * 128}"))
        return r + [f"v_add_u32 v13, {2*KVT}, v13", "v_add_u32 v14, 1024, v14"]

    def pair(h):
        r = []
        for j in range(10):
            for ch in range(2):
                r.append(f"v_perm_b32 v{UNP+2*j+ch}, v{RAW+2*j+h}, v{RAW+2*(j+1)+h}, s{80+ch}")
        for j in range(11, 19):
            r += [f"v_lshlrev_b32 v{UNP+2*j}, 16, v{RAW+2*j+h}", f"v_and_b32 v{UNP+2*j+1}, s83, v{RAW+2*j+h}"]
        if h:
            r += [f"v_pk_mov_b32 {vr(TP+2*ch,2)}, {vr(TR+4+2*ch,2)}, {vr(TR+4+2*ch,2)} op_sel:[0,1]" for ch in range(2)]
        tp = TP if h else TR
        m = [f"v_dot2_f32_bf16 v{U+2*jj+ch}, v{UNP+2*jj+ch}, v{tp+2*ch+1}, 0" for jj in range(8) for ch in range(2)]
        m += [f"v_dot2_f32_bf16 v{U+2*jj+ch}, v{UNP+2*(jj+2)+ch}, v{tp+2*ch}, v{U+2*jj+ch}" for jj in range(8) for ch in range(2)]
        m += [f"v_pk_mul_f32 {vr(U+2*jj,2)}, {vr(U+2*jj,2)}, {vr(UNP+2*(11+jj),2)}" for jj in range(8)]
        st = []
        for ch in range(2):
            o = OUT + 8 * h + 4 * ch
            m += [f"v_cvt_pk_bf16_f32 v{o+e}, v{U+2*(7-2*e)+ch}, v{U+2*(6-2*e)+ch}" for e in range(4)]
            st.append([VM(f"buffer_store_dwordx4 {vr(o,4)}, v15, {srd(rWS)}, s{sHS} offen {SC}", "kv_st"),
                       f"s_add_u32 s{sHS}, s{sHS}, {KVP_COPY if 2*h+ch < 3 else 125*KVP_COPY}"])
        return r, m, st

    def mix(alu, mem):
        g = spread(alu, len(mem) + 1)
        a.put(g[0])
        a.weave(mem, g[1:])

    (u0, m0_, st0), (u1, m1_, st1) = pair(0), pair(1)
    pad = lines(f"""
    s_mov_b32 s83, 0xffff0000
    s_mov_b32 s80, 0x05040100
    s_mov_b32 s81, 0x07060302
    """)
    st_r, st_s = stats_publish(40)
    a.put([WAIT("kv0", "st_w"), "s_barrier", st_r] + tile_reads() + pad + st_s)
    for it in range(4):
        dm = tile_dma(f"kv{it+2}") if it < 2 else []
        if it >= 2 and EARLY_SVC:
            ew = [[y[0] if isinstance(y, ATOM) else y for y in x] for g in range(EARLY_SVC) for x in wd_dma(g, g, True)]
            k = int(OPT.get("esplit", 8))
            dm = ew[:k] if it == 2 else ew[k:]
            if it == 2 and "nostouch" not in OPT:
                dm = [lines(f"""
                s_lshl_b32 s4, s{sXCD}, 5
                s_add_u32 s4, s4, s{sIDX}
                s_lshl_b32 s4, s4, 2
                s_add_u32 s4, s4, s{sW}
                s_lshl_b32 s4, s4, 11
                v_lshrrev_b32 v27, 2, v{vLANE}
                v_lshlrev_b32 v27, 7, v27
                """) + [VM(f"buffer_load_dword v27, v27, {srd(rSK)}, s4 offen")] + dm[0]] + dm[1:]
        elif it == 2:
            dm = [[]]
            if "svt" in OPT:
                a.put(lines(f"""
                s_lshl_b32 s4, s{sFS}, 2
                s_add_u32 s4, s4, s{sW}
                s_mul_i32 s4, s4, {112*128}
                v_min_u32 v27, 55, v{vLANE}
                v_lshlrev_b32 v27, 7, v27
                s_add_u32 s5, s4, {56*128}
                """))
                dm += [[VM(f"buffer_load_dword v25, v27, {srd(rWD)}, s4 offen")], [], [], [], [],
                       [VM(f"buffer_load_dword v26, v27, {srd(rWD)}, s5 offen")]]
        a.put([WAIT("allds"), stamp([5, 7, 9, 13][it], "sv")])
        a.put(x_delay(f"kv{it}"))
        mix(u0 + m0_, (st1 if it else []) + dm[:5])
        mix(u1, st0 + dm[5:6])
        a.put(stamp([6, 8, 12, 10][it], "sv"))
        if it < 3:
            a.put([WAIT(*([f"kv{it+1}"] + ["init_st"] * (it == 1))), "s_barrier"] + tile_reads())
        if it == 1:
            a.put(init_signal())
        mix(m1_, dm[6:])
    a.put(st1)
    a.put(stamp(3))
    su = setup_common(1)
    bg = list(range(G_AG, min(G_LD, G_AG + 3)))
    bd = [[y[0] if isinstance(y, ATOM) else y for y in x] for g in bg for x in wd_dma(g, None, True)]
    sb = int(OPT.get("sb", 4)) if EARLY_SVC else 0
    su = [x for x in su if not (sb and x.split()[1] in [f"v{vDD+j}," for j in range(4)])]
    mix(su[:105], bd[:sb])
    a.put([WAIT("kv_st"), stamp(1)] + publish(sF1) + S_INIT)
    mix(su[105:], bd[sb:] if sb else [])
    a.put(["s_barrier", stamp(4)])
    cu, co, ce = conv_dma()
    early = EARLY_SVC
    a.put(param_loads() + co + ce + [wd_dma(g, g, True) for g in range(early, 3)] + [visit("C")] + ([] if sb else bd))
    a.put([f"s_lshr_b32 s{GT[g]}, s{GT[g]}, 5" for g in list(range(early)) + bg])
    for g in range(3):
        a.put([WAIT(f"wd{g}")] + wd_reads(g, g))
    a.put([scheck(S_INIT, [82, 83], 0x80)] + S_KV + [wd_dma(g, g - 3, True) for g in range(3, min(6, G_AG))])
    a.put([scheck(S_KV, KVR, 1), "s_barrier"])
    a.put(cu + (row_loads() if "x" in GPLAN else []) + conv_zero_addr() + ["v_mov_b32 v12, 0"] + conv_zero(12))
    for g in range(3, G_AG):
        a.put([WAIT(f"wd{g}")] + wd_reads(g, g % 3))
        if g + 3 < G_AG:
            a.put([WAIT("allds")] + wd_dma(g + 3, g % 3, True))
    a.put([WAIT("allds")] + [wd_dma(g, None, True) for g in range(G_AG + 3, G_LD)])
    a.put([WAIT("allvm", "allds"), "s_barrier"] + conv_reads(0)[:NHEAD])
    a.put(stamp(5))


HR, NH = 192, 16
HPOL = OPT.get("x_hpol", SC).replace("none", "")


assert SPLIT
NPF = int(OPT.get("npf", NH - 1))
G2_ORDER = [(0, jj, g) for g in range(14) for jj in range(2)] + [(1, jj, g) for jj in range(2) for g in range(14)]


def h_load(n):
    p, jj, g = G2_ORDER[n]
    post = [f"v_add_u32 v{6+jj}, {112*1024}, v{6+jj}"] if n in (26, 27) else []
    return [VM(f"buffer_load_dwordx4 {vr(HR + 4*(n % NH), 4)}, v{6+jj}, {srd(rWS)}, s{GT[g]} offen {HPOL}", f"h{n}", after=f"wd{g}")] + post


def wd_conv_stream():
    items = [wd_dma(g) for g in range(G_LD, 14)]
    pos = {g: 4 * (g - G_LD) for g in range(G_LD, 14)}
    q = sum(items, [])
    pre = [[] for _ in range(len(q) + 1)]
    slot = 0
    for g in range(G_AG, 10):
        lo = pos[g] + 3 + 7 if g >= G_LD else 0
        assert g + 6 >= G_LD
        hi = pos[g + 6] - 1 if g + 6 < 14 else len(q)
        slot = min(max(slot, lo), max(hi - 1, 0))
        assert g < G_LD or slot > pos[g] + 3
        rd = wd_reads(g)
        pre[slot] += [WAIT(f"wd{g}")] + rd[:4]
        slot = min(slot + 1, max(hi, slot))
        pre[slot] += rd[4:]
        if g + 6 < 14:
            pre[pos[g + 6]].append(WAIT(f"wr{g}"))
        slot += 1
    return sum((pre[i] + (q[i] if i < len(q) else []) for i in range(len(q) + 1)), [])


def conv(a):
    ms = []
    for m in range(4):
        p = m & 1
        for aa in range(8):
            for b in range(8 - aa):
                acc = vr(CACC + 4 * (aa + b), 4)
                c = "0" if (m == 0 and aa == 0) else acc
                ms.append(f"v_mfma_f32_16x16x32_bf16 {acc}, {rg(CUF[p], 4*b, 4)}, {rg(CHF[p], 4*aa, 4)}, {c}")
    NP, NC = int(OPT.get("npub", 48)), int(OPT.get("nchk", 96))
    head = {0: [WAIT("cu1")], 2: [WAIT("cu3")], 8: [WAIT("ch1")], 15: [WAIT("cf0")]}
    head.update({b: [WAIT(f"cu{b}")] for b in (4, 5, 6, 7)})
    head.update({36 * m: [WAIT(f"cf{m}")] for m in (1, 2, 3)})
    head[NP] = head.get(NP, []) + [WAIT("h_st7"), stamp(6)] + publish(sF1, 0x100 if SPLIT else 1)
    head[NC] = head.get(NC, []) + [check(sPH, 7, 0xff), stamp(7)]
    rest = conv_reads(0)[NHEAD:]
    dummy = [DS(f"ds_read_b32 v0, v{vL8}")]
    dterm = [DS(f"ds_read_b128 {vr(96+4*j,4)}, v{vDT} offset:{(3-j)*512}", "dt") for j in range(4)]
    unp = [WAIT("dt"), f"v_lshlrev_b32 v{vDV}, 16, v{vDV}"]
    unp += [f"v_perm_b32 v{8+4*j+r}, v{96+4*j+3-r}, v{96+4*j+3-r}, v{vPS}" for j in range(4) for r in range(4)]
    streams = [(rest + conv_reads(1) + dummy, 0, len(rest) + 17), (conv_reads(2) + dummy + dummy, 36, 64), (conv_reads(3) + dummy, 72, 100),
               (wd_conv_stream(), int(OPT.get("wd0", 4)), int(OPT.get("wd1", 84))),
               (peek(sPH), NC - int(OPT.get("php", 34)), NC - int(OPT.get("php", 34)) + 1),
               CHAIN([([f"v_add_u32 v{6+p}, s{sHL+p}, v{vL16}" for p in range(2)], 28, 32), ([h_load(n) for n in range(NPF)], NC, 143)]), CHAIN([(dterm, 108, 113), (unp, 120, 140)])]
    fl, over = schedule(144, streams, 8, int(OPT.get("cmem", 2)))
    if over:
        print(f"conv: {over} left over", file=sys.stderr)
    a.weave([head.get(i, []) + [x] for i, x in enumerate(ms)], fl)
    a.put([stamp(8), x_delay("conv")])


ACC2 = 128
XF, YV, PB = 8, 96, 64


def part_writes(p):
    return [DS(f"ds_write_b128 v{vPW+(u&1)}, {vr(ACC2 + (p*8+jj*4+u)*4, 4)} offset:{PART[p] + jj*4096 + (u>>1)*128}", f"pw{p}")
            for jj in range(2) for u in range(4)]


def part_reads(p):
    pre = [f"v_add_u32 v{vPR+e}, {hx(PART[1] - PART[0])}, v{vPR+e}" for e in range(2)] if p else []
    return pre, [DS(f"ds_read_b128 {vr(PB + 8*w + 4*e, 4)}, v{vPR+e} offset:{w*WDW}", f"pr{p}") for w in range(4) for e in range(2)]


XN = 24


def gate_first():
    b, r = PB, []
    for o in (8, 16, 24):
        r += [f"v_add_f32 v{b+j}, v{b+j}, v{b+o+j}" for j in range(8)]
    r += [f"v_mul_f32 v{b+8+j}, {hx(f2u(-1.4426950408889634))}, v{b+j}" for j in range(8)]
    r += [f"v_exp_f32 v{b+8+j}, v{b+8+j}" for j in range(8)]
    r += [f"v_mul_f32 v{XN+j}, v{XN+j}, v{b+j}" for j in range(8)]
    r += [f"v_add_f32 v{b+8+j}, 1.0, v{b+8+j}" for j in range(8)]
    r += [f"v_rcp_f32 v{b+8+j}, v{b+8+j}" for j in range(8)]
    r += [f"v_mul_f32 v{XN+j}, v{XN+j}, v{b+8+j}" for j in range(8)]
    return r


def out_store(p, src, t=44):
    return [f"v_cvt_pk_bf16_f32 v{t+j}, v{src+2*j}, v{src+2*j+1}" for j in range(4)] + \
        [VM(f"buffer_store_dwordx4 {vr(t,4)}, v{vXO}, {srd(rOUT)}, s{sXO+p} offen {OPT.get('outpol' + str(p), SC).replace('none', '').replace('_', ' ')}")]


def finalize_last():
    b, r, E = PB, [], range(0, 8, 2)
    for j in E:
        r += [f"v_pk_add_f32 {vr(b+j,2)}, {vr(b+j,2)}, {vr(b+8+j,2)}", f"v_pk_add_f32 {vr(b+16+j,2)}, {vr(b+16+j,2)}, {vr(b+24+j,2)}"]
    r += [f"v_pk_add_f32 {vr(b+j,2)}, {vr(b+j,2)}, {vr(b+16+j,2)}" for j in E]
    r += [f"v_pk_mul_f32 {vr(b+8+j,2)}, {vr(b+j,2)}, v[4:5] op_sel_hi:[1,0]" for j in E]
    r += [f"v_exp_f32 v{b+8+j}, v{b+8+j}" for j in range(8)]
    r += [f"v_pk_mul_f32 {vr(b+j,2)}, {vr(b+j,2)}, {vr(YV+8+j,2)}" for j in E]
    r += [f"v_pk_add_f32 {vr(b+8+j,2)}, {vr(b+8+j,2)}, 1.0 op_sel_hi:[1,0]" for j in E]
    r += [f"v_rcp_f32 v{b+8+j}, v{b+8+j}" for j in range(8)]
    r += [f"v_pk_fma_f32 {vr(b+j,2)}, {vr(b+j,2)}, {vr(b+8+j,2)}, {vr(XF+8+j,2)}" for j in E]
    return r + out_store(1, b)


def gemm2(a):
    ms = []
    for n, (p, jj, g) in enumerate(G2_ORDER):
        for u in range(4):
            acc = vr(ACC2 + (p * 8 + jj * 4 + u) * 4, 4)
            m = f"v_mfma_f32_16x16x32_bf16 {acc}, {ar(16*g + 4*u, 4)}, {vr(HR + 4*(n % NH), 4)}, {'0' if g == 0 else acc}"
            w = [f"h{n}"] + ([f"wr{g}"] if p == 0 and jj == 0 and g >= 9 else [])
            ms.append([WAIT(*w), m] if u == 0 else [m])
    NG = 224
    budget = [4 if g % 4 == 3 else 8 for g in range(NG)]
    NSPLIT = int(OPT.get("nsplit", 24))
    NS = NSPLIT // 4

    def exchange(half):
        return [([WAIT("wr8")] + [DS(f"ds_write_b128 v{vRW}, {vr(CACC+16*(1-half)+4*j,4)} offset:{j*1024}", "rw") for j in range(4)] +
                 [DS(f"ds_read_b32 v0, v{vL8}")], 2, NSPLIT - 6),
                ([f"v_fma_f32 v{8+j}, v{8+j}, v{vDV}, v{CACC+16*half+j}" for j in range(16)], 5, NSPLIT)]

    last = int(OPT.get("hlast", 48))
    when = lambda n: 4 * n if n < NS else NSPLIT + (n - NS) * (4 * last - NSPLIT) // (55 - NPF - NS)
    if "hpause" in OPT:
        k0, g1 = (int(v) for v in OPT["hpause"].split(":"))
        when = lambda n: 4 * n if n < k0 else 4 * g1 + (n - k0) * (4 * last - 4 * g1) // (55 - NPF - k0)
        assert k0 >= NS
    assert all(4 * (n + NPF - 3) > when(n) >= 4 * (n + NPF - NH + 1) for n in range(56 - NPF))
    hl = [(h_load(n + NPF), when(n), when(n) + 1) for n in range(56 - NPF)]
    if SPLIT:
        k2, p2 = 28 - NPF, int(OPT.get("ph2", 0))
        hl[p2] = (hl[p2][0] + peek(sPH),) + hl[p2][1:]
        hl[k2 - 1] = (hl[k2 - 1][0] + [check(sPH, 0x700)],) + hl[k2 - 1][1:]
    odd, join = a.label("odd"), a.label("join")
    a(f"s_cmp_eq_u32 s{sMH}, 0\ns_cbranch_scc0 {odd}")
    snap = (a.nvm, a.nds)
    for half, end in ((0, f"s_branch {join}\n{odd}:"), (1, f"{join}:")):
        a.nvm, a.nds = snap
        fl, over = schedule(NSPLIT, [CHAIN(hl[:NS])] + exchange(half), budget, 2)
        a.weave(ms[:NSPLIT], fl)
        a(end)

    yfin = [ATOM((WAIT("rw"), "s_barrier"))] + [DS(f"ds_read_b128 {vr(96+4*j,4)}, v{vRR} offset:{j*1024}", "rr") for j in range(4)]
    yfin.append(DS(f"ds_read_b32 v0, v{vL8}"))
    yst = [WAIT("rr")]
    for j in range(4):
        yst += [f"v_add_f32 v{8+4*j+r}, v{8+4*j+r}, v{96+4*j+r}" for r in range(4)]
        yst += [f"v_cvt_pk_bf16_f32 v{24+2*j+k}, v{8+4*j+2*k}, v{9+4*j+2*k}" for k in range(2)]
        yst.append(VM(f"buffer_store_dwordx2 {vr(24+2*j,2)}, v{vL8}, {srd(rWS)}, s{sYS} offen offset:{j*512} {SC}", "y_st" if j == 3 else None))
    if "yburst" in OPT:
        yst = [x for x in yst if not (isinstance(x, tuple) and x[0] == "vm")] + [x for x in yst if isinstance(x, tuple) and x[0] == "vm"]
    if "x_noyst" in OPT:
        yst = [x for x in yst if not (isinstance(x, tuple) and x[0] == "vm")] + [lambda e: e.tags.__setitem__("y_st", ("vm", e.nvm - 20))]
    xl = [] if "x" in GPLAN else row_loads()
    xs = [WAIT("xs")]
    for p in range(2):
        xs.append(f"v_rcp_f32 v{SR+2*p+1}, v{SR+2*p+1}")
        for j in range(4):
            xs += [f"v_lshlrev_b32 v{XF+8*p+2*j}, 16, v{XR+4*p+j}", f"v_and_b32 v{XF+8*p+2*j+1}, 0xffff0000, v{XR+4*p+j}"]
        xs.append(f"v_mul_f32 v{SR+2*p}, v{SR+2*p}, v{SR+2*p+1}")
    xs += [f"v_fma_f32 v{XN+8*p+j}, v{XF+8*p+j}, v{SR+2*p+1}, -v{SR+2*p}" for p in range(2) for j in range(8)]
    xs += [f"v_mov_b32 v{YV+j}, 0" for j in range(16)] + [f"v_mov_b32 v4, {hx(f2u(-1.4426950408889634))}"]
    YLATE = "yearly" not in OPT
    NF, NY = int(OPT.get("nf", 24)), int(OPT.get("ny", 36 if YLATE else 30))
    LY = int(OPT.get("ly", 13 if YLATE else 10))
    pre1, rd1 = part_reads(1)
    pw1 = part_writes(1)
    dummy = [DS(f"ds_read_b32 v0, v{vL8}", "dm")]
    yend = [ATOM((WAIT("y_dma"), "s_barrier"))]
    yend += [DS(f"ds_read_u16_d16_hi v{YV+8*p+j}, v{vYG+p} offset:{j*128}", f"yg{p}") for p in range(2) for j in range(8)]
    yend += [WAIT("yg0")] + [f"v_fma_f32 v{XN+j}, v{XN+j}, v{YV+j}, v{XF+j}" for j in range(8)] + out_store(0, XN)
    yend += [WAIT("yg1")] + [f"v_mul_f32 v{YV+8+j}, v{YV+8+j}, v{XN+8+j}" for j in range(8)]
    assert YLATE
    streams = [
        hl[NS:],
        [(yfin, NSPLIT, NSPLIT + 5), (yst, NSPLIT + 10, NSPLIT + int(OPT.get("ysw", 30))), (xs, 80, 116), (part_writes(0) + dummy + dummy, 118, 140),
         ([ATOM((WAIT("pw0"), "s_barrier"))] + part_reads(0)[1] + dummy, 143, 152),
         ([WAIT("pr0")] + pre1 + gate_first(), 157, 216)],
        [(xl, NSPLIT, NSPLIT + 12), ([WAIT("wd13")] + sum((wd_reads(g) for g in range(10, 14)), []) + dummy, int(OPT.get("wr0", 56)), 90),
         (pw1[:4], 176, 220)],
        [([WAIT("y_st")] + publish(sF2), 4 * NF, 4 * NF + 2), (peek(sPY), 4 * NY, 4 * NY + 1),
         ([check(sPY, 16), f"s_mov_b32 m0, s{sYM}", f"s_add_u32 s4, s{sYD}, {8*KVP_COPY - YP}",
           VM(f"buffer_load_dwordx4 v{vYD}, {srd(rWS)}, s{sYD} offen {SC} lds"),
           VM(f"buffer_load_dwordx4 v{vYD}, {srd(rWS)}, s4 offen offset:{YP} {SC} lds", "y_dma")], 4 * (NY + LY), 4 * (NY + LY) + 6)],
        [([stamp(9)], 48, 49), ([stamp(12)], 112, 113), ([stamp(13)], 168, 169)]]

    if "x_noychain" in OPT:
        streams[3] = [(streams[3][2][0][1:], 4 * 40, 4 * 40 + 6)]

    def drop(pred):
        for st in streams:
            for k, (it, g0, g1) in enumerate(st):
                st[k] = ([x for x in flat(it) if not pred(x)], g0, g1)

    txt = lambda x: repr(x)
    if "x_nolds" in OPT:
        drop(lambda x: "ds_write_b128" in txt(x) or "pw0" in txt(x) or "pr0" in txt(x) or "ds_read_b128 v[6" in txt(x) or "ds_read_b128 v[7" in txt(x) or "ds_read_b128 v[8" in txt(x) or "ds_read_b128 v[92" in txt(x))
    if "x_noldy" in OPT:
        drop(lambda x: "p_y" in txt(x))
    if "x_noydma" in OPT:
        drop(lambda x: "y_dma" in txt(x) or f"dwordx4 v{vYD}," in txt(x))
    if "x_noout0" in OPT:
        drop(lambda x: "buffer_store_dwordx4" in txt(x))
    if "x_noph2" in OPT:
        drop(lambda x: "p_h2" in txt(x) and "wait" in txt(x))
    if "x_novalu" in OPT:
        drop(lambda x: isinstance(x, str) and x.startswith("v_"))
    streams = [CHAIN((it, g0 - NSPLIT, g1 - NSPLIT) for it, g0, g1 in st) for st in streams]
    fl, over = schedule(NG - NSPLIT, streams, budget[NSPLIT:], 2)
    if over:
        print(f"gemm2: {over} left over", file=sys.stderr)
    a.weave(ms[NSPLIT:], fl)
    a.put([stamp(10), "s_nop 4"] + pw1[4:])
    fin, E = finalize_last(), range(0, 8, 2)
    k = [i for i, x in enumerate(fin) if str(x).startswith("v_exp")][-1] + 1
    a.put([WAIT("pw1", "y_dma"), "s_barrier"] + yend[1:9] + rd1 + yend[9:17])
    a.put([WAIT("yg0")] + [f"v_pk_fma_f32 {vr(XN+j,2)}, {vr(XN+j,2)}, {vr(YV+j,2)}, {vr(XF+j,2)}" for j in E] + out_store(0, XN, 40))
    a.put([WAIT("pr1")] + fin[:k])
    a.put([WAIT("yg1")] + [f"v_pk_mul_f32 {vr(YV+8+j,2)}, {vr(YV+8+j,2)}, {vr(XN+8+j,2)}" for j in E] + fin[k:])


def add_pads(a):
    import re, subprocess, tempfile, os
    probe = re.sub(r"L_page\w+", "L_return", a.text())
    d = tempfile.mkdtemp()
    open(d + "/p.s", "w").write(HEAD + probe)
    subprocess.run(["clang", "-x", "assembler", "-target", "amdgcn-amd-amdhsa", "-mcpu=gfx950", "-c",
                    d + "/p.s", "-o", d + "/p.o"], check=True)
    lst = subprocess.run(["llvm-objdump", "-d", "--mcpu=gfx950", d + "/p.o"], capture_output=True, text=True).stdout
    lst = lst[lst.index("<L_main>:"):]
    sizes = [4 * len(m.group(1).split()) for m in re.finditer(r"// [0-9A-F]{12}: ([0-9A-F ]+)", lst)]
    k = a.lines.index("L_main:") + 1
    out, off, pages, i = a.lines[:k], 0, [], 0
    region, lanes_off = "main", False
    for ln in a.lines[k:]:
        if ln in ("L_join:", "L_service:"):
            region = ln
        if ln.startswith("    "):
            if off >= 4096 * len(pages) and not lanes_off:
                out += [f"L_pad{len(pages)}:", "    s_cbranch_execz L_return"]
                pages.append(region)
                off += 4
            off += sizes[i]
            i += 1
            if "exec" in ln.split(",")[0]:
                lanes_off = ln.strip() == "s_mov_b64 exec, 0"
        out.append(ln)
    assert i == len(sizes)
    main = [p for p, r in enumerate(pages) if r != "L_service:"]
    groups = {"A": main[:4], "B": main[4:8], "Z": main[:1] + main[5:8], "D": main[1:5], "S": [p for p, r in enumerate(pages) if r == "L_service:"],
              "C": [p for p, r in enumerate(pages) if r == "L_join:"]}
    assert len(main) <= 8 and all(len(g) <= 4 for g in groups.values()), pages
    text = "\n".join(out)
    for g, ps in groups.items():
        for w in range(4):
            text = text.replace(f"L_page{g}_{w}", f"L_pad{ps[w]}" if w < len(ps) else "L_return")
    a.lines = text.split("\n")


def build():
    a = Em()
    for k in OPT.get("x_skip", "").split(","):
        if k.startswith("wd"):
            gs = [f"{srd(rWD)}, s{GT[g]} " for g in range(int(k[2:].split("-")[0]), int(k.split("-")[1]))]
            a.skip.append(lambda t, gs=gs: any(g in t for g in gs))
        if k == "wr":
            a.skip.append(lambda t: t.startswith("ds_read_b64_tr") and (f"v{vDA} " in t or f"v{vDA+1} " in t))
        if k == "cr":
            a.skip.append(lambda t: t.startswith("ds_read_b128") and f"v{vUA} " in t)
        if k == "hall":
            a.skip.append(lambda t: (", v7, " in t or ", v6, " in t) and "dwordx4 v[" in t)
        if k == "ist":
            a.skip.append(lambda t: t.startswith(("buffer_store_dword v4", "buffer_store_dwordx2 v[44")))
        if k == "stl":
            a.skip.append(lambda t: ", v96, " in t)
        if k == "hand":
            a.skip.append(lambda t: f", v{vG1S}, " in t or f"s{sCS} offen" in t)
        if k == "ce":
            a.skip.append(lambda t: "s89 offen" in t)
        if k == "ifl":
            a.skip.append(lambda t: t.startswith("buffer_store_dword v47"))
        if k == "ics":
            a.skip.append(lambda t: t.startswith("buffer_store_dword v43"))
        if k == "iss":
            a.skip.append(lambda t: t.startswith("buffer_store_dwordx2 v[44"))
        if k == "hst":
            a.skip.append(lambda t: f", v{vHO}, " in t)
        if k == "hld":
            a.skip.append(lambda t: ", v7, " in t and "dwordx4 v[" in t)
        if k == "cv":
            a.skip.append(lambda t: f"dwordx4 v{vL16}, " in t and "lds" in t)
        if k == "x":
            a.skip.append(lambda t: any(f"dwordx4 v{vXD+j}, {srd(rX)}" in t for j in range(4, 8)))
        if k == "touch":
            a.skip.append(lambda t: "dword v47" in t or "ushort" in t)
    entry(a)
    a.put(x_delay("start"))
    a(f"s_cmp_ge_u32 s{sIDX}, 28\ns_cbranch_scc1 L_service")
    snap = (a.nvm, a.nds)
    gemm_role(a)
    keep = getattr(a, "pending", None)
    if keep != 5:
        stamp_flush(a)
    a("L_join:")
    conv(a)
    gemm2(a)
    if STAMP:
        a.put([stamp(11), WAIT("allvm"), stamp(15), "s_waitcnt lgkmcnt(0)"])
        stamp_flush(a)
        a(f"""
        s_add_u32 s{rWS}, s{rWS}, {WS_TS}
        s_addc_u32 s{rWS+1}, s{rWS+1}, 0
        s_lshl_b32 s4, s2, 2
        s_add_u32 s4, s4, s{sW}
        s_lshl_b32 s4, s4, 8
        s_getreg_b32 s5, hwreg(HW_REG_XCC_ID)
        s_getreg_b32 s6, hwreg(HW_REG_HW_ID)
        v_writelane_b32 v{vST}, s5, 32
        v_writelane_b32 v{vST}, s6, 33
        v_lshlrev_b32 v4, 2, v{vLANE}
        buffer_store_dword v{vST}, v4, {srd(rWS)}, s4 offen
        """)
    if "diag" in OPT:
        k = int(OPT["diag"])
        a(f"""
        v_readlane_b32 s4, v{vST}, 30
        v_readlane_b32 s5, v{vST}, {16 + k}
        s_nop 3
        s_cmp_eq_u32 s5, 0
        s_cselect_b32 s5, s4, s5
        s_cmp_eq_u32 s2, {OPT.get("diagwg", 40)}
        s_cselect_b32 s5, s5, s4
        s_add_u32 s5, s5, 4000
        L_diag:
        s_memrealtime s[94:95]
        s_waitcnt lgkmcnt(0)
        s_sub_u32 s6, s94, s5
        s_cmp_lt_i32 s6, 0
        s_cbranch_scc1 L_diag
        """)
    a("L_exit:\ns_endpgm\nL_service:")
    a.nvm, a.nds = snap
    service_role(a)
    if keep != 5:
        stamp_flush(a)
    a("s_branch L_join")
    for t in a.tail:
        a(t)
    a("L_end:\ns_endpgm")
    if "nearsvc" in OPT:
        i0, i1 = a.lines.index("L_service:"), a.lines.index("L_service_rest:")
        k = a.lines.index("    s_cbranch_scc1 L_service")
        a.lines = (a.lines[:k] + ["    s_cbranch_scc0 L_gemm"] + a.lines[i0 + 1:i1] + ["    s_branch L_service", "L_gemm:"] +
                   a.lines[k + 1:i0 + 1] + a.lines[i1 + 1:])
    if WALK:
        add_pads(a)
    hdr = open("cdna_kernels/" + NAME + ".s.ref").read().split("; Override launch")[0]
    t = hdr + f"; @launch grid=(256,1,1) block=(256,1,1) lds={LDS_BYTES}\n" + HEAD + (".p2align 12\n" if WALK else "") + kernel_text(KERNEL, a.text())
    t += '.section .rodata,"a"\n' + descriptor(KERNEL, vgpr=512, accum=256)
    return t


if __name__ == "__main__":
    open(sys.argv[1], "w").write(build())
```
